```python
import torch

def _softmax(x, axis=-1):
    return torch.softmax(x, dim=axis)
def _gelu(x):
    return torch.nn.functional.gelu(x, approximate="tanh")
def _silu(x):
    return torch.nn.functional.silu(x)
def _sigmoid(x):
    return torch.sigmoid(x)
def _layernorm(x, axis=-1, eps=1e-5):
    m = x.mean(dim=axis, keepdim=True)
    v = x.var(dim=axis, keepdim=True, unbiased=False)
    return (x - m) / torch.sqrt(v + eps)
def _scatter_add(tgt, idx, src, axis=0):
    return tgt.clone().index_add_(axis, idx, src)
def _segment_sum(src, seg, n):
    out = torch.zeros((n,) + src.shape[1:], dtype=src.dtype)
    return out.index_add_(0, seg, src)
def _pad(x, pw):
    flat = tuple(v for pair in reversed(pw) for v in pair)
    return torch.nn.functional.pad(x, flat)

kernel_name = 'standalone__molecular_angular_gemnet__graph'

def setup_inputs():

    _w = (lambda a: (lambda t: t.to(torch.bfloat16) if t.is_floating_point() else t)(torch.as_tensor(a)))
    N, deg, De, L = 10000, 32, 16, 1
    E = N * deg
    T = E * deg
    NR = 8
    dist = torch.rand(E).to(float)
    angle = (torch.rand(T) * torch.pi).to(float)
    centers = torch.linspace(0.0, 1.0, NR).to(float)
    ang_freq = torch.arange(1, L + 1).to(float)
    return {
        "m": _w((lambda *s: torch.randn(*s, dtype=torch.bfloat16) * 0.05)(E, De)),
        "idx_in": _w((lambda lo, hi, *s: torch.randint(lo, hi, s))(0, E, T).to(torch.int64)),
        "idx_out": _w((lambda lo, hi, *s: torch.randint(lo, hi, s))(0, E, T).to(torch.int64)),
        "dist": _w(dist),
        "angle": _w(angle),
        "centers": _w(centers),
        "ang_freq": _w(ang_freq),
        "w_rbf": _w((lambda *s: torch.randn(*s, dtype=torch.bfloat16) * 0.2)(NR, De)),
        "w_sbf": _w((lambda *s: torch.randn(*s, dtype=torch.bfloat16) * 0.2)(NR * L, De)),
        "w_down": _w((lambda *s: torch.randn(*s, dtype=torch.bfloat16) * 0.2)(De, De)),
        "w_up": _w((lambda *s: torch.randn(*s, dtype=torch.bfloat16) * 0.2)(De, De)),
    }

def reference(m, idx_in, idx_out, dist, angle, centers, ang_freq, w_rbf, w_sbf, w_down, w_up):
    E, De = m.shape[0], m.shape[1]
    NR = centers.shape[0]
    L = ang_freq.shape[0]
    rbf = torch.exp(-10.0 * (dist[:, None] - centers[None, :]) ** 2)
    cbf = torch.cos(ang_freq[None, :] * angle[:, None])
    rbf_t = rbf[idx_out]
    sbf = torch.reshape(rbf_t[:, :, None] * cbf[:, None, :], (-1, NR * L))
    x = (m[idx_in] @ w_down) * (sbf @ w_sbf)
    agg = _segment_sum(x, idx_out, E)
    return m + (agg @ w_up) * (rbf @ w_rbf)
```

```python
import struct, sys, math

def f32bits(x):
    return struct.unpack('<I', struct.pack('<f', x))[0]
def bits2f(b):
    return struct.unpack('<f', struct.pack('<I', b))[0]

E = 320000
T = 10240000
NT = 256
TILE = T // NT
TILE_LINES = 2752
TILE_BYTES = TILE_LINES * 128
REC_OFF = 0x40000
REC_BYTES = NT * TILE_BYTES
KSH = 14
NK = (E + (1 << KSH) - 1) >> KSH
HIST = 131072
TMP = HIST + NK * 1024
DUMMY_ROW = 1264

class Asm:
    def __init__(self):
        self.lines = []
    def __call__(self, s=''):
        for l in s.split('\n'):
            self.lines.append(l)
    def label(self, s):
        self.lines.append(s + ':')
    def text(self):
        return '\n'.join(self.lines) + '\n'

def vr(a, n=1):
    return f'v{a}' if n == 1 else f'v[{a}:{a+n-1}]'
def sr(a, n=1):
    return f's{a}' if n == 1 else f's[{a}:{a+n-1}]'

def srd(a, d, ptr, size):
    a(f'  s_mov_b32 s{d}, s{ptr}')
    a(f'  s_and_b32 s{d+1}, s{ptr+1}, 0xffff')
    a(f'  s_mov_b32 s{d+2}, {size}')
    a(f'  s_mov_b32 s{d+3}, 0x20000')

def gen_p1(a, opt):
    NTF = ' nt' if opt.get('nt_in', True) else ''
    STF = ' nt' if opt.get('nt_st', False) else ''
    W0, W1, AUX = 8, 48, 88
    Tm = 108
    inv2pi = 1.0 / (2.0 * math.pi)
    chi_bits = f32bits(inv2pi) & 0xffffff00
    chi = bits2f(chi_bits)
    clo_bits = f32bits(inv2pi - chi)
    a('.p2align 8')
    a('.type p1_kernel,@function')
    a.label('p1_kernel')
    a('  s_cmp_ge_u32 s2, 256')
    a('  s_cbranch_scc1 p1_done')
    a('  s_load_dwordx4 s[32:35], s[0:1], 8')
    a('  s_load_dwordx2 s[36:37], s[0:1], 32')
    a('  s_load_dwordx2 s[38:39], s[0:1], 48')
    a('  s_load_dwordx2 s[28:29], s[0:1], 104')
    a('  v_lshlrev_b32 v1, 4, v0')
    a(f'  v_add_u32 v2, {HIST}, v1')
    for r in range(4, 8):
        a(f'  v_mov_b32 v{r}, 0')
    a('  ds_write_b128 v2, v[4:7]')
    a('  ds_write_b128 v2, v[4:7] offset:16384')
    a('  s_mul_i32 s40, s2, 160000')
    a('  s_mul_i32 s41, s2, 80000')
    a('  v_add_u32 v1, s40, v1')
    a('  v_lshlrev_b32 v3, 3, v0')
    a('  v_add_u32 v3, s41, v3')
    a('  v_readfirstlane_b32 s24, v0')
    a('  v_cmp_gt_u32 vcc, 1000, v0')
    a('  s_lshr_b32 s24, s24, 6')
    a('  s_mov_b64 s[44:45], vcc')
    for i in range(1, 10):
        a(f'  s_mov_b32 s{45+i}, {i*16000}')
        a(f'  s_mov_b32 s{55+i}, {i*8000}')
    a('  s_waitcnt lgkmcnt(0)')
    a('  s_load_dword s26, s[38:39], 0')
    srd(a, 4, 32, T * 4)
    srd(a, 8, 34, T * 4)
    srd(a, 12, 36, T * 2)
    a('  s_mov_b64 exec, s[44:45]')
    for i in range(10):
        so = '0' if i == 0 else f's{45+i}'
        sa = '0' if i == 0 else f's{55+i}'
        a(f'  buffer_load_dwordx4 {vr(W0+4*i,4)}, v1, s[4:7], {so} offen{NTF}')
        a(f'  buffer_load_dwordx4 {vr(W1+4*i,4)}, v1, s[8:11], {so} offen{NTF}')
        a(f'  buffer_load_dwordx2 {vr(AUX+2*i,2)}, v3, s[12:15], {sa} offen{NTF}')
    a('  s_mov_b32 s27, 0xffff0000')
    a(f'  s_mov_b32 s30, {chi_bits:#x}')
    a(f'  s_mov_b32 s31, {clo_bits:#x}')
    a(f'  s_mov_b32 s42, {HIST}')
    a('  s_mov_b32 s43, 0x3fc')
    a('  v_mov_b32 v2, 1')
    a('  s_waitcnt lgkmcnt(0)')
    a('  s_and_b32 s26, s26, 0xffff')
    a('  s_lshl_b32 s26, s26, 16')
    a('  s_barrier')
    t = [Tm + i for i in range(20)]
    for i in range(10):
        A = [W0 + 4*i + e for e in range(4)]
        O = [W1 + 4*i + e for e in range(4)]
        G = [AUX + 2*i, AUX + 2*i + 1]
        a(f'  s_waitcnt vmcnt({27 - 3*i})')
        a(f'  v_lshlrev_b32 v{t[0]}, 16, v{G[0]}')
        a(f'  v_and_b32 v{t[1]}, s27, v{G[0]}')
        a(f'  v_lshlrev_b32 v{t[2]}, 16, v{G[1]}')
        a(f'  v_and_b32 v{t[3]}, s27, v{G[1]}')
        for e in range(4):
            a(f'  v_mul_f32 v{t[e]}, s26, v{t[e]}')
        a(f'  v_cvt_pk_bf16_f32 v{t[4]}, v{t[0]}, v{t[1]}')
        a(f'  v_cvt_pk_bf16_f32 v{t[5]}, v{t[2]}, v{t[3]}')
        for e in range(4):
            a(f'  v_lshrrev_b32 v{t[8+e]}, 8, v{O[e]}')
        a(f'  v_lshlrev_b32 v{t[0]}, 16, v{t[4]}')
        a(f'  v_and_b32 v{t[1]}, s27, v{t[4]}')
        a(f'  v_lshlrev_b32 v{t[2]}, 16, v{t[5]}')
        a(f'  v_and_b32 v{t[3]}, s27, v{t[5]}')
        for e in range(4):
            a(f'  v_bfi_b32 v{t[8+e]}, 15, v{O[e]}, v{t[8+e]}')
        for e in range(4):
            a(f'  v_mul_f32 v{t[4+e]}, s30, v{t[e]}')
        for e in range(4):
            a(f'  v_fract_f32 v{t[4+e]}, v{t[4+e]}')
        for e in range(4):
            a(f'  v_fma_f32 v{t[4+e]}, v{t[e]}, s31, v{t[4+e]}')
        for e in range(4):
            a(f'  v_cos_f32 v{t[4+e]}, v{t[4+e]}')
        for e in range(4):
            a(f'  v_lshrrev_b32 v{t[12+e]}, 2, v{O[e]}')
        for e in range(4):
            a(f'  v_lshrrev_b32 v{t[e]}, {KSH}, v{A[e]}')
        for e in range(4):
            a(f'  v_and_b32 v{t[12+e]}, s43, v{t[12+e]}')
        for e in range(4):
            a(f'  v_lshl_or_b32 v{t[12+e]}, v{t[e]}, 10, v{t[12+e]}')
        a(f'  v_cvt_pk_bf16_f32 v{t[16]}, v{t[4]}, v{t[5]}')
        a(f'  v_cvt_pk_bf16_f32 v{t[17]}, v{t[6]}, v{t[7]}')
        for e in range(4):
            a(f'  v_add_u32 v{t[e]}, s42, v{t[12+e]}')
        for e in range(4):
            a(f'  ds_add_u32 v{t[e]}, v2')
        for e in range(4):
            a(f'  v_lshlrev_b32 v{A[e]}, 5, v{A[e]}')
        a(f'  v_lshl_or_b32 v{O[0]}, v{t[16]}, 16, v{t[8]}')
        a(f'  v_and_or_b32 v{O[1]}, v{t[16]}, s27, v{t[9]}')
        a(f'  v_lshl_or_b32 v{O[2]}, v{t[17]}, 16, v{t[10]}')
        a(f'  v_and_or_b32 v{O[3]}, v{t[17]}, s27, v{t[11]}')
        a(f'  v_lshl_or_b32 v{G[0]}, v{t[13]}, 16, v{t[12]}')
        a(f'  v_lshl_or_b32 v{G[1]}, v{t[15]}, 16, v{t[14]}')
    a('  s_mov_b64 exec, -1')
    a('  s_waitcnt lgkmcnt(0)')
    a('  s_barrier')
    a('  v_lshlrev_b32 v4, 2, v0')
    a(f'  v_add_u32 v4, {HIST}, v4')
    a('  s_cmp_ge_u32 s24, 4')
    a('  s_cbranch_scc1 p1_skip1')
    for k in range(NK):
        a(f'  ds_read_b32 v{t[k]}, v4 offset:{k*1024}')
    a('  v_mov_b32 v5, 0')
    a('  s_waitcnt lgkmcnt(0)')
    ra, rb = 5, 6
    for k in range(NK):
        a(f'  v_add_u32 v{rb}, v{ra}, v{t[k]}')
        a(f'  v_mov_b32 v{t[k]}, v{ra}')
        ra, rb = rb, ra
    assert ra == 5
    a('  v_add_u32 v6, 15, v5')
    a('  v_and_b32 v6, -16, v6')
    a('  v_mov_b32 v7, v6')
    for sh in (1, 2, 4, 8):
        a('  s_nop 1')
        a(f'  v_add_u32_dpp v7, v7, v7 row_shr:{sh} row_mask:0xf bank_mask:0xf bound_ctrl:0')
    a('  s_nop 1')
    a('  v_add_u32_dpp v7, v7, v7 row_bcast:15 row_mask:0xa bank_mask:0xf')
    a('  s_nop 1')
    a('  v_add_u32_dpp v7, v7, v7 row_bcast:31 row_mask:0xc bank_mask:0xf')
    a('  s_lshl_b32 s40, s24, 2')
    a(f'  s_add_u32 s40, s40, {TMP}')
    a('  v_mov_b32 v3, s40')
    a('  s_mov_b32 exec_lo, 0')
    a('  s_mov_b32 exec_hi, 0x80000000')
    a('  ds_write_b32 v3, v7')
    a('  s_mov_b64 exec, -1')
    a.label('p1_skip1')
    a('  s_waitcnt lgkmcnt(0)')
    a('  s_barrier')
    a(f'  v_mov_b32 v1, {TMP}')
    a('  ds_read2_b32 v[2:3], v1 offset0:0 offset1:1')
    a('  s_waitcnt lgkmcnt(0)')
    a('  v_readfirstlane_b32 s66, v2')
    a('  v_readfirstlane_b32 s67, v3')
    a('  ds_read2_b32 v[2:3], v1 offset0:2 offset1:3')
    a('  s_waitcnt lgkmcnt(0)')
    a('  v_readfirstlane_b32 s68, v2')
    a('  v_readfirstlane_b32 s69, v3')
    a('  s_nop 3')
    a('  s_add_u32 s70, s66, s67')
    a('  s_add_u32 s71, s70, s68')
    a('  s_add_u32 s72, s71, s69')
    a('  s_cmp_ge_u32 s24, 4')
    a('  s_cbranch_scc1 p1_skip2')
    a('  s_mov_b32 s73, 0')
    a('  s_cmp_eq_u32 s24, 1')
    a('  s_cselect_b32 s73, s66, s73')
    a('  s_cmp_eq_u32 s24, 2')
    a('  s_cselect_b32 s73, s70, s73')
    a('  s_cmp_eq_u32 s24, 3')
    a('  s_cselect_b32 s73, s71, s73')
    a('  v_sub_u32 v7, v7, v6')
    a('  v_add_u32 v7, s73, v7')
    for k in range(NK):
        a(f'  v_add_u32 v{t[k]}, v7, v{t[k]}')
        a(f'  ds_write_b32 v4, v{t[k]} offset:{k*1024}')
    a('  v_lshl_or_b32 v5, v7, 12, v5')
    srd(a, 20, 28, 262144)
    a('  s_lshl_b32 s40, s2, 2')
    a('  v_lshlrev_b32 v6, 10, v0')
    a('  buffer_store_dword v5, v6, s[20:23], s40 offen')
    a.label('p1_skip2')
    a('  s_waitcnt lgkmcnt(0)')
    a('  s_barrier')
    a('  v_mov_b32 v2, 1')
    a(f'  v_mov_b32 v1, {HIST}')
    a('  s_mov_b64 exec, s[44:45]')
    def rank_issue(b):
        base = (b & 1) * 8
        for x in range(8):
            rec = b * 8 + x
            j, h = rec >> 1, rec & 1
            ad = 4 + (x & 3)
            a(f'  v_add_u32_sdwa v{ad}, v1, v{AUX+j} dst_sel:DWORD dst_unused:UNUSED_PAD src0_sel:DWORD src1_sel:WORD_{h}')
            a(f'  ds_add_rtn_u32 v{t[base+x]}, v{ad}, v2')
    def rank_pack(b):
        base = (b & 1) * 8
        for x in range(0, 8, 2):
            j = (b * 8 + x) >> 1
            a(f'  v_lshl_or_b32 v{AUX+j}, v{t[base+x+1]}, 16, v{t[base+x]}')
    rank_issue(0)
    for b in range(5):
        if b + 1 < 5:
            rank_issue(b + 1)
            a('  s_waitcnt lgkmcnt(8)')
        else:
            a('  s_waitcnt lgkmcnt(0)')
        rank_pack(b)
    a('  s_mul_i32 s40, s2, %d' % TILE_BYTES)
    a('  s_add_u32 s28, s28, s40')
    a('  s_addc_u32 s29, s29, 0')
    a(f'  s_add_u32 s28, s28, {REC_OFF}')
    a('  s_addc_u32 s29, s29, 0')
    for i in range(1, 8):
        a(f'  s_mov_b32 s{45+i}, {i*16384}')
    a('  s_mov_b32 s43, 0x20000')
    for s in range(3):
        a('  s_mov_b64 exec, s[44:45]')
        if s > 0:
            a(f'  s_mov_b32 s42, {s*131072}')
        for x in range(40):
            j, h = x >> 1, x & 1
            ad = 4 + (x & 3)
            a(f'  v_lshlrev_b32_sdwa v{ad}, 3, v{AUX+j} dst_sel:DWORD dst_unused:UNUSED_PAD src0_sel:DWORD src1_sel:WORD_{h}')
            if s > 0:
                a(f'  v_subrev_u32 v{ad}, s42, v{ad}')
            a(f'  v_cmpx_gt_u32 vcc, s43, v{ad}')
            a(f'  ds_write2_b32 v{ad}, v{W0+x}, v{W1+x} offset0:0 offset1:1')
            a('  s_mov_b64 exec, s[44:45]')
        a('  s_mov_b64 exec, -1')
        a(f'  s_add_u32 s16, s28, {s*131072}')
        a('  s_addc_u32 s17, s29, 0')
        a('  s_and_b32 s17, s17, 0xffff')
        if s < 2:
            a('  s_mov_b32 s18, 131072')
        else:
            a('  s_sub_u32 s18, s72, 32768')
            a('  s_lshl_b32 s18, s18, 3')
        a('  s_mov_b32 s19, 0x20000')
        a('  v_lshlrev_b32 v1, 4, v0')
        a('  v_add_u32 v3, 0x10000, v1')
        a('  s_waitcnt lgkmcnt(0)')
        a('  s_barrier')
        nb = 2
        for bt in range(nb):
            nr = 4 if (s < 2 or bt == 0) else 2
            for u in range(nr):
                a(f'  ds_read_b128 {vr(t[4*u],4)}, v{1 if bt == 0 else 3} offset:{u*16384}')
            for u in range(nr):
                a(f'  s_waitcnt lgkmcnt({nr-1-u})')
                rnd = bt * 4 + u
                so = '0' if rnd == 0 else f's{45+rnd}'
                a(f'  buffer_store_dwordx4 {vr(t[4*u],4)}, v1, s[16:19], {so} offen{STF}')
            if bt == 0:
                a('  s_nop 1')
        if s < 2:
            a('  s_barrier')
    a.label('p1_done')
    a('  s_endpgm')

def gen_p2(a, opt):
    J2, J8, P = 1, 2, 3
    VN, VL, VB = 5, 6, 7
    Eq = [8, 9, 10, 11]
    REC = [12, 14]; VV = [16, 17]
    COL = 18; CC = [19, 21]; ROW = [20, 22]
    VDUM = 23
    D = [24, 26]; PT = [28, 29]; LA = [30, 31]; GAD = [32, 33]
    X = [34, 35, 36, 37, 38, 39]
    G = [40, 56]
    WD, WU, WS, WR, CEN = 72, 76, 80, 82, 84
    VROW4, VLANE = 86, 87
    a('.p2align 8')
    a('.type p2_kernel,@function')
    a.label('p2_kernel')
    a('  s_cmp_ge_u32 s2, 256')
    a('  s_cbranch_scc1 p2_done')
    a('  s_load_dwordx2 s[32:33], s[0:1], 0')
    a('  s_load_dwordx2 s[34:35], s[0:1], 24')
    a('  s_load_dwordx2 s[36:37], s[0:1], 40')
    a('  s_load_dwordx4 s[40:43], s[0:1], 56')
    a('  s_load_dwordx4 s[44:47], s[0:1], 72')
    a('  s_load_dwordx2 s[48:49], s[0:1], 88')
    a('  s_load_dwordx2 s[28:29], s[0:1], 104')
    a('  v_lshlrev_b32 v4, 4, v0')
    for r in range(40, 44):
        a(f'  v_mov_b32 v{r}, 0')
    a('  v_add_u32 v5, 0x10000, v4')
    a('  v_add_u32 v6, 0x20000, v4')
    for i in range(4):
        a(f'  ds_write_b128 v4, v[40:43] offset:{i*16384}')
    for i in range(4):
        a(f'  ds_write_b128 v5, v[40:43] offset:{i*16384}')
    for i in range(2):
        a(f'  ds_write_b128 v6, v[40:43] offset:{i*16384}')
    a('  v_readfirstlane_b32 s24, v0')
    a(f'  v_and_b32 v{VLANE}, 63, v0')
    a(f'  v_and_b32 v{P}, 15, v0')
    a('  s_lshr_b32 s24, s24, 6')
    a(f'  v_lshlrev_b32 v{J2}, 1, v{P}')
    a(f'  v_lshlrev_b32 v{J8}, 3, v{P}')
    a(f'  v_lshrrev_b32 v{VROW4}, 4, v{VLANE}')
    a(f'  v_mov_b32 v{VDUM}, {DUMMY_ROW*128}')
    for r in list(range(G[0], G[0]+16)) + list(range(G[1], G[1]+16)):
        a(f'  v_mov_b32 v{r}, 0')
    a('  s_waitcnt lgkmcnt(0)')
    srd(a, 4, 32, E * 32)
    a(f'  s_add_u32 s8, s28, {REC_OFF}')
    a('  s_addc_u32 s9, s29, 0')
    a('  s_and_b32 s9, s9, 0xffff')
    a(f'  s_mov_b32 s10, {REC_BYTES}')
    a('  s_mov_b32 s11, 0x20000')
    srd(a, 12, 28, 262144)
    srd(a, 16, 48, E * 32)
    srd(a, 20, 34, E * 2)
    a('  s_lshl_b32 s25, s2, 8')
    a('  s_lshl_b32 s26, s24, 4')
    a('  s_add_u32 s25, s25, s26')
    a('  s_lshl_b32 s25, s25, 2')
    a(f'  v_lshlrev_b32 v{X[0]}, 2, v{P}')
    a(f'  buffer_load_dword v{VN}, v{X[0]}, s[12:15], s25 offen')
    a(f'  v_lshlrev_b32 v{X[1]}, 7, v{VROW4}')
    a(f'  v_add_u32 v{X[1]}, v{X[1]}, v{J2}')
    for q in range(4):
        a(f'  global_load_ushort v{WD+q}, v{X[1]}, s[44:45] offset:{q*32}')
    for q in range(4):
        a(f'  global_load_ushort v{WU+q}, v{X[1]}, s[46:47] offset:{q*32}')
    a(f'  v_lshlrev_b32 v{X[2]}, 5, v{VROW4}')
    a(f'  v_add_u32 v{X[2]}, v{X[2]}, v{J2}')
    for q in range(2):
        a(f'  global_load_ushort v{WS+q}, v{X[2]}, s[42:43] offset:{q*128}')
    for q in range(2):
        a(f'  global_load_ushort v{WR+q}, v{X[2]}, s[40:41] offset:{q*128}')
    a(f'  v_lshlrev_b32 v{X[3]}, 1, v{VROW4}')
    for q in range(2):
        a(f'  global_load_ushort v{CEN+q}, v{X[3]}, s[36:37] offset:{q*8}')
    a('  s_waitcnt vmcnt(0)')
    for r in range(WD, CEN + 2):
        a(f'  v_lshlrev_b32 v{r}, 16, v{r}')
    a(f'  v_lshrrev_b32 v{VB}, 16, v{VN}')
    a(f'  v_and_b32 v{VN}, 0xffff, v{VN}')
    a(f'  v_add_u32 v{VL}, 15, v{VN}')
    a(f'  v_lshrrev_b32 v{VL}, 4, v{VL}')
    a('  s_lshl_b32 s26, s24, 4')
    a(f'  v_add_u32 v{X[0]}, s26, v{P}')
    a(f'  s_mov_b32 s27, {TILE_LINES}')
    a(f'  v_mul_lo_u32 v{X[0]}, v{X[0]}, s27')
    a(f'  v_add_u32 v{VB}, v{VB}, v{X[0]}')
    a(f'  v_mov_b32 v{X[0]}, v{VL}')
    for sh in (1, 2, 4, 8):
        a('  s_nop 1')
        a(f'  v_max_u32_dpp v{X[0]}, v{X[0]}, v{X[0]} row_ror:{sh} row_mask:0xf bank_mask:0xf')
    a('  s_nop 1')
    a(f'  v_readfirstlane_b32 s50, v{X[0]}')
    a('  s_mov_b32 s51, 0')
    a('  s_mov_b32 s52, 0xffffff80')
    a('  s_mov_b32 s53, 0xffff0000')
    a('  s_mov_b32 s54, 0x3ff80')
    a('  s_waitcnt lgkmcnt(0)')
    a('  s_barrier')
    a.label('p2_outer')
    a('  s_cmp_ge_u32 s51, s50')
    a('  s_cbranch_scc1 p2_main_done')
    for k in range(4):
        a(f'  s_add_u32 s60, s51, {4*k}')
        a(f'  v_add_u32 v{X[0]}, s60, v{VROW4}')
        a(f'  v_cmp_gt_u32 vcc, v{VL}, v{X[0]}')
        a(f'  v_lshlrev_b32 v{X[1]}, 4, v{X[0]}')
        a(f'  v_sub_u32 v{X[1]}, v{VN}, v{X[1]}')
        a(f'  v_min_u32 v{X[1]}, 16, v{X[1]}')
        a(f'  v_add_u32 v{X[2]}, v{VB}, v{X[0]}')
        a(f'  v_lshl_or_b32 v{X[2]}, v{X[2]}, 7, v{X[1]}')
        a(f'  s_bcnt1_i32_b64 s61, vcc')
        a(f'  v_mbcnt_lo_u32_b32 v{X[3]}, vcc_lo, 0')
        a(f'  v_mbcnt_hi_u32_b32 v{X[3]}, vcc_hi, v{X[3]}')
        a(f'  v_sub_u32 v{X[4]}, v{VLANE}, v{X[3]}')
        a(f'  v_add_u32 v{X[4]}, s61, v{X[4]}')
        a(f'  v_cndmask_b32 v{X[4]}, v{X[4]}, v{X[3]}, vcc')
        a(f'  v_cndmask_b32 v{X[2]}, 0, v{X[2]}, vcc')
        a(f'  v_and_b32 v{X[5]}, 3, v{X[4]}')
        a(f'  v_lshlrev_b32 v{X[5]}, 6, v{X[5]}')
        a(f'  v_and_or_b32 v{X[5]}, v{X[4]}, -4, v{X[5]}')
        a(f'  ds_permute_b32 v{Eq[k]}, v{X[5]}, v{X[2]}')
        a(f'  s_add_u32 s{56+k}, s61, 3')
        a(f'  s_lshr_b32 s{56+k}, s{56+k}, 2')
    a('  s_add_u32 s62, s56, s57')
    a('  s_add_u32 s62, s62, s58')
    a('  s_add_u32 s62, s62, s59')
    a('  s_add_u32 s62, s62, 1')
    a('  s_lshr_b32 s62, s62, 1')
    a('  s_mov_b32 s63, 3')
    a('  s_waitcnt lgkmcnt(0)')
    uid = [0]
    def stageA(b):
        u = uid[0]; uid[0] += 1
        a.label(f'p2_chk{u}')
        a('  s_cmp_lg_u32 s56, 0')
        a(f'  s_cbranch_scc1 p2_go{u}')
        a('  s_cmp_eq_u32 s63, 0')
        a(f'  s_cbranch_scc1 p2_exh{u}')
        a(f'  v_mov_b32 v{Eq[0]}, v{Eq[1]}')
        a(f'  v_mov_b32 v{Eq[1]}, v{Eq[2]}')
        a(f'  v_mov_b32 v{Eq[2]}, v{Eq[3]}')
        a('  s_mov_b32 s56, s57')
        a('  s_mov_b32 s57, s58')
        a('  s_mov_b32 s58, s59')
        a('  s_sub_u32 s63, s63, 1')
        a(f'  s_branch p2_chk{u}')
        a.label(f'p2_exh{u}')
        a(f'  v_mov_b32 v{Eq[0]}, 0')
        a('  s_mov_b32 s56, 1')
        a('  s_nop 0')
        a.label(f'p2_go{u}')
        a('  s_sub_u32 s56, s56, 1')
        a(f'  v_mov_b32_dpp v{X[0]}, v{Eq[0]} row_newbcast:0 row_mask:0xf bank_mask:0xf')
        a(f'  v_mov_b32_dpp v{Eq[0]}, v{Eq[0]} row_shl:1 row_mask:0xf bank_mask:0xf bound_ctrl:0')
        a(f'  v_and_or_b32 v{X[1]}, v{X[0]}, s52, v{J8}')
        a(f'  v_and_b32 v{VV[b]}, 31, v{X[0]}')
        a(f'  buffer_load_dwordx2 {vr(REC[b],2)}, v{X[1]}, s[8:11], 0 offen')
    def decode(b):
        a(f'  v_cmp_gt_u32 vcc, v{VV[b]}, v{P}')
        a(f'  v_lshlrev_b32 v{X[2]}, 7, v{REC[b]+1}')
        a(f'  v_and_b32 v{CC[b]}, s53, v{REC[b]+1}')
        a(f'  v_and_b32 v{X[2]}, s54, v{X[2]}')
        a(f'  v_cndmask_b32 v{COL}, 0, v{REC[b]}, vcc')
        a(f'  v_cndmask_b32 v{ROW[b]}, v{VDUM}, v{X[2]}, vcc')
        a('  s_nop 0')
    def gather(b, n):
        ad = GAD[n & 1]
        a(f'  v_add_u32_dpp v{ad}, v{COL}, v{J2} row_newbcast:{n} row_mask:0xf bank_mask:0xf')
        a(f'  buffer_load_short_d16_hi v{G[b]+n}, v{ad}, s[4:7], 0 offen')
    def consume(b, n):
        p, la, d = PT[n & 1], LA[n & 1], D[n & 1]
        a(f'  v_mul_f32_dpp v{p}, v{CC[b]}, v{G[b]+n} row_newbcast:{n} row_mask:0xf bank_mask:0xf')
        a(f'  v_add_u32_dpp v{la}, v{ROW[b]}, v{J8} row_newbcast:{n} row_mask:0xf bank_mask:0xf')
        a(f'  v_cvt_f64_f32 {vr(d,2)}, v{p}')
        a(f'  ds_add_f64 v{la}, {vr(d,2)}')
    stageA(0)
    stageA(1)
    a('  s_waitcnt vmcnt(1)')
    decode(0)
    for n in range(16):
        gather(0, n)
    a.label('p2_loop')
    for b in (0, 1):
        stageA(b)
        a('  s_waitcnt vmcnt(17)')
        decode(1 - b)
        for n in range(16):
            gather(1 - b, n)
            a('  s_waitcnt vmcnt(17)')
            consume(b, n)
    a('  s_sub_u32 s62, s62, 1')
    a('  s_cmp_lg_u32 s62, 0')
    a('  s_cbranch_scc1 p2_loop')
    a('  s_waitcnt vmcnt(0)')
    a('  s_add_u32 s51, s51, 16')
    a('  s_branch p2_outer')
    a.label('p2_main_done')
    DI = 40
    MM = 46
    a(f'  s_lshl_b32 s25, s2, 4')
    for u in range(5):
        a(f'  s_add_u32 s26, s24, {16*u}')
        a('  s_lshl_b32 s26, s26, 12')
        a('  s_add_u32 s26, s26, s25')
        a(f'  s_mov_b32 s{64+u}, s26')
        a(f'  v_add_u32 v{X[0]}, s26, v{P}')
        a(f'  v_lshlrev_b32 v{X[1]}, 1, v{X[0]}')
        a(f'  buffer_load_ushort v{DI+u}, v{X[1]}, s[20:23], 0 offen')
        a(f'  v_lshlrev_b32 v{X[1]}, 5, v{X[0]}')
        a(f'  v_lshl_add_u32 v{88+u}, v{VROW4}, 3, v{X[1]}')
        a(f'  buffer_load_dwordx2 {vr(MM+2*u,2)}, v{88+u}, s[4:7], 0 offen')
    a('  s_waitcnt lgkmcnt(0)')
    a('  s_barrier')
    a('  s_mov_b32 s70, 0xc1200000')
    a('  s_mov_b32 s71, 0x3fb8aa3b')
    S = 56
    SF = 64
    Y = 96; GG = 100; HH = 104; Z = 108
    RB = 68
    for u in range(5):
        a(f'  s_cmp_ge_u32 s{64+u}, {E}')
        a(f'  s_cbranch_scc1 p2_epi_skip{u}')
        a(f'  s_add_u32 s26, s24, {16*u}')
        a('  s_lshl_b32 s26, s26, 11')
        a(f'  v_lshlrev_b32 v{X[0]}, 7, v{P}')
        a(f'  v_lshl_add_u32 v{X[0]}, v{VROW4}, 5, v{X[0]}')
        a(f'  v_add_u32 v{X[0]}, s26, v{X[0]}')
        a(f'  ds_read_b128 {vr(S,4)}, v{X[0]}')
        a(f'  ds_read_b128 {vr(S+4,4)}, v{X[0]} offset:16')
        a(f'  s_waitcnt vmcnt({2*(4-u)})' if True else '')
        a(f'  v_lshlrev_b32 v{X[1]}, 16, v{DI+u}')
        a(f'  v_sub_f32 v{X[2]}, v{X[1]}, v{CEN}')
        a(f'  v_sub_f32 v{X[3]}, v{X[1]}, v{CEN+1}')
        def rnd2():
            a(f'  v_cvt_pk_bf16_f32 v{X[4]}, v{X[2]}, v{X[3]}')
            a(f'  v_lshlrev_b32 v{X[2]}, 16, v{X[4]}')
            a(f'  v_and_b32 v{X[3]}, s53, v{X[4]}')
        rnd2()
        a(f'  v_mul_f32 v{X[2]}, v{X[2]}, v{X[2]}')
        a(f'  v_mul_f32 v{X[3]}, v{X[3]}, v{X[3]}')
        rnd2()
        a(f'  v_mul_f32 v{X[2]}, s70, v{X[2]}')
        a(f'  v_mul_f32 v{X[3]}, s70, v{X[3]}')
        rnd2()
        a(f'  v_mul_f32 v{X[2]}, s71, v{X[2]}')
        a(f'  v_mul_f32 v{X[3]}, s71, v{X[3]}')
        a(f'  v_exp_f32 v{X[2]}, v{X[2]}')
        a(f'  v_exp_f32 v{X[3]}, v{X[3]}')
        a('  s_nop 0')
        a(f'  v_cvt_pk_bf16_f32 v{X[4]}, v{X[2]}, v{X[3]}')
        a(f'  v_lshlrev_b32 v{RB}, 16, v{X[4]}')
        a(f'  v_and_b32 v{RB+1}, s53, v{X[4]}')
        a('  s_waitcnt lgkmcnt(0)')
        for q in range(4):
            a(f'  v_cvt_f32_f64 v{SF+q}, {vr(S+2*q,2)}')
        a('  s_nop 1')
        a(f'  v_mfma_f32_16x16x4_f32 {vr(GG,4)}, v{WS}, v{RB}, 0')
        a(f'  v_mfma_f32_16x16x4_f32 {vr(HH,4)}, v{WR}, v{RB}, 0')
        a(f'  v_mfma_f32_16x16x4_f32 {vr(Y,4)}, v{WD}, v{SF}, 0')
        a(f'  v_mfma_f32_16x16x4_f32 {vr(GG,4)}, v{WS+1}, v{RB+1}, {vr(GG,4)}')
        a(f'  v_mfma_f32_16x16x4_f32 {vr(HH,4)}, v{WR+1}, v{RB+1}, {vr(HH,4)}')
        for q in range(1, 4):
            a(f'  v_mfma_f32_16x16x4_f32 {vr(Y,4)}, v{WD+q}, v{SF+q}, {vr(Y,4)}')
        a('  s_nop 15')
        for q in range(4):
            a(f'  v_mul_f32 v{Y+q}, v{Y+q}, v{GG+q}')
        a('  s_nop 1')
        a(f'  v_mfma_f32_16x16x4_f32 {vr(Z,4)}, v{WU}, v{Y}, 0')
        for q in range(1, 4):
            a(f'  v_mfma_f32_16x16x4_f32 {vr(Z,4)}, v{WU+q}, v{Y+q}, {vr(Z,4)}')
        a(f'  v_cvt_pk_bf16_f32 v{X[0]}, v{HH}, v{HH+1}')
        a(f'  v_cvt_pk_bf16_f32 v{X[1]}, v{HH+2}, v{HH+3}')
        a(f'  v_lshlrev_b32 v{HH}, 16, v{X[0]}')
        a(f'  v_and_b32 v{HH+1}, s53, v{X[0]}')
        a(f'  v_lshlrev_b32 v{HH+2}, 16, v{X[1]}')
        a(f'  v_and_b32 v{HH+3}, s53, v{X[1]}')
        a('  s_nop 15')
        a(f'  v_cvt_pk_bf16_f32 v{X[0]}, v{Z}, v{Z+1}')
        a(f'  v_cvt_pk_bf16_f32 v{X[1]}, v{Z+2}, v{Z+3}')
        a(f'  v_lshlrev_b32 v{Z}, 16, v{X[0]}')
        a(f'  v_and_b32 v{Z+1}, s53, v{X[0]}')
        a(f'  v_lshlrev_b32 v{Z+2}, 16, v{X[1]}')
        a(f'  v_and_b32 v{Z+3}, s53, v{X[1]}')
        for q in range(4):
            a(f'  v_mul_f32 v{Z+q}, v{Z+q}, v{HH+q}')
        a(f'  v_cvt_pk_bf16_f32 v{X[0]}, v{Z}, v{Z+1}')
        a(f'  v_cvt_pk_bf16_f32 v{X[1]}, v{Z+2}, v{Z+3}')
        a(f'  v_lshlrev_b32 v{Z}, 16, v{X[0]}')
        a(f'  v_and_b32 v{Z+1}, s53, v{X[0]}')
        a(f'  v_lshlrev_b32 v{Z+2}, 16, v{X[1]}')
        a(f'  v_and_b32 v{Z+3}, s53, v{X[1]}')
        a(f'  v_lshlrev_b32 v{X[2]}, 16, v{MM+2*u}')
        a(f'  v_and_b32 v{X[3]}, s53, v{MM+2*u}')
        a(f'  v_lshlrev_b32 v{X[4]}, 16, v{MM+2*u+1}')
        a(f'  v_and_b32 v{X[5]}, s53, v{MM+2*u+1}')
        for q in range(4):
            a(f'  v_add_f32 v{Z+q}, v{Z+q}, v{X[2+q]}')
        a(f'  v_cvt_pk_bf16_f32 v{Z}, v{Z}, v{Z+1}')
        a(f'  v_cvt_pk_bf16_f32 v{Z+1}, v{Z+2}, v{Z+3}')
        a(f'  buffer_store_dwordx2 {vr(Z,2)}, v{88+u}, s[16:19], 0 offen')
        a.label(f'p2_epi_skip{u}')
    a.label('p2_done')
    a('  s_endpgm')

def descriptor(a, name, vgpr, sgpr):
    a(f'.amdhsa_kernel {name}')
    a(f'  .amdhsa_next_free_vgpr {vgpr}')
    a(f'  .amdhsa_next_free_sgpr {sgpr}')
    a(f'  .amdhsa_accum_offset {(vgpr + 3) // 4 * 4}')
    a('  .amdhsa_group_segment_fixed_size 0')
    a('  .amdhsa_kernarg_size 112')
    a('  .amdhsa_user_sgpr_count 2')
    a('  .amdhsa_user_sgpr_kernarg_segment_ptr 1')
    a('  .amdhsa_system_sgpr_workgroup_id_x 1')
    a('  .amdhsa_float_denorm_mode_32 3')
    a('.end_amdhsa_kernel')

HEADER = '''; Kernarg layout (112 bytes, ptrs only, base s[0:1]):
; @launch kernel=p1_kernel grid=(256,1,1) block=(1024,1,1) lds=163840
; @launch kernel=p2_kernel grid=(256,1,1) block=(1024,1,1) lds=163840
.amdgcn_target "amdgcn-amd-amdhsa--gfx950"
.text
.globl p1_kernel
.globl p2_kernel
'''

def build(opt):
    a = Asm()
    a(HEADER.rstrip('\n'))
    gen_p1(a, opt)
    gen_p2(a, opt)
    a('.section .rodata,"a"')
    a('.p2align 6')
    descriptor(a, 'p1_kernel', 128, 80)
    a('.p2align 6')
    descriptor(a, 'p2_kernel', 112, 80)
    return a.text()

if __name__ == '__main__':
    out = sys.argv[1] if len(sys.argv) > 1 else 'standalone__molecular_angular_gemnet__graph.s'
    opt = {}
    for kv in sys.argv[2:]:
        k, v = kv.split('=')
        opt[k] = int(v) if v.lstrip('-').isdigit() else v
    open(out, 'w').write(build(opt))
    print('wrote', out)
```

```python
import struct, sys, math

def f32bits(x):
    return struct.unpack('<I', struct.pack('<f', x))[0]
def bits2f(b):
    return struct.unpack('<f', struct.pack('<I', b))[0]

E = 320000
T = 10240000
NT = 256
TILE = T // NT
TILE_LINES = 2752
TILE_BYTES = TILE_LINES * 128
REC_OFF = 0x40000
REC_BYTES = NT * TILE_BYTES
KSH = 14
NK = (E + (1 << KSH) - 1) >> KSH
HIST = 131072
TMP = HIST + NK * 1024
DUMMY_ROW = 1264

class Asm:
    def __init__(self):
        self.lines = []
    def __call__(self, s=''):
        for l in s.split('\n'):
            self.lines.append(l)
    def label(self, s):
        self.lines.append(s + ':')
    def text(self):
        return '\n'.join(self.lines) + '\n'

def vr(a, n=1):
    return f'v{a}' if n == 1 else f'v[{a}:{a+n-1}]'
def sr(a, n=1):
    return f's{a}' if n == 1 else f's[{a}:{a+n-1}]'

def srd(a, d, ptr, size):
    a(f'  s_mov_b32 s{d}, s{ptr}')
    a(f'  s_and_b32 s{d+1}, s{ptr+1}, 0xffff')
    a(f'  s_mov_b32 s{d+2}, {size}')
    a(f'  s_mov_b32 s{d+3}, 0x20000')

class Stamps:
    def __init__(self, a, on, name, slot):
        self.a = a; self.on = on; self.n = 0; self.name = name; self.slot = slot
    def __call__(self):
        if not self.on: return
        a = self.a
        a('  s_memtime s[80:81]')
        a('  s_memrealtime s[82:83]')
        a('  s_waitcnt lgkmcnt(0)')
        a(f'  s_mov_b32 s{84+2*self.n}, s80')
        a(f'  s_mov_b32 s{85+2*self.n}, s82')
        self.n += 1
        assert self.n <= 9
    def flush(self, wavereg):
        if not self.on: return
        a = self.a
        a(f'  s_cmp_lg_u32 {wavereg}, 0')
        a(f'  s_cbranch_scc1 {self.name}_nostamp')
        a('  s_load_dwordx2 s[80:81], s[0:1], 104')
        a('  s_waitcnt lgkmcnt(0)')
        a(f'  s_add_u32 s80, s80, {200*1048576 + self.slot*65536}')
        a('  s_addc_u32 s81, s81, 0')
        a('  s_lshl_b32 s82, s2, 7')
        a('  v_mov_b32 v1, s82')
        for i in range(2*self.n):
            a(f'  v_mov_b32 v2, s{84+i}')
            a(f'  global_store_dword v1, v2, s[80:81] offset:{4*i}')
        a.label(f'{self.name}_nostamp')

def gen_p1(a, opt):
    st = Stamps(a, bool(opt.get('stamp')), 'p1', 0)
    NTF = ' nt' if opt.get('nt_in', True) else ''
    STF = ' nt' if opt.get('nt_st', False) else ''
    W0, W1, AUX = 8, 48, 88
    Tm = 108
    inv2pi = 1.0 / (2.0 * math.pi)
    chi_bits = f32bits(inv2pi) & 0xffffff00
    chi = bits2f(chi_bits)
    clo_bits = f32bits(inv2pi - chi)
    a('.p2align 8')
    a('.type p1_kernel,@function')
    a.label('p1_kernel')
    a('  s_cmp_ge_u32 s2, 256')
    a('  s_cbranch_scc1 p1_done')
    a('  s_load_dwordx4 s[32:35], s[0:1], 8')
    a('  s_load_dwordx2 s[36:37], s[0:1], 32')
    a('  s_load_dwordx2 s[38:39], s[0:1], 48')
    a('  s_load_dwordx2 s[28:29], s[0:1], 104')
    a('  v_lshlrev_b32 v1, 4, v0')
    a(f'  v_add_u32 v2, {HIST}, v1')
    for r in range(4, 8):
        a(f'  v_mov_b32 v{r}, 0')
    a('  ds_write_b128 v2, v[4:7]')
    a('  ds_write_b128 v2, v[4:7] offset:16384')
    a('  s_mul_i32 s40, s2, 160000')
    a('  s_mul_i32 s41, s2, 80000')
    a('  v_add_u32 v1, s40, v1')
    a('  v_lshlrev_b32 v3, 3, v0')
    a('  v_add_u32 v3, s41, v3')
    a('  v_readfirstlane_b32 s24, v0')
    a('  v_cmp_gt_u32 vcc, 1000, v0')
    a('  s_lshr_b32 s24, s24, 6')
    a('  s_mov_b64 s[44:45], vcc')
    for i in range(1, 10):
        a(f'  s_mov_b32 s{45+i}, {i*16000}')
        a(f'  s_mov_b32 s{55+i}, {i*8000}')
    a('  s_waitcnt lgkmcnt(0)')
    a('  s_load_dword s26, s[38:39], 0')
    srd(a, 4, 32, T * 4)
    srd(a, 8, 34, T * 4)
    srd(a, 12, 36, T * 2)
    st()
    a('  s_mov_b64 exec, s[44:45]')
    for i in range(10):
        so = '0' if i == 0 else f's{45+i}'
        sa = '0' if i == 0 else f's{55+i}'
        a(f'  buffer_load_dwordx4 {vr(W0+4*i,4)}, v1, s[4:7], {so} offen{NTF}')
        a(f'  buffer_load_dwordx4 {vr(W1+4*i,4)}, v1, s[8:11], {so} offen{NTF}')
        a(f'  buffer_load_dwordx2 {vr(AUX+2*i,2)}, v3, s[12:15], {sa} offen{NTF}')
    a('  s_mov_b32 s27, 0xffff0000')
    a(f'  s_mov_b32 s30, {chi_bits:#x}')
    a(f'  s_mov_b32 s31, {clo_bits:#x}')
    a(f'  s_mov_b32 s42, {HIST}')
    a('  s_mov_b32 s43, 0x3fc')
    a('  v_mov_b32 v2, 1')
    a('  s_waitcnt lgkmcnt(0)')
    a('  s_and_b32 s26, s26, 0xffff')
    a('  s_lshl_b32 s26, s26, 16')
    a('  s_barrier')
    t = [Tm + i for i in range(20)]
    for i in range(10):
        A = [W0 + 4*i + e for e in range(4)]
        O = [W1 + 4*i + e for e in range(4)]
        G = [AUX + 2*i, AUX + 2*i + 1]
        a(f'  s_waitcnt vmcnt({27 - 3*i})')
        a(f'  v_lshlrev_b32 v{t[0]}, 16, v{G[0]}')
        a(f'  v_and_b32 v{t[1]}, s27, v{G[0]}')
        a(f'  v_lshlrev_b32 v{t[2]}, 16, v{G[1]}')
        a(f'  v_and_b32 v{t[3]}, s27, v{G[1]}')
        for e in range(4):
            a(f'  v_mul_f32 v{t[e]}, s26, v{t[e]}')
        a(f'  v_cvt_pk_bf16_f32 v{t[4]}, v{t[0]}, v{t[1]}')
        a(f'  v_cvt_pk_bf16_f32 v{t[5]}, v{t[2]}, v{t[3]}')
        for e in range(4):
            a(f'  v_lshrrev_b32 v{t[8+e]}, 8, v{O[e]}')
        a(f'  v_lshlrev_b32 v{t[0]}, 16, v{t[4]}')
        a(f'  v_and_b32 v{t[1]}, s27, v{t[4]}')
        a(f'  v_lshlrev_b32 v{t[2]}, 16, v{t[5]}')
        a(f'  v_and_b32 v{t[3]}, s27, v{t[5]}')
        for e in range(4):
            a(f'  v_bfi_b32 v{t[8+e]}, 15, v{O[e]}, v{t[8+e]}')
        for e in range(4):
            a(f'  v_mul_f32 v{t[4+e]}, s30, v{t[e]}')
        for e in range(4):
            a(f'  v_fract_f32 v{t[4+e]}, v{t[4+e]}')
        for e in range(4):
            a(f'  v_fma_f32 v{t[4+e]}, v{t[e]}, s31, v{t[4+e]}')
        for e in range(4):
            a(f'  v_cos_f32 v{t[4+e]}, v{t[4+e]}')
        for e in range(4):
            a(f'  v_lshrrev_b32 v{t[12+e]}, 2, v{O[e]}')
        for e in range(4):
            a(f'  v_lshrrev_b32 v{t[e]}, {KSH}, v{A[e]}')
        for e in range(4):
            a(f'  v_and_b32 v{t[12+e]}, s43, v{t[12+e]}')
        for e in range(4):
            a(f'  v_lshl_or_b32 v{t[12+e]}, v{t[e]}, 10, v{t[12+e]}')
        a(f'  v_cvt_pk_bf16_f32 v{t[16]}, v{t[4]}, v{t[5]}')
        a(f'  v_cvt_pk_bf16_f32 v{t[17]}, v{t[6]}, v{t[7]}')
        for e in range(4):
            a(f'  v_add_u32 v{t[e]}, s42, v{t[12+e]}')
        for e in range(4):
            a(f'  ds_add_u32 v{t[e]}, v2')
        for e in range(4):
            a(f'  v_lshlrev_b32 v{A[e]}, 5, v{A[e]}')
        a(f'  v_lshl_or_b32 v{O[0]}, v{t[16]}, 16, v{t[8]}')
        a(f'  v_and_or_b32 v{O[1]}, v{t[16]}, s27, v{t[9]}')
        a(f'  v_lshl_or_b32 v{O[2]}, v{t[17]}, 16, v{t[10]}')
        a(f'  v_and_or_b32 v{O[3]}, v{t[17]}, s27, v{t[11]}')
        a(f'  v_lshl_or_b32 v{G[0]}, v{t[13]}, 16, v{t[12]}')
        a(f'  v_lshl_or_b32 v{G[1]}, v{t[15]}, 16, v{t[14]}')
    a('  s_mov_b64 exec, -1')
    a('  s_waitcnt lgkmcnt(0)')
    a('  s_barrier')
    st()
    a('  v_lshlrev_b32 v4, 2, v0')
    a(f'  v_add_u32 v4, {HIST}, v4')
    a('  s_cmp_ge_u32 s24, 4')
    a('  s_cbranch_scc1 p1_skip1')
    for k in range(NK):
        a(f'  ds_read_b32 v{t[k]}, v4 offset:{k*1024}')
    a('  v_mov_b32 v5, 0')
    a('  s_waitcnt lgkmcnt(0)')
    ra, rb = 5, 6
    for k in range(NK):
        a(f'  v_add_u32 v{rb}, v{ra}, v{t[k]}')
        a(f'  v_mov_b32 v{t[k]}, v{ra}')
        ra, rb = rb, ra
    assert ra == 5
    a('  v_add_u32 v6, 15, v5')
    a('  v_and_b32 v6, -16, v6')
    a('  v_mov_b32 v7, v6')
    for sh in (1, 2, 4, 8):
        a('  s_nop 1')
        a(f'  v_add_u32_dpp v7, v7, v7 row_shr:{sh} row_mask:0xf bank_mask:0xf bound_ctrl:0')
    a('  s_nop 1')
    a('  v_add_u32_dpp v7, v7, v7 row_bcast:15 row_mask:0xa bank_mask:0xf')
    a('  s_nop 1')
    a('  v_add_u32_dpp v7, v7, v7 row_bcast:31 row_mask:0xc bank_mask:0xf')
    a('  s_lshl_b32 s40, s24, 2')
    a(f'  s_add_u32 s40, s40, {TMP}')
    a('  v_mov_b32 v3, s40')
    a('  s_mov_b32 exec_lo, 0')
    a('  s_mov_b32 exec_hi, 0x80000000')
    a('  ds_write_b32 v3, v7')
    a('  s_mov_b64 exec, -1')
    a.label('p1_skip1')
    a('  s_waitcnt lgkmcnt(0)')
    a('  s_barrier')
    a(f'  v_mov_b32 v1, {TMP}')
    a('  ds_read2_b32 v[2:3], v1 offset0:0 offset1:1')
    a('  s_waitcnt lgkmcnt(0)')
    a('  v_readfirstlane_b32 s66, v2')
    a('  v_readfirstlane_b32 s67, v3')
    a('  ds_read2_b32 v[2:3], v1 offset0:2 offset1:3')
    a('  s_waitcnt lgkmcnt(0)')
    a('  v_readfirstlane_b32 s68, v2')
    a('  v_readfirstlane_b32 s69, v3')
    a('  s_nop 3')
    a('  s_add_u32 s70, s66, s67')
    a('  s_add_u32 s71, s70, s68')
    a('  s_add_u32 s72, s71, s69')
    a('  s_cmp_ge_u32 s24, 4')
    a('  s_cbranch_scc1 p1_skip2')
    a('  s_mov_b32 s73, 0')
    a('  s_cmp_eq_u32 s24, 1')
    a('  s_cselect_b32 s73, s66, s73')
    a('  s_cmp_eq_u32 s24, 2')
    a('  s_cselect_b32 s73, s70, s73')
    a('  s_cmp_eq_u32 s24, 3')
    a('  s_cselect_b32 s73, s71, s73')
    a('  v_sub_u32 v7, v7, v6')
    a('  v_add_u32 v7, s73, v7')
    for k in range(NK):
        a(f'  v_add_u32 v{t[k]}, v7, v{t[k]}')
        a(f'  ds_write_b32 v4, v{t[k]} offset:{k*1024}')
    a('  v_lshl_or_b32 v5, v7, 12, v5')
    srd(a, 20, 28, 262144)
    a('  s_lshl_b32 s40, s2, 2')
    a('  v_lshlrev_b32 v6, 10, v0')
    a('  buffer_store_dword v5, v6, s[20:23], s40 offen')
    a.label('p1_skip2')
    a('  s_waitcnt lgkmcnt(0)')
    a('  s_barrier')
    st()
    a('  v_mov_b32 v2, 1')
    a(f'  v_mov_b32 v1, {HIST}')
    a('  s_mov_b64 exec, s[44:45]')
    def rank_issue(b):
        base = (b & 1) * 8
        for x in range(8):
            rec = b * 8 + x
            j, h = rec >> 1, rec & 1
            ad = 4 + (x & 3)
            a(f'  v_add_u32_sdwa v{ad}, v1, v{AUX+j} dst_sel:DWORD dst_unused:UNUSED_PAD src0_sel:DWORD src1_sel:WORD_{h}')
            a(f'  ds_add_rtn_u32 v{t[base+x]}, v{ad}, v2')
    def rank_pack(b):
        base = (b & 1) * 8
        for x in range(0, 8, 2):
            j = (b * 8 + x) >> 1
            a(f'  v_lshl_or_b32 v{AUX+j}, v{t[base+x+1]}, 16, v{t[base+x]}')
    rank_issue(0)
    for b in range(5):
        if b + 1 < 5:
            rank_issue(b + 1)
            a('  s_waitcnt lgkmcnt(8)')
        else:
            a('  s_waitcnt lgkmcnt(0)')
        rank_pack(b)
    st()
    a('  s_mul_i32 s40, s2, %d' % TILE_BYTES)
    a('  s_add_u32 s28, s28, s40')
    a('  s_addc_u32 s29, s29, 0')
    a(f'  s_add_u32 s28, s28, {REC_OFF}')
    a('  s_addc_u32 s29, s29, 0')
    for i in range(1, 8):
        a(f'  s_mov_b32 s{45+i}, {i*16384}')
    a('  s_mov_b32 s43, 0x20000')
    for s in range(3):
        a('  s_mov_b64 exec, s[44:45]')
        if s > 0:
            a(f'  s_mov_b32 s42, {s*131072}')
        for x in range(40):
            j, h = x >> 1, x & 1
            ad = 4 + (x & 3)
            a(f'  v_lshlrev_b32_sdwa v{ad}, 3, v{AUX+j} dst_sel:DWORD dst_unused:UNUSED_PAD src0_sel:DWORD src1_sel:WORD_{h}')
            if s > 0:
                a(f'  v_subrev_u32 v{ad}, s42, v{ad}')
            a(f'  v_cmpx_gt_u32 vcc, s43, v{ad}')
            a(f'  ds_write2_b32 v{ad}, v{W0+x}, v{W1+x} offset0:0 offset1:1')
            a('  s_mov_b64 exec, s[44:45]')
        a('  s_mov_b64 exec, -1')
        a(f'  s_add_u32 s16, s28, {s*131072}')
        a('  s_addc_u32 s17, s29, 0')
        a('  s_and_b32 s17, s17, 0xffff')
        if s < 2:
            a('  s_mov_b32 s18, 131072')
        else:
            a('  s_sub_u32 s18, s72, 32768')
            a('  s_lshl_b32 s18, s18, 3')
        a('  s_mov_b32 s19, 0x20000')
        a('  v_lshlrev_b32 v1, 4, v0')
        a('  v_add_u32 v3, 0x10000, v1')
        a('  s_waitcnt lgkmcnt(0)')
        a('  s_barrier')
        nb = 2
        for bt in range(nb):
            nr = 4 if (s < 2 or bt == 0) else 2
            for u in range(nr):
                a(f'  ds_read_b128 {vr(t[4*u],4)}, v{1 if bt == 0 else 3} offset:{u*16384}')
            for u in range(nr):
                a(f'  s_waitcnt lgkmcnt({nr-1-u})')
                rnd = bt * 4 + u
                so = '0' if rnd == 0 else f's{45+rnd}'
                a(f'  buffer_store_dwordx4 {vr(t[4*u],4)}, v1, s[16:19], {so} offen{STF}')
            if bt == 0:
                a('  s_nop 1')
        if s < 2:
            a('  s_barrier')
        st()
    if st.on:
        a('  s_waitcnt vmcnt(0)')
        st()
    st.flush('s24')
    a.label('p1_done')
    a('  s_endpgm')

def gen_p2(a, opt):
    st = Stamps(a, bool(opt.get('stamp')), 'p2', 1)
    b_lag = opt.get('lag', 3)
    R = b_lag + 1
    US = opt.get('ushort', 0)
    NG = 16 if US else 8
    RNT = ' nt' if opt.get('nt_rec', False) else ''
    J4, J8, P = 1, 2, 3
    VN, VL, VB = 5, 6, 7
    Eq = [8, 9, 10, 11]
    SELA, SELB, VDUM, COL = 12, 13, 14, 15
    D = [16, 18]; PT = [20, 21]; LA = [22, 23]; GAD = [24, 25]; YR = [26, 27]; AB = [28, 29]
    X = [30, 31, 32, 33, 34, 35]
    VROW4, VLANE = 36, 37
    REC = [38 + 2*i for i in range(R)]
    nx = 38 + 2*R
    VV = [nx + i for i in range(R)]; nx += R
    CC = [nx + i for i in range(R)]; nx += R
    ROW = [nx + i for i in range(R)]; nx += R
    G = [nx + NG*i for i in range(R)]; nx += NG*R
    assert nx <= 128, nx
    maxv = nx
    a('.p2align 8')
    a('.type p2_kernel,@function')
    a.label('p2_kernel')
    a('  s_cmp_ge_u32 s2, 256')
    a('  s_cbranch_scc1 p2_done')
    a('  s_load_dwordx2 s[32:33], s[0:1], 0')
    a('  s_load_dwordx2 s[34:35], s[0:1], 24')
    a('  s_load_dwordx2 s[36:37], s[0:1], 40')
    a('  s_load_dwordx4 s[40:43], s[0:1], 56')
    a('  s_load_dwordx4 s[44:47], s[0:1], 72')
    a('  s_load_dwordx2 s[48:49], s[0:1], 88')
    a('  s_load_dwordx2 s[28:29], s[0:1], 104')
    a('  v_readfirstlane_b32 s24, v0')
    a(f'  v_and_b32 v{VLANE}, 63, v0')
    a(f'  v_and_b32 v{P}, 15, v0')
    a('  s_lshr_b32 s24, s24, 6')
    a(f'  v_lshlrev_b32 v{X[0]}, 2, v{P}')
    a('  s_lshl_b32 s25, s2, 8')
    a('  s_lshl_b32 s26, s24, 4')
    a('  s_add_u32 s25, s25, s26')
    a('  s_lshl_b32 s25, s25, 2')
    a('  s_waitcnt lgkmcnt(0)')
    srd(a, 12, 28, 262144)
    a(f'  buffer_load_dword v{VN}, v{X[0]}, s[12:15], s25 offen')
    st()
    srd(a, 4, 32, E * 32)
    a(f'  s_add_u32 s8, s28, {REC_OFF}')
    a('  s_addc_u32 s9, s29, 0')
    a('  s_and_b32 s9, s9, 0xffff')
    a(f'  s_mov_b32 s10, {REC_BYTES}')
    a('  s_mov_b32 s11, 0x20000')
    srd(a, 16, 48, E * 32)
    srd(a, 20, 34, E * 2)
    a('  v_lshlrev_b32 v4, 4, v0')
    for r in range(16, 20):
        a(f'  v_mov_b32 v{r}, 0')
    a(f'  v_add_u32 v{X[1]}, 0x10000, v4')
    a(f'  v_add_u32 v{X[2]}, 0x20000, v4')
    for i in range(4):
        a(f'  ds_write_b128 v4, v[16:19] offset:{i*16384}')
    for i in range(4):
        a(f'  ds_write_b128 v{X[1]}, v[16:19] offset:{i*16384}')
    for i in range(2):
        a(f'  ds_write_b128 v{X[2]}, v[16:19] offset:{i*16384}')
    if US:
        a(f'  v_lshlrev_b32 v{J4}, 1, v{P}')
        for r in range(G[0], G[0] + NG*R):
            a(f'  v_mov_b32 v{r}, 0')
    else:
        a(f'  v_and_b32 v{J4}, 7, v0')
        a(f'  v_lshlrev_b32 v{J4}, 2, v{J4}')
    a(f'  v_lshlrev_b32 v{J8}, 3, v{P}')
    a(f'  v_lshrrev_b32 v{VROW4}, 4, v{VLANE}')
    a(f'  v_mov_b32 v{VDUM}, {DUMMY_ROW*128}')
    a(f'  v_cmp_gt_u32 vcc, 8, v{P}')
    a(f'  v_mov_b32 v{X[3]}, 0x03020c0c')
    a(f'  v_mov_b32 v{X[4]}, 0x05040c0c')
    a(f'  v_cndmask_b32 v{SELA}, v{X[3]}, v{X[4]}, vcc')
    a(f'  v_mov_b32 v{X[3]}, 0x07060c0c')
    a(f'  v_mov_b32 v{X[4]}, 0x01000c0c')
    a(f'  v_cndmask_b32 v{SELB}, v{X[3]}, v{X[4]}, vcc')
    a('  s_waitcnt vmcnt(0)')
    a(f'  v_lshrrev_b32 v{VB}, 16, v{VN}')
    a(f'  v_and_b32 v{VN}, 0xffff, v{VN}')
    a(f'  v_add_u32 v{VL}, 15, v{VN}')
    a(f'  v_lshrrev_b32 v{VL}, 4, v{VL}')
    a('  s_lshl_b32 s26, s24, 4')
    a(f'  v_add_u32 v{X[0]}, s26, v{P}')
    a(f'  s_mov_b32 s27, {TILE_LINES}')
    a(f'  v_mul_lo_u32 v{X[0]}, v{X[0]}, s27')
    a(f'  v_add_u32 v{VB}, v{VB}, v{X[0]}')
    a(f'  v_mov_b32 v{X[0]}, v{VL}')
    for sh in (1, 2, 4, 8):
        a('  s_nop 1')
        a(f'  v_max_u32_dpp v{X[0]}, v{X[0]}, v{X[0]} row_ror:{sh} row_mask:0xf bank_mask:0xf')
    a('  s_nop 1')
    a(f'  v_readfirstlane_b32 s50, v{X[0]}')
    a('  s_mov_b32 s51, 0')
    a('  s_mov_b32 s52, 0xffffff80')
    a('  s_mov_b32 s53, 0xffff0000')
    a('  s_mov_b32 s54, 0x3ff80')
    a('  s_mov_b32 s55, 1')
    se = opt.get('sync', 0)
    if se:
        a(f'  s_mov_b32 s69, {opt.get("nsync", 38 // se)}')
    a.label('p2_outer')
    a('  s_cmp_ge_u32 s51, s50')
    a('  s_cbranch_scc1 p2_main_done')
    for k in range(4):
        a(f'  s_add_u32 s60, s51, {4*k}')
        a(f'  v_add_u32 v{X[0]}, s60, v{VROW4}')
        a(f'  v_cmp_gt_u32 vcc, v{VL}, v{X[0]}')
        a(f'  v_lshlrev_b32 v{X[1]}, 4, v{X[0]}')
        a(f'  v_sub_u32 v{X[1]}, v{VN}, v{X[1]}')
        a(f'  v_min_u32 v{X[1]}, 16, v{X[1]}')
        a(f'  v_add_u32 v{X[2]}, v{VB}, v{X[0]}')
        a(f'  v_lshl_or_b32 v{X[2]}, v{X[2]}, 7, v{X[1]}')
        a(f'  s_bcnt1_i32_b64 s61, vcc')
        a(f'  v_mbcnt_lo_u32_b32 v{X[3]}, vcc_lo, 0')
        a(f'  v_mbcnt_hi_u32_b32 v{X[3]}, vcc_hi, v{X[3]}')
        a(f'  v_sub_u32 v{X[4]}, v{VLANE}, v{X[3]}')
        a(f'  v_add_u32 v{X[4]}, s61, v{X[4]}')
        a(f'  v_cndmask_b32 v{X[4]}, v{X[4]}, v{X[3]}, vcc')
        a(f'  v_cndmask_b32 v{X[2]}, 0, v{X[2]}, vcc')
        a(f'  v_and_b32 v{X[5]}, 3, v{X[4]}')
        a(f'  v_lshlrev_b32 v{X[5]}, 6, v{X[5]}')
        a(f'  v_and_or_b32 v{X[5]}, v{X[4]}, -4, v{X[5]}')
        a(f'  ds_permute_b32 v{Eq[k]}, v{X[5]}, v{X[2]}')
        a(f'  s_add_u32 s{56+k}, s61, 3')
        a(f'  s_lshr_b32 s{56+k}, s{56+k}, 2')
    a('  s_add_u32 s62, s56, s57')
    a('  s_add_u32 s62, s62, s58')
    a('  s_add_u32 s62, s62, s59')
    a('  s_mov_b32 s63, 3')
    a('  s_waitcnt lgkmcnt(0)')
    uid = [0]
    def stageA(b):
        u = uid[0]; uid[0] += 1
        a.label(f'p2_chk{u}')
        a('  s_cmp_lg_u32 s56, 0')
        a(f'  s_cbranch_scc1 p2_go{u}')
        a('  s_cmp_eq_u32 s63, 0')
        a(f'  s_cbranch_scc1 p2_exh{u}')
        a(f'  v_mov_b32 v{Eq[0]}, v{Eq[1]}')
        a(f'  v_mov_b32 v{Eq[1]}, v{Eq[2]}')
        a(f'  v_mov_b32 v{Eq[2]}, v{Eq[3]}')
        a('  s_mov_b32 s56, s57')
        a('  s_mov_b32 s57, s58')
        a('  s_mov_b32 s58, s59')
        a('  s_sub_u32 s63, s63, 1')
        a(f'  s_branch p2_chk{u}')
        a.label(f'p2_exh{u}')
        a(f'  v_mov_b32 v{Eq[0]}, 0')
        a('  s_mov_b32 s56, 1')
        a('  s_nop 0')
        a.label(f'p2_go{u}')
        a('  s_sub_u32 s56, s56, 1')
        a(f'  v_mov_b32_dpp v{X[0]}, v{Eq[0]} row_newbcast:0 row_mask:0xf bank_mask:0xf')
        a(f'  v_mov_b32_dpp v{Eq[0]}, v{Eq[0]} row_shl:1 row_mask:0xf bank_mask:0xf bound_ctrl:0')
        a(f'  v_and_or_b32 v{X[1]}, v{X[0]}, s52, v{J8}')
        a(f'  v_and_b32 v{VV[b]}, 31, v{X[0]}')
        a(f'  buffer_load_dwordx2 {vr(REC[b],2)}, v{X[1]}, s[8:11], 0 offen{RNT}')
    def decode(b):
        a(f'  v_cmp_gt_u32 vcc, v{VV[b]}, v{P}')
        a(f'  v_lshlrev_b32 v{X[2]}, 7, v{REC[b]+1}')
        a(f'  v_and_b32 v{CC[b]}, s53, v{REC[b]+1}')
        a(f'  v_and_b32 v{X[2]}, s54, v{X[2]}')
        a(f'  v_cndmask_b32 v{COL}, 0, v{REC[b]}, vcc')
        if opt.get('colmask'):
            a(f'  v_and_b32 v{COL}, {opt["colmask"]}, v{COL}')
        a(f'  v_cndmask_b32 v{ROW[b]}, v{VDUM}, v{X[2]}, vcc')
        a('  s_nop 0')
    def gather(b, g):
        ad = GAD[g & 1]
        if US:
            a(f'  v_add_u32_dpp v{ad}, v{COL}, v{J4} row_newbcast:{g} row_mask:0xf bank_mask:0xf')
            if opt.get('no_gather'):
                a(f'  buffer_load_short_d16_hi v{G[b]+g}, v{J4}, s[4:7], 0 offen')
            else:
                a(f'  buffer_load_short_d16_hi v{G[b]+g}, v{ad}, s[4:7], 0 offen')
            return
        a(f'  v_add_u32_dpp v{ad}, v{COL}, v{J4} row_newbcast:{2*g} row_mask:0xf bank_mask:0x3')
        a(f'  v_add_u32_dpp v{ad}, v{COL}, v{J4} row_newbcast:{2*g+1} row_mask:0xf bank_mask:0xc')
        if opt.get('no_gather'):
            a(f'  buffer_load_dword v{G[b]+g}, v{J4}, s[4:7], 0 offen')
        else:
            a(f'  buffer_load_dword v{G[b]+g}, v{ad}, s[4:7], 0 offen')
    def consume(b, g):
        x = G[b] + g; y = YR[g & 1]
        if US:
            p, la, d = PT[g & 1], LA[g & 1], D[g & 1]
            a(f'  v_mul_f32_dpp v{p}, v{CC[b]}, v{x} row_newbcast:{g} row_mask:0xf bank_mask:0xf')
            a(f'  v_add_u32_dpp v{la}, v{ROW[b]}, v{J8} row_newbcast:{g} row_mask:0xf bank_mask:0xf')
            a(f'  v_cvt_f64_f32 {vr(d,2)}, v{p}')
            if not opt.get('no_ds'):
                a(f'  ds_add_f64 v{la}, {vr(d,2)}')
            return
        a(f'  v_mov_b32_dpp v{y}, v{x} row_ror:8 row_mask:0xf bank_mask:0xf')
        a(f'  v_add_u32_dpp v{LA[0]}, v{ROW[b]}, v{J8} row_newbcast:{2*g} row_mask:0xf bank_mask:0xf')
        a(f'  v_add_u32_dpp v{LA[1]}, v{ROW[b]}, v{J8} row_newbcast:{2*g+1} row_mask:0xf bank_mask:0xf')
        a(f'  v_perm_b32 v{AB[0]}, v{x}, v{y}, v{SELA}')
        a(f'  v_perm_b32 v{AB[1]}, v{x}, v{y}, v{SELB}')
        a(f'  v_mul_f32_dpp v{PT[0]}, v{CC[b]}, v{AB[0]} row_newbcast:{2*g} row_mask:0xf bank_mask:0xf')
        a(f'  v_mul_f32_dpp v{PT[1]}, v{CC[b]}, v{AB[1]} row_newbcast:{2*g+1} row_mask:0xf bank_mask:0xf')
        a(f'  v_cvt_f64_f32 {vr(D[0],2)}, v{PT[0]}')
        a(f'  v_cvt_f64_f32 {vr(D[1],2)}, v{PT[1]}')
        if not opt.get('no_ds'):
            a(f'  ds_add_f64 v{LA[0]}, {vr(D[0],2)}')
            a(f'  ds_add_f64 v{LA[1]}, {vr(D[1],2)}')
    for t in range(-2*b_lag, -b_lag):
        stageA((t + 2*b_lag) % R)
    for t in range(-b_lag, 0):
        stageA((t + 2*b_lag) % R)
        a(f'  s_waitcnt vmcnt({b_lag + NG*(t + b_lag)})')
        decode((t + b_lag) % R)
        for g in range(NG):
            gather((t + b_lag) % R, g)
    a('  s_cmp_eq_u32 s55, 0')
    a('  s_cbranch_scc1 p2_loop')
    a('  s_mov_b32 s55, 0')
    a('  s_barrier')
    st()
    a.label('p2_loop')
    for t in range(R):
        stageA((t + 2*b_lag) % R)
        a(f'  s_waitcnt vmcnt({(NG+1)*b_lag})')
        decode((t + b_lag) % R)
        for g in range(NG):
            gather((t + b_lag) % R, g)
            a(f'  s_waitcnt vmcnt({(NG+1)*b_lag})')
            consume(t, g)
        if se and (t % se) == se - 1:
            a('  s_cmp_eq_u32 s69, 0')
            a(f'  s_cbranch_scc1 p2_nosync{t}')
            a('  s_barrier')
            a('  s_sub_u32 s69, s69, 1')
            a.label(f'p2_nosync{t}')
        a('  s_sub_u32 s62, s62, 1')
        a('  s_cmp_eq_u32 s62, 0')
        if t < R - 1:
            a('  s_cbranch_scc1 p2_loop_exit')
        else:
            a('  s_cbranch_scc0 p2_loop')
    a.label('p2_loop_exit')
    a('  s_waitcnt vmcnt(0)')
    a('  s_add_u32 s51, s51, 16')
    a('  s_branch p2_outer')
    a.label('p2_main_done')
    a('  s_cmp_eq_u32 s55, 0')
    a('  s_cbranch_scc1 p2_epi')
    a('  s_waitcnt lgkmcnt(0)')
    a('  s_barrier')
    a.label('p2_epi')
    if se:
        a.label('p2_owed')
        a('  s_cmp_eq_u32 s69, 0')
        a('  s_cbranch_scc1 p2_owed_done')
        a('  s_barrier')
        a('  s_sub_u32 s69, s69, 1')
        a('  s_branch p2_owed')
        a.label('p2_owed_done')
    st()
    WD, WU, WS, WR, CEN = 38, 42, 46, 48, 50
    DI = 52
    MM = 58
    OFF = 68
    J2 = 73
    S = 74
    SF = 82
    RB = 86
    Y = 88; GG = 92; HH = 96; Z = 100
    maxv = max(maxv, 104)
    a(f'  v_lshlrev_b32 v{J2}, 1, v{P}')
    a(f'  v_lshlrev_b32 v{X[1]}, 7, v{VROW4}')
    a(f'  v_add_u32 v{X[1]}, v{X[1]}, v{J2}')
    for q in range(4):
        a(f'  global_load_ushort v{WD+q}, v{X[1]}, s[44:45] offset:{q*32}')
    for q in range(4):
        a(f'  global_load_ushort v{WU+q}, v{X[1]}, s[46:47] offset:{q*32}')
    a(f'  v_lshlrev_b32 v{X[2]}, 5, v{VROW4}')
    a(f'  v_add_u32 v{X[2]}, v{X[2]}, v{J2}')
    for q in range(2):
        a(f'  global_load_ushort v{WS+q}, v{X[2]}, s[42:43] offset:{q*128}')
    for q in range(2):
        a(f'  global_load_ushort v{WR+q}, v{X[2]}, s[40:41] offset:{q*128}')
    a(f'  v_lshlrev_b32 v{X[3]}, 1, v{VROW4}')
    for q in range(2):
        a(f'  global_load_ushort v{CEN+q}, v{X[3]}, s[36:37] offset:{q*8}')
    a(f'  s_lshl_b32 s25, s2, 4')
    for u in range(5):
        a(f'  s_add_u32 s26, s24, {16*u}')
        a('  s_lshl_b32 s26, s26, 12')
        a('  s_add_u32 s26, s26, s25')
        a(f'  s_mov_b32 s{64+u}, s26')
        a(f'  v_add_u32 v{X[0]}, s26, v{P}')
        a(f'  v_lshlrev_b32 v{X[1]}, 1, v{X[0]}')
        a(f'  buffer_load_ushort v{DI+u}, v{X[1]}, s[20:23], 0 offen')
        a(f'  v_lshlrev_b32 v{X[1]}, 5, v{X[0]}')
        a(f'  v_lshl_add_u32 v{OFF+u}, v{VROW4}, 3, v{X[1]}')
        a(f'  buffer_load_dwordx2 {vr(MM+2*u,2)}, v{OFF+u}, s[4:7], 0 offen')
    a('  s_waitcnt lgkmcnt(0)')
    a('  s_barrier')
    st()
    a('  s_mov_b32 s70, 0xc1200000')
    a('  s_mov_b32 s71, 0x3fb8aa3b')
    a('  s_waitcnt vmcnt(0)')
    for r in range(WD, CEN + 2):
        a(f'  v_lshlrev_b32 v{r}, 16, v{r}')
    for u in range(5):
        a(f'  s_cmp_ge_u32 s{64+u}, {E}')
        a(f'  s_cbranch_scc1 p2_epi_skip{u}')
        a(f'  s_add_u32 s26, s24, {16*u}')
        a('  s_lshl_b32 s26, s26, 11')
        a(f'  v_lshlrev_b32 v{X[0]}, 7, v{P}')
        a(f'  v_lshl_add_u32 v{X[0]}, v{VROW4}, {5 if US else 4}, v{X[0]}')
        a(f'  v_add_u32 v{X[0]}, s26, v{X[0]}')
        a(f'  ds_read_b128 {vr(S,4)}, v{X[0]}')
        a(f'  ds_read_b128 {vr(S+4,4)}, v{X[0]} offset:{16 if US else 64}')
        a(f'  v_lshlrev_b32 v{X[1]}, 16, v{DI+u}')
        a(f'  v_sub_f32 v{X[2]}, v{X[1]}, v{CEN}')
        a(f'  v_sub_f32 v{X[3]}, v{X[1]}, v{CEN+1}')
        def rnd2():
            a(f'  v_cvt_pk_bf16_f32 v{X[4]}, v{X[2]}, v{X[3]}')
            a(f'  v_lshlrev_b32 v{X[2]}, 16, v{X[4]}')
            a(f'  v_and_b32 v{X[3]}, s53, v{X[4]}')
        rnd2()
        a(f'  v_mul_f32 v{X[2]}, v{X[2]}, v{X[2]}')
        a(f'  v_mul_f32 v{X[3]}, v{X[3]}, v{X[3]}')
        rnd2()
        a(f'  v_mul_f32 v{X[2]}, s70, v{X[2]}')
        a(f'  v_mul_f32 v{X[3]}, s70, v{X[3]}')
        rnd2()
        a(f'  v_mul_f32 v{X[2]}, s71, v{X[2]}')
        a(f'  v_mul_f32 v{X[3]}, s71, v{X[3]}')
        a(f'  v_exp_f32 v{X[2]}, v{X[2]}')
        a(f'  v_exp_f32 v{X[3]}, v{X[3]}')
        a('  s_nop 0')
        a(f'  v_cvt_pk_bf16_f32 v{X[4]}, v{X[2]}, v{X[3]}')
        a(f'  v_lshlrev_b32 v{RB}, 16, v{X[4]}')
        a(f'  v_and_b32 v{RB+1}, s53, v{X[4]}')
        a('  s_waitcnt lgkmcnt(0)')
        order = [0, 1, 2, 3] if US else [0, 2, 1, 3]
        for i in range(4):
            a(f'  v_cvt_f32_f64 v{SF+order[i]}, {vr(S+2*i,2)}')
        a('  s_nop 1')
        a(f'  v_mfma_f32_16x16x4_f32 {vr(GG,4)}, v{WS}, v{RB}, 0')
        a(f'  v_mfma_f32_16x16x4_f32 {vr(HH,4)}, v{WR}, v{RB}, 0')
        a(f'  v_mfma_f32_16x16x4_f32 {vr(Y,4)}, v{WD}, v{SF}, 0')
        a(f'  v_mfma_f32_16x16x4_f32 {vr(GG,4)}, v{WS+1}, v{RB+1}, {vr(GG,4)}')
        a(f'  v_mfma_f32_16x16x4_f32 {vr(HH,4)}, v{WR+1}, v{RB+1}, {vr(HH,4)}')
        for q in range(1, 4):
            a(f'  v_mfma_f32_16x16x4_f32 {vr(Y,4)}, v{WD+q}, v{SF+q}, {vr(Y,4)}')
        a('  s_nop 15')
        for q in range(4):
            a(f'  v_mul_f32 v{Y+q}, v{Y+q}, v{GG+q}')
        a('  s_nop 1')
        a(f'  v_mfma_f32_16x16x4_f32 {vr(Z,4)}, v{WU}, v{Y}, 0')
        for q in range(1, 4):
            a(f'  v_mfma_f32_16x16x4_f32 {vr(Z,4)}, v{WU+q}, v{Y+q}, {vr(Z,4)}')
        a(f'  v_cvt_pk_bf16_f32 v{X[0]}, v{HH}, v{HH+1}')
        a(f'  v_cvt_pk_bf16_f32 v{X[1]}, v{HH+2}, v{HH+3}')
        a(f'  v_lshlrev_b32 v{HH}, 16, v{X[0]}')
        a(f'  v_and_b32 v{HH+1}, s53, v{X[0]}')
        a(f'  v_lshlrev_b32 v{HH+2}, 16, v{X[1]}')
        a(f'  v_and_b32 v{HH+3}, s53, v{X[1]}')
        a('  s_nop 15')
        a(f'  v_cvt_pk_bf16_f32 v{X[0]}, v{Z}, v{Z+1}')
        a(f'  v_cvt_pk_bf16_f32 v{X[1]}, v{Z+2}, v{Z+3}')
        a(f'  v_lshlrev_b32 v{Z}, 16, v{X[0]}')
        a(f'  v_and_b32 v{Z+1}, s53, v{X[0]}')
        a(f'  v_lshlrev_b32 v{Z+2}, 16, v{X[1]}')
        a(f'  v_and_b32 v{Z+3}, s53, v{X[1]}')
        for q in range(4):
            a(f'  v_mul_f32 v{Z+q}, v{Z+q}, v{HH+q}')
        a(f'  v_cvt_pk_bf16_f32 v{X[0]}, v{Z}, v{Z+1}')
        a(f'  v_cvt_pk_bf16_f32 v{X[1]}, v{Z+2}, v{Z+3}')
        a(f'  v_lshlrev_b32 v{Z}, 16, v{X[0]}')
        a(f'  v_and_b32 v{Z+1}, s53, v{X[0]}')
        a(f'  v_lshlrev_b32 v{Z+2}, 16, v{X[1]}')
        a(f'  v_and_b32 v{Z+3}, s53, v{X[1]}')
        a(f'  v_lshlrev_b32 v{X[2]}, 16, v{MM+2*u}')
        a(f'  v_and_b32 v{X[3]}, s53, v{MM+2*u}')
        a(f'  v_lshlrev_b32 v{X[4]}, 16, v{MM+2*u+1}')
        a(f'  v_and_b32 v{X[5]}, s53, v{MM+2*u+1}')
        for q in range(4):
            a(f'  v_add_f32 v{Z+q}, v{Z+q}, v{X[2+q]}')
        a(f'  v_cvt_pk_bf16_f32 v{Z}, v{Z}, v{Z+1}')
        a(f'  v_cvt_pk_bf16_f32 v{Z+1}, v{Z+2}, v{Z+3}')
        a(f'  buffer_store_dwordx2 {vr(Z,2)}, v{OFF+u}, s[16:19], 0 offen')
        a.label(f'p2_epi_skip{u}')
    if st.on:
        a('  s_waitcnt vmcnt(0)')
        st()
    st.flush('s24')
    a.label('p2_done')
    a('  s_endpgm')
    return maxv

def descriptor(a, name, vgpr, sgpr):
    a(f'.amdhsa_kernel {name}')
    a(f'  .amdhsa_next_free_vgpr {vgpr}')
    a(f'  .amdhsa_next_free_sgpr {sgpr}')
    a(f'  .amdhsa_accum_offset {(vgpr + 3) // 4 * 4}')
    a('  .amdhsa_group_segment_fixed_size 0')
    a('  .amdhsa_kernarg_size 112')
    a('  .amdhsa_user_sgpr_count 2')
    a('  .amdhsa_user_sgpr_kernarg_segment_ptr 1')
    a('  .amdhsa_system_sgpr_workgroup_id_x 1')
    a('  .amdhsa_float_denorm_mode_32 3')
    a('.end_amdhsa_kernel')

HEADER = '''; Kernarg layout (112 bytes, ptrs only, base s[0:1]):
; @launch kernel=p1_kernel grid=(256,1,1) block=(1024,1,1) lds=163840
; @launch kernel=p2_kernel grid=(256,1,1) block=(1024,1,1) lds=163840
.amdgcn_target "amdgcn-amd-amdhsa--gfx950"
.text
.globl p1_kernel
.globl p2_kernel
'''

def build(opt):
    a = Asm()
    a(HEADER.rstrip('\n'))
    gen_p1(a, opt)
    v2 = gen_p2(a, opt)
    a('.section .rodata,"a"')
    a('.p2align 6')
    ns = 102 if opt.get('stamp') else 80
    descriptor(a, 'p1_kernel', 128, ns)
    a('.p2align 6')
    descriptor(a, 'p2_kernel', v2, ns)
    return a.text()

if __name__ == '__main__':
    out = sys.argv[1] if len(sys.argv) > 1 else 'standalone__molecular_angular_gemnet__graph.s'
    opt = {}
    for kv in sys.argv[2:]:
        k, v = kv.split('=')
        opt[k] = int(v) if v.lstrip('-').isdigit() else v
    open(out, 'w').write(build(opt))
    print('wrote', out)
```

```python
import struct, sys, math

def f32bits(x):
    return struct.unpack('<I', struct.pack('<f', x))[0]
def bits2f(b):
    return struct.unpack('<f', struct.pack('<I', b))[0]

E = 320000
T = 10240000
NT = 256
TILE = T // NT
TILE_LINES = 2752
TILE_BYTES = TILE_LINES * 128
REC_OFF = 0x40000
REC_BYTES = NT * TILE_BYTES
KSH = 14
NK = (E + (1 << KSH) - 1) >> KSH
HIST = 131072
TMP = HIST + NK * 1024
DUMMY_ROW = 1264

class Asm:
    def __init__(self):
        self.lines = []
    def __call__(self, s=''):
        for l in s.split('\n'):
            self.lines.append(l)
    def label(self, s):
        self.lines.append(s + ':')
    def text(self):
        return '\n'.join(self.lines) + '\n'

def vr(a, n=1):
    return f'v{a}' if n == 1 else f'v[{a}:{a+n-1}]'
def sr(a, n=1):
    return f's{a}' if n == 1 else f's[{a}:{a+n-1}]'

def srd(a, d, ptr, size):
    a(f'  s_mov_b32 s{d}, s{ptr}')
    a(f'  s_and_b32 s{d+1}, s{ptr+1}, 0xffff')
    a(f'  s_mov_b32 s{d+2}, {size}')
    a(f'  s_mov_b32 s{d+3}, 0x20000')

class Stamps:
    def __init__(self, a, on, name, slot):
        self.a = a; self.on = on; self.n = 0; self.name = name; self.slot = slot; self.dbg = False; self.dbg_idx = []
    def __call__(self):
        if not self.on: return
        a = self.a
        a('  s_memtime s[80:81]')
        a('  s_memrealtime s[82:83]')
        a('  s_waitcnt lgkmcnt(0)')
        a(f'  s_mov_b32 s{84+2*self.n}, s80')
        a(f'  s_mov_b32 s{85+2*self.n}, s82')
        self.n += 1
        assert self.n <= 9
    def flush(self, wavereg):
        if not self.on: return
        a = self.a
        if self.dbg:
            a(f'  s_cmp_lg_u32 {wavereg}, 0')
            a(f'  s_cbranch_scc1 {self.name}_nostamp')
            a('  s_load_dwordx2 s[80:81], s[0:1], 96')
            a('  s_waitcnt lgkmcnt(0)')
            if self.slot:
                a('  s_sub_u32 s80, s80, 512')
                a('  s_subb_u32 s81, s81, 0')
            a('  v_mov_b32 v1, 0')
            base = 0 if self.slot == 0 else 32
            a('  s_not_b32 s82, s85')
            a('  v_mov_b32 v2, s82')
            a(f'  global_atomic_umax v1, v2, s[80:81] offset:{base}')
            k = 1
            for i in self.dbg_idx:
                a(f'  v_mov_b32 v2, s{85+2*i}')
                a(f'  global_atomic_umax v1, v2, s[80:81] offset:{base+4*k}')
                k += 1
            a.label(f'{self.name}_nostamp')
            return
        a(f'  s_cmp_lg_u32 {wavereg}, 0')
        a(f'  s_cbranch_scc1 {self.name}_nostamp')
        a('  s_load_dwordx2 s[80:81], s[0:1], 104')
        a('  s_waitcnt lgkmcnt(0)')
        a(f'  s_add_u32 s80, s80, {200*1048576 + self.slot*65536}')
        a('  s_addc_u32 s81, s81, 0')
        a('  s_lshl_b32 s82, s2, 7')
        a('  v_mov_b32 v1, s82')
        for i in range(2*self.n):
            a(f'  v_mov_b32 v2, s{84+i}')
            a(f'  global_store_dword v1, v2, s[80:81] offset:{4*i}')
        a.label(f'{self.name}_nostamp')

def gen_p1(a, opt):
    st = Stamps(a, bool(opt.get('stamp')), 'p1', 0)
    st.dbg = opt.get('stamp') == 2; st.dbg_idx = [1, 3, 4, 5, 6, 7]
    NTF = ' nt' if opt.get('nt_in', True) else ''
    STF = ' nt' if opt.get('nt_st', False) else ''
    W0, W1, AUX = 8, 48, 88
    Tm = 108
    inv2pi = 1.0 / (2.0 * math.pi)
    chi_bits = f32bits(inv2pi) & 0xffffff00
    chi = bits2f(chi_bits)
    clo_bits = f32bits(inv2pi - chi)
    a('.p2align 8')
    a('.type p1_kernel,@function')
    a.label('p1_kernel')
    a('  s_cmp_ge_u32 s2, 256')
    a('  s_cbranch_scc1 p1_done')
    a('  s_load_dwordx4 s[32:35], s[0:1], 8')
    a('  s_load_dwordx2 s[36:37], s[0:1], 32')
    a('  s_load_dwordx2 s[38:39], s[0:1], 48')
    a('  s_load_dwordx2 s[28:29], s[0:1], 104')
    a('  v_lshlrev_b32 v1, 4, v0')
    a(f'  v_add_u32 v2, {HIST}, v1')
    for r in range(4, 8):
        a(f'  v_mov_b32 v{r}, 0')
    a('  ds_write_b128 v2, v[4:7]')
    a('  ds_write_b128 v2, v[4:7] offset:16384')
    a('  s_mul_i32 s40, s2, 160000')
    a('  s_mul_i32 s41, s2, 80000')
    a('  v_add_u32 v1, s40, v1')
    a('  v_lshlrev_b32 v3, 3, v0')
    a('  v_add_u32 v3, s41, v3')
    a('  v_readfirstlane_b32 s24, v0')
    a('  v_cmp_gt_u32 vcc, 1000, v0')
    a('  s_lshr_b32 s24, s24, 6')
    a('  s_mov_b64 s[44:45], vcc')
    for i in range(1, 10):
        a(f'  s_mov_b32 s{45+i}, {i*16000}')
        a(f'  s_mov_b32 s{55+i}, {i*8000}')
    a('  s_waitcnt lgkmcnt(0)')
    a('  s_load_dword s26, s[38:39], 0')
    srd(a, 4, 32, T * 4)
    srd(a, 8, 34, T * 4)
    srd(a, 12, 36, T * 2)
    st()
    a('  s_mov_b64 exec, s[44:45]')
    for i in range(10):
        so = '0' if i == 0 else f's{45+i}'
        sa = '0' if i == 0 else f's{55+i}'
        a(f'  buffer_load_dwordx4 {vr(W0+4*i,4)}, v1, s[4:7], {so} offen{NTF}')
        a(f'  buffer_load_dwordx4 {vr(W1+4*i,4)}, v1, s[8:11], {so} offen{NTF}')
        a(f'  buffer_load_dwordx2 {vr(AUX+2*i,2)}, v3, s[12:15], {sa} offen{NTF}')
    a('  s_mov_b32 s27, 0xffff0000')
    a(f'  s_mov_b32 s30, {chi_bits:#x}')
    a(f'  s_mov_b32 s31, {clo_bits:#x}')
    a(f'  s_mov_b32 s42, {HIST}')
    a('  s_mov_b32 s43, 0x3fc')
    a('  v_mov_b32 v2, 1')
    a('  s_waitcnt lgkmcnt(0)')
    a('  s_and_b32 s26, s26, 0xffff')
    a('  s_lshl_b32 s26, s26, 16')
    a('  s_barrier')
    t = [Tm + i for i in range(20)]
    for i in range(10):
        A = [W0 + 4*i + e for e in range(4)]
        O = [W1 + 4*i + e for e in range(4)]
        G = [AUX + 2*i, AUX + 2*i + 1]
        a(f'  s_waitcnt vmcnt({27 - 3*i})')
        a(f'  v_lshlrev_b32 v{t[0]}, 16, v{G[0]}')
        a(f'  v_and_b32 v{t[1]}, s27, v{G[0]}')
        a(f'  v_lshlrev_b32 v{t[2]}, 16, v{G[1]}')
        a(f'  v_and_b32 v{t[3]}, s27, v{G[1]}')
        for e in range(4):
            a(f'  v_mul_f32 v{t[e]}, s26, v{t[e]}')
        a(f'  v_cvt_pk_bf16_f32 v{t[4]}, v{t[0]}, v{t[1]}')
        a(f'  v_cvt_pk_bf16_f32 v{t[5]}, v{t[2]}, v{t[3]}')
        for e in range(4):
            a(f'  v_lshrrev_b32 v{t[8+e]}, 8, v{O[e]}')
        a(f'  v_lshlrev_b32 v{t[0]}, 16, v{t[4]}')
        a(f'  v_and_b32 v{t[1]}, s27, v{t[4]}')
        a(f'  v_lshlrev_b32 v{t[2]}, 16, v{t[5]}')
        a(f'  v_and_b32 v{t[3]}, s27, v{t[5]}')
        for e in range(4):
            a(f'  v_bfi_b32 v{t[8+e]}, 15, v{O[e]}, v{t[8+e]}')
        for e in range(4):
            a(f'  v_mul_f32 v{t[4+e]}, s30, v{t[e]}')
        for e in range(4):
            a(f'  v_fract_f32 v{t[4+e]}, v{t[4+e]}')
        for e in range(4):
            a(f'  v_fma_f32 v{t[4+e]}, v{t[e]}, s31, v{t[4+e]}')
        for e in range(4):
            a(f'  v_cos_f32 v{t[4+e]}, v{t[4+e]}')
        for e in range(4):
            a(f'  v_lshrrev_b32 v{t[12+e]}, 2, v{O[e]}')
        for e in range(4):
            a(f'  v_lshrrev_b32 v{t[e]}, {KSH}, v{A[e]}')
        for e in range(4):
            a(f'  v_and_b32 v{t[12+e]}, s43, v{t[12+e]}')
        for e in range(4):
            a(f'  v_lshl_or_b32 v{t[12+e]}, v{t[e]}, 10, v{t[12+e]}')
        a(f'  v_cvt_pk_bf16_f32 v{t[16]}, v{t[4]}, v{t[5]}')
        a(f'  v_cvt_pk_bf16_f32 v{t[17]}, v{t[6]}, v{t[7]}')
        for e in range(4):
            a(f'  v_add_u32 v{t[e]}, s42, v{t[12+e]}')
        for e in range(4):
            a(f'  ds_add_u32 v{t[e]}, v2')
        for e in range(4):
            a(f'  v_lshlrev_b32 v{A[e]}, 5, v{A[e]}')
        a(f'  v_lshl_or_b32 v{O[0]}, v{t[16]}, 16, v{t[8]}')
        a(f'  v_and_or_b32 v{O[1]}, v{t[16]}, s27, v{t[9]}')
        a(f'  v_lshl_or_b32 v{O[2]}, v{t[17]}, 16, v{t[10]}')
        a(f'  v_and_or_b32 v{O[3]}, v{t[17]}, s27, v{t[11]}')
        a(f'  v_lshl_or_b32 v{G[0]}, v{t[13]}, 16, v{t[12]}')
        a(f'  v_lshl_or_b32 v{G[1]}, v{t[15]}, 16, v{t[14]}')
    a('  s_mov_b64 exec, -1')
    a('  s_waitcnt lgkmcnt(0)')
    a('  s_barrier')
    st()
    a('  v_lshlrev_b32 v4, 2, v0')
    a(f'  v_add_u32 v4, {HIST}, v4')
    a('  s_cmp_ge_u32 s24, 4')
    a('  s_cbranch_scc1 p1_skip1')
    for k in range(NK):
        a(f'  ds_read_b32 v{t[k]}, v4 offset:{k*1024}')
    a('  v_mov_b32 v5, 0')
    a('  s_waitcnt lgkmcnt(0)')
    ra, rb = 5, 6
    for k in range(NK):
        a(f'  v_add_u32 v{rb}, v{ra}, v{t[k]}')
        a(f'  v_mov_b32 v{t[k]}, v{ra}')
        ra, rb = rb, ra
    assert ra == 5
    a('  v_add_u32 v6, 15, v5')
    a('  v_and_b32 v6, -16, v6')
    a('  v_mov_b32 v7, v6')
    for sh in (1, 2, 4, 8):
        a('  s_nop 1')
        a(f'  v_add_u32_dpp v7, v7, v7 row_shr:{sh} row_mask:0xf bank_mask:0xf bound_ctrl:0')
    a('  s_nop 1')
    a('  v_add_u32_dpp v7, v7, v7 row_bcast:15 row_mask:0xa bank_mask:0xf')
    a('  s_nop 1')
    a('  v_add_u32_dpp v7, v7, v7 row_bcast:31 row_mask:0xc bank_mask:0xf')
    a('  s_lshl_b32 s40, s24, 2')
    a(f'  s_add_u32 s40, s40, {TMP}')
    a('  v_mov_b32 v3, s40')
    a('  s_mov_b32 exec_lo, 0')
    a('  s_mov_b32 exec_hi, 0x80000000')
    a('  ds_write_b32 v3, v7')
    a('  s_mov_b64 exec, -1')
    a.label('p1_skip1')
    a('  s_waitcnt lgkmcnt(0)')
    a('  s_barrier')
    a(f'  v_mov_b32 v1, {TMP}')
    a('  ds_read2_b32 v[2:3], v1 offset0:0 offset1:1')
    a('  s_waitcnt lgkmcnt(0)')
    a('  v_readfirstlane_b32 s66, v2')
    a('  v_readfirstlane_b32 s67, v3')
    a('  ds_read2_b32 v[2:3], v1 offset0:2 offset1:3')
    a('  s_waitcnt lgkmcnt(0)')
    a('  v_readfirstlane_b32 s68, v2')
    a('  v_readfirstlane_b32 s69, v3')
    a('  s_nop 3')
    a('  s_add_u32 s70, s66, s67')
    a('  s_add_u32 s71, s70, s68')
    a('  s_add_u32 s72, s71, s69')
    a('  s_cmp_ge_u32 s24, 4')
    a('  s_cbranch_scc1 p1_skip2')
    a('  s_mov_b32 s73, 0')
    a('  s_cmp_eq_u32 s24, 1')
    a('  s_cselect_b32 s73, s66, s73')
    a('  s_cmp_eq_u32 s24, 2')
    a('  s_cselect_b32 s73, s70, s73')
    a('  s_cmp_eq_u32 s24, 3')
    a('  s_cselect_b32 s73, s71, s73')
    a('  v_sub_u32 v7, v7, v6')
    a('  v_add_u32 v7, s73, v7')
    for k in range(NK):
        a(f'  v_add_u32 v{t[k]}, v7, v{t[k]}')
        a(f'  ds_write_b32 v4, v{t[k]} offset:{k*1024}')
    a('  v_lshl_or_b32 v5, v7, 12, v5')
    srd(a, 20, 28, 262144)
    a('  s_lshl_b32 s40, s2, 2')
    a('  v_lshlrev_b32 v6, 10, v0')
    a('  buffer_store_dword v5, v6, s[20:23], s40 offen')
    a.label('p1_skip2')
    a('  s_waitcnt lgkmcnt(0)')
    a('  s_barrier')
    st()
    a('  v_mov_b32 v2, 1')
    a(f'  v_mov_b32 v1, {HIST}')
    a('  s_mov_b64 exec, s[44:45]')
    def rank_issue(b):
        base = (b & 1) * 8
        for x in range(8):
            rec = b * 8 + x
            j, h = rec >> 1, rec & 1
            ad = 4 + (x & 3)
            a(f'  v_add_u32_sdwa v{ad}, v1, v{AUX+j} dst_sel:DWORD dst_unused:UNUSED_PAD src0_sel:DWORD src1_sel:WORD_{h}')
            a(f'  ds_add_rtn_u32 v{t[base+x]}, v{ad}, v2')
    def rank_pack(b):
        base = (b & 1) * 8
        for x in range(0, 8, 2):
            j = (b * 8 + x) >> 1
            a(f'  v_lshl_or_b32 v{AUX+j}, v{t[base+x+1]}, 16, v{t[base+x]}')
    rank_issue(0)
    for b in range(5):
        if b + 1 < 5:
            rank_issue(b + 1)
            a('  s_waitcnt lgkmcnt(8)')
        else:
            a('  s_waitcnt lgkmcnt(0)')
        rank_pack(b)
    st()
    a('  s_mul_i32 s40, s2, %d' % TILE_BYTES)
    a('  s_add_u32 s28, s28, s40')
    a('  s_addc_u32 s29, s29, 0')
    a(f'  s_add_u32 s28, s28, {REC_OFF}')
    a('  s_addc_u32 s29, s29, 0')
    for i in range(1, 8):
        a(f'  s_mov_b32 s{45+i}, {i*16384}')
    a('  s_mov_b32 s43, 0x20000')
    for s in range(3):
        a('  s_mov_b64 exec, s[44:45]')
        if s > 0:
            a(f'  s_mov_b32 s42, {s*131072}')
        for x in range(40):
            j, h = x >> 1, x & 1
            ad = 4 + (x & 3)
            a(f'  v_lshlrev_b32_sdwa v{ad}, 3, v{AUX+j} dst_sel:DWORD dst_unused:UNUSED_PAD src0_sel:DWORD src1_sel:WORD_{h}')
            if s > 0:
                a(f'  v_subrev_u32 v{ad}, s42, v{ad}')
            a(f'  v_cmpx_gt_u32 vcc, s43, v{ad}')
            a(f'  ds_write2_b32 v{ad}, v{W0+x}, v{W1+x} offset0:0 offset1:1')
            a('  s_mov_b64 exec, s[44:45]')
        a('  s_mov_b64 exec, -1')
        a(f'  s_add_u32 s16, s28, {s*131072}')
        a('  s_addc_u32 s17, s29, 0')
        a('  s_and_b32 s17, s17, 0xffff')
        if s < 2:
            a('  s_mov_b32 s18, 131072')
        else:
            a('  s_sub_u32 s18, s72, 32768')
            a('  s_lshl_b32 s18, s18, 3')
        a('  s_mov_b32 s19, 0x20000')
        a('  v_lshlrev_b32 v1, 4, v0')
        a('  v_add_u32 v3, 0x10000, v1')
        a('  s_waitcnt lgkmcnt(0)')
        a('  s_barrier')
        nb = 2
        for bt in range(nb):
            nr = 4 if (s < 2 or bt == 0) else 2
            for u in range(nr):
                a(f'  ds_read_b128 {vr(t[4*u],4)}, v{1 if bt == 0 else 3} offset:{u*16384}')
            for u in range(nr):
                a(f'  s_waitcnt lgkmcnt({nr-1-u})')
                rnd = bt * 4 + u
                so = '0' if rnd == 0 else f's{45+rnd}'
                a(f'  buffer_store_dwordx4 {vr(t[4*u],4)}, v1, s[16:19], {so} offen{STF}')
            if bt == 0:
                a('  s_nop 1')
        if s < 2:
            a('  s_barrier')
        st()
    if st.on:
        a('  s_waitcnt vmcnt(0)')
        st()
    st.flush('s24')
    a.label('p1_done')
    a('  s_endpgm')

def gen_p2(a, opt):
    st = Stamps(a, bool(opt.get('stamp')), 'p2', 1)
    st.dbg = opt.get('stamp') == 2; st.dbg_idx = [1, 2, 3, 4]
    b_lag = opt.get('lag', 3)
    R = b_lag + 1
    US = opt.get('ushort', 0)
    NG = 16 if US else 8
    RNT = ' nt' if opt.get('nt_rec', False) else ''
    J4, J8, P = 1, 2, 3
    VN, VL, VB = 5, 6, 7
    Eq = [8, 9, 10, 11]
    SELA, SELB, VDUM, COL = 12, 13, 14, 15
    D = [16, 18]; PT = [20, 21]; LA = [22, 23]; GAD = [24, 25]; YR = [26, 27]; AB = [28, 29]
    X = [30, 31, 32, 33, 34, 35]
    VROW4, VLANE = 36, 37
    REC = [38 + 2*i for i in range(R)]
    nx = 38 + 2*R
    VV = [nx + i for i in range(R)]; nx += R
    CC = [nx + i for i in range(R)]; nx += R
    ROW = [nx + i for i in range(R)]; nx += R
    G = [nx + NG*i for i in range(R)]; nx += NG*R
    assert nx <= 128, nx
    maxv = nx
    a('.p2align 8')
    a('.type p2_kernel,@function')
    a.label('p2_kernel')
    a('  s_cmp_ge_u32 s2, 256')
    a('  s_cbranch_scc1 p2_done')
    a('  s_load_dwordx2 s[32:33], s[0:1], 0')
    a('  s_load_dwordx2 s[34:35], s[0:1], 24')
    a('  s_load_dwordx2 s[36:37], s[0:1], 40')
    a('  s_load_dwordx4 s[40:43], s[0:1], 56')
    a('  s_load_dwordx4 s[44:47], s[0:1], 72')
    a('  s_load_dwordx2 s[48:49], s[0:1], 88')
    a('  s_load_dwordx2 s[28:29], s[0:1], 104')
    a('  v_readfirstlane_b32 s24, v0')
    a(f'  v_and_b32 v{VLANE}, 63, v0')
    a(f'  v_and_b32 v{P}, 15, v0')
    a('  s_lshr_b32 s24, s24, 6')
    a(f'  v_lshlrev_b32 v{X[0]}, 2, v{P}')
    a('  s_lshl_b32 s25, s2, 8')
    a('  s_lshl_b32 s26, s24, 4')
    a('  s_add_u32 s25, s25, s26')
    a('  s_lshl_b32 s25, s25, 2')
    a('  s_waitcnt lgkmcnt(0)')
    srd(a, 12, 28, 262144)
    a(f'  buffer_load_dword v{VN}, v{X[0]}, s[12:15], s25 offen')
    st()
    srd(a, 4, 32, E * 32)
    a(f'  s_add_u32 s8, s28, {REC_OFF}')
    a('  s_addc_u32 s9, s29, 0')
    a('  s_and_b32 s9, s9, 0xffff')
    a(f'  s_mov_b32 s10, {REC_BYTES}')
    a('  s_mov_b32 s11, 0x20000')
    srd(a, 16, 48, E * 32)
    srd(a, 20, 34, E * 2)
    a('  v_lshlrev_b32 v4, 4, v0')
    for r in range(16, 20):
        a(f'  v_mov_b32 v{r}, 0')
    a(f'  v_add_u32 v{X[1]}, 0x10000, v4')
    a(f'  v_add_u32 v{X[2]}, 0x20000, v4')
    for i in range(4):
        a(f'  ds_write_b128 v4, v[16:19] offset:{i*16384}')
    for i in range(4):
        a(f'  ds_write_b128 v{X[1]}, v[16:19] offset:{i*16384}')
    for i in range(2):
        a(f'  ds_write_b128 v{X[2]}, v[16:19] offset:{i*16384}')
    if US:
        a(f'  v_lshlrev_b32 v{J4}, 1, v{P}')
        for r in range(G[0], G[0] + NG*R):
            a(f'  v_mov_b32 v{r}, 0')
    else:
        a(f'  v_and_b32 v{J4}, 7, v0')
        a(f'  v_lshlrev_b32 v{J4}, 2, v{J4}')
    a(f'  v_lshlrev_b32 v{J8}, 3, v{P}')
    a(f'  v_lshrrev_b32 v{VROW4}, 4, v{VLANE}')
    a(f'  v_mov_b32 v{VDUM}, {DUMMY_ROW*128}')
    a(f'  v_cmp_gt_u32 vcc, 8, v{P}')
    a(f'  v_mov_b32 v{X[3]}, 0x03020c0c')
    a(f'  v_mov_b32 v{X[4]}, 0x05040c0c')
    a(f'  v_cndmask_b32 v{SELA}, v{X[3]}, v{X[4]}, vcc')
    a(f'  v_mov_b32 v{X[3]}, 0x07060c0c')
    a(f'  v_mov_b32 v{X[4]}, 0x01000c0c')
    a(f'  v_cndmask_b32 v{SELB}, v{X[3]}, v{X[4]}, vcc')
    a('  s_waitcnt vmcnt(0)')
    a(f'  v_lshrrev_b32 v{VB}, 16, v{VN}')
    a(f'  v_and_b32 v{VN}, 0xffff, v{VN}')
    a(f'  v_add_u32 v{VL}, 15, v{VN}')
    a(f'  v_lshrrev_b32 v{VL}, 4, v{VL}')
    a('  s_lshl_b32 s26, s24, 4')
    a(f'  v_add_u32 v{X[0]}, s26, v{P}')
    a(f'  s_mov_b32 s27, {TILE_LINES}')
    a(f'  v_mul_lo_u32 v{X[0]}, v{X[0]}, s27')
    a(f'  v_add_u32 v{VB}, v{VB}, v{X[0]}')
    a(f'  v_mov_b32 v{X[0]}, v{VL}')
    for sh in (1, 2, 4, 8):
        a('  s_nop 1')
        a(f'  v_max_u32_dpp v{X[0]}, v{X[0]}, v{X[0]} row_ror:{sh} row_mask:0xf bank_mask:0xf')
    a('  s_nop 1')
    a(f'  v_readfirstlane_b32 s50, v{X[0]}')
    a('  s_mov_b32 s51, 0')
    a('  s_mov_b32 s52, 0xffffff80')
    a('  s_mov_b32 s53, 0xffff0000')
    a('  s_mov_b32 s54, 0x3ff80')
    a('  s_mov_b32 s55, 1')
    se = opt.get('sync', 0)
    if se:
        a(f'  s_mov_b32 s69, {opt.get("nsync", 38 // se)}')
    a.label('p2_outer')
    a('  s_cmp_ge_u32 s51, s50')
    a('  s_cbranch_scc1 p2_main_done')
    for k in range(4):
        a(f'  s_add_u32 s60, s51, {4*k}')
        a(f'  v_add_u32 v{X[0]}, s60, v{VROW4}')
        a(f'  v_cmp_gt_u32 vcc, v{VL}, v{X[0]}')
        a(f'  v_lshlrev_b32 v{X[1]}, 4, v{X[0]}')
        a(f'  v_sub_u32 v{X[1]}, v{VN}, v{X[1]}')
        a(f'  v_min_u32 v{X[1]}, 16, v{X[1]}')
        a(f'  v_add_u32 v{X[2]}, v{VB}, v{X[0]}')
        a(f'  v_lshl_or_b32 v{X[2]}, v{X[2]}, 7, v{X[1]}')
        a(f'  s_bcnt1_i32_b64 s61, vcc')
        a(f'  v_mbcnt_lo_u32_b32 v{X[3]}, vcc_lo, 0')
        a(f'  v_mbcnt_hi_u32_b32 v{X[3]}, vcc_hi, v{X[3]}')
        a(f'  v_sub_u32 v{X[4]}, v{VLANE}, v{X[3]}')
        a(f'  v_add_u32 v{X[4]}, s61, v{X[4]}')
        a(f'  v_cndmask_b32 v{X[4]}, v{X[4]}, v{X[3]}, vcc')
        a(f'  v_cndmask_b32 v{X[2]}, 0, v{X[2]}, vcc')
        a(f'  v_and_b32 v{X[5]}, 3, v{X[4]}')
        a(f'  v_lshlrev_b32 v{X[5]}, 6, v{X[5]}')
        a(f'  v_and_or_b32 v{X[5]}, v{X[4]}, -4, v{X[5]}')
        a(f'  ds_permute_b32 v{Eq[k]}, v{X[5]}, v{X[2]}')
        a(f'  s_add_u32 s{56+k}, s61, 3')
        a(f'  s_lshr_b32 s{56+k}, s{56+k}, 2')
    a('  s_add_u32 s62, s56, s57')
    a('  s_add_u32 s62, s62, s58')
    a('  s_add_u32 s62, s62, s59')
    a('  s_mov_b32 s63, 3')
    a('  s_waitcnt lgkmcnt(0)')
    uid = [0]
    def stageA(b):
        u = uid[0]; uid[0] += 1
        a.label(f'p2_chk{u}')
        a('  s_cmp_lg_u32 s56, 0')
        a(f'  s_cbranch_scc1 p2_go{u}')
        a('  s_cmp_eq_u32 s63, 0')
        a(f'  s_cbranch_scc1 p2_exh{u}')
        a(f'  v_mov_b32 v{Eq[0]}, v{Eq[1]}')
        a(f'  v_mov_b32 v{Eq[1]}, v{Eq[2]}')
        a(f'  v_mov_b32 v{Eq[2]}, v{Eq[3]}')
        a('  s_mov_b32 s56, s57')
        a('  s_mov_b32 s57, s58')
        a('  s_mov_b32 s58, s59')
        a('  s_sub_u32 s63, s63, 1')
        a(f'  s_branch p2_chk{u}')
        a.label(f'p2_exh{u}')
        a(f'  v_mov_b32 v{Eq[0]}, 0')
        a('  s_mov_b32 s56, 1')
        a('  s_nop 0')
        a.label(f'p2_go{u}')
        a('  s_sub_u32 s56, s56, 1')
        a(f'  v_mov_b32_dpp v{X[0]}, v{Eq[0]} row_newbcast:0 row_mask:0xf bank_mask:0xf')
        a(f'  v_mov_b32_dpp v{Eq[0]}, v{Eq[0]} row_shl:1 row_mask:0xf bank_mask:0xf bound_ctrl:0')
        a(f'  v_and_or_b32 v{X[1]}, v{X[0]}, s52, v{J8}')
        a(f'  v_and_b32 v{VV[b]}, 31, v{X[0]}')
        a(f'  buffer_load_dwordx2 {vr(REC[b],2)}, v{X[1]}, s[8:11], 0 offen{RNT}')
    def decode(b):
        a(f'  v_cmp_gt_u32 vcc, v{VV[b]}, v{P}')
        a(f'  v_lshlrev_b32 v{X[2]}, 7, v{REC[b]+1}')
        a(f'  v_and_b32 v{CC[b]}, s53, v{REC[b]+1}')
        a(f'  v_and_b32 v{X[2]}, s54, v{X[2]}')
        a(f'  v_cndmask_b32 v{COL}, 0, v{REC[b]}, vcc')
        if opt.get('colmask'):
            a(f'  v_and_b32 v{COL}, {opt["colmask"]}, v{COL}')
        a(f'  v_cndmask_b32 v{ROW[b]}, v{VDUM}, v{X[2]}, vcc')
        a('  s_nop 0')
    def gather(b, g):
        ad = GAD[g & 1]
        if US:
            a(f'  v_add_u32_dpp v{ad}, v{COL}, v{J4} row_newbcast:{g} row_mask:0xf bank_mask:0xf')
            if opt.get('no_gather'):
                a(f'  buffer_load_short_d16_hi v{G[b]+g}, v{J4}, s[4:7], 0 offen')
            else:
                a(f'  buffer_load_short_d16_hi v{G[b]+g}, v{ad}, s[4:7], 0 offen')
            return
        a(f'  v_add_u32_dpp v{ad}, v{COL}, v{J4} row_newbcast:{2*g} row_mask:0xf bank_mask:0x3')
        a(f'  v_add_u32_dpp v{ad}, v{COL}, v{J4} row_newbcast:{2*g+1} row_mask:0xf bank_mask:0xc')
        if opt.get('no_gather'):
            a(f'  buffer_load_dword v{G[b]+g}, v{J4}, s[4:7], 0 offen')
        else:
            a(f'  buffer_load_dword v{G[b]+g}, v{ad}, s[4:7], 0 offen')
    def consume(b, g):
        x = G[b] + g; y = YR[g & 1]
        if US:
            p, la, d = PT[g & 1], LA[g & 1], D[g & 1]
            a(f'  v_mul_f32_dpp v{p}, v{CC[b]}, v{x} row_newbcast:{g} row_mask:0xf bank_mask:0xf')
            a(f'  v_add_u32_dpp v{la}, v{ROW[b]}, v{J8} row_newbcast:{g} row_mask:0xf bank_mask:0xf')
            a(f'  v_cvt_f64_f32 {vr(d,2)}, v{p}')
            if not opt.get('no_ds'):
                a(f'  ds_add_f64 v{la}, {vr(d,2)}')
            return
        a(f'  v_mov_b32_dpp v{y}, v{x} row_ror:8 row_mask:0xf bank_mask:0xf')
        a(f'  v_add_u32_dpp v{LA[0]}, v{ROW[b]}, v{J8} row_newbcast:{2*g} row_mask:0xf bank_mask:0xf')
        a(f'  v_add_u32_dpp v{LA[1]}, v{ROW[b]}, v{J8} row_newbcast:{2*g+1} row_mask:0xf bank_mask:0xf')
        a(f'  v_perm_b32 v{AB[0]}, v{x}, v{y}, v{SELA}')
        a(f'  v_perm_b32 v{AB[1]}, v{x}, v{y}, v{SELB}')
        a(f'  v_mul_f32_dpp v{PT[0]}, v{CC[b]}, v{AB[0]} row_newbcast:{2*g} row_mask:0xf bank_mask:0xf')
        a(f'  v_mul_f32_dpp v{PT[1]}, v{CC[b]}, v{AB[1]} row_newbcast:{2*g+1} row_mask:0xf bank_mask:0xf')
        a(f'  v_cvt_f64_f32 {vr(D[0],2)}, v{PT[0]}')
        a(f'  v_cvt_f64_f32 {vr(D[1],2)}, v{PT[1]}')
        if not opt.get('no_ds'):
            a(f'  ds_add_f64 v{LA[0]}, {vr(D[0],2)}')
            a(f'  ds_add_f64 v{LA[1]}, {vr(D[1],2)}')
    for t in range(-2*b_lag, -b_lag):
        stageA((t + 2*b_lag) % R)
    for t in range(-b_lag, 0):
        stageA((t + 2*b_lag) % R)
        a(f'  s_waitcnt vmcnt({b_lag + NG*(t + b_lag)})')
        decode((t + b_lag) % R)
        for g in range(NG):
            gather((t + b_lag) % R, g)
    a('  s_cmp_eq_u32 s55, 0')
    a('  s_cbranch_scc1 p2_loop')
    a('  s_mov_b32 s55, 0')
    a('  s_barrier')
    st()
    a.label('p2_loop')
    for t in range(R):
        stageA((t + 2*b_lag) % R)
        a(f'  s_waitcnt vmcnt({(NG+1)*b_lag})')
        decode((t + b_lag) % R)
        for g in range(NG):
            gather((t + b_lag) % R, g)
            a(f'  s_waitcnt vmcnt({(NG+1)*b_lag})')
            consume(t, g)
        if se and (t % se) == se - 1:
            a('  s_cmp_eq_u32 s69, 0')
            a(f'  s_cbranch_scc1 p2_nosync{t}')
            a('  s_barrier')
            a('  s_sub_u32 s69, s69, 1')
            a.label(f'p2_nosync{t}')
        a('  s_sub_u32 s62, s62, 1')
        a('  s_cmp_eq_u32 s62, 0')
        if t < R - 1:
            a('  s_cbranch_scc1 p2_loop_exit')
        else:
            a('  s_cbranch_scc0 p2_loop')
    a.label('p2_loop_exit')
    a('  s_waitcnt vmcnt(0)')
    a('  s_add_u32 s51, s51, 16')
    a('  s_branch p2_outer')
    a.label('p2_main_done')
    a('  s_cmp_eq_u32 s55, 0')
    a('  s_cbranch_scc1 p2_epi')
    a('  s_waitcnt lgkmcnt(0)')
    a('  s_barrier')
    a.label('p2_epi')
    if se:
        a.label('p2_owed')
        a('  s_cmp_eq_u32 s69, 0')
        a('  s_cbranch_scc1 p2_owed_done')
        a('  s_barrier')
        a('  s_sub_u32 s69, s69, 1')
        a('  s_branch p2_owed')
        a.label('p2_owed_done')
    st()
    WD, WU, WS, WR, CEN = 38, 42, 46, 48, 50
    DI = 52
    MM = 58
    OFF = 68
    J2 = 73
    S = 74
    SF = 82
    RB = 86
    Y = 88; GG = 92; HH = 96; Z = 100
    maxv = max(maxv, 104)
    a(f'  v_lshlrev_b32 v{J2}, 1, v{P}')
    a(f'  v_lshlrev_b32 v{X[1]}, 7, v{VROW4}')
    a(f'  v_add_u32 v{X[1]}, v{X[1]}, v{J2}')
    for q in range(4):
        a(f'  global_load_ushort v{WD+q}, v{X[1]}, s[44:45] offset:{q*32}')
    for q in range(4):
        a(f'  global_load_ushort v{WU+q}, v{X[1]}, s[46:47] offset:{q*32}')
    a(f'  v_lshlrev_b32 v{X[2]}, 5, v{VROW4}')
    a(f'  v_add_u32 v{X[2]}, v{X[2]}, v{J2}')
    for q in range(2):
        a(f'  global_load_ushort v{WS+q}, v{X[2]}, s[42:43] offset:{q*128}')
    for q in range(2):
        a(f'  global_load_ushort v{WR+q}, v{X[2]}, s[40:41] offset:{q*128}')
    a(f'  v_lshlrev_b32 v{X[3]}, 1, v{VROW4}')
    for q in range(2):
        a(f'  global_load_ushort v{CEN+q}, v{X[3]}, s[36:37] offset:{q*8}')
    a(f'  s_lshl_b32 s25, s2, 4')
    for u in range(5):
        a(f'  s_add_u32 s26, s24, {16*u}')
        a('  s_lshl_b32 s26, s26, 12')
        a('  s_add_u32 s26, s26, s25')
        a(f'  s_mov_b32 s{64+u}, s26')
        a(f'  v_add_u32 v{X[0]}, s26, v{P}')
        a(f'  v_lshlrev_b32 v{X[1]}, 1, v{X[0]}')
        a(f'  buffer_load_ushort v{DI+u}, v{X[1]}, s[20:23], 0 offen')
        a(f'  v_lshlrev_b32 v{X[1]}, 5, v{X[0]}')
        a(f'  v_lshl_add_u32 v{OFF+u}, v{VROW4}, 3, v{X[1]}')
        a(f'  buffer_load_dwordx2 {vr(MM+2*u,2)}, v{OFF+u}, s[4:7], 0 offen')
    a('  s_waitcnt lgkmcnt(0)')
    a('  s_barrier')
    st()
    a('  s_mov_b32 s70, 0xc1200000')
    a('  s_mov_b32 s71, 0x3fb8aa3b')
    a('  s_waitcnt vmcnt(0)')
    for r in range(WD, CEN + 2):
        a(f'  v_lshlrev_b32 v{r}, 16, v{r}')
    for u in range(5):
        a(f'  s_cmp_ge_u32 s{64+u}, {E}')
        a(f'  s_cbranch_scc1 p2_epi_skip{u}')
        a(f'  s_add_u32 s26, s24, {16*u}')
        a('  s_lshl_b32 s26, s26, 11')
        a(f'  v_lshlrev_b32 v{X[0]}, 7, v{P}')
        a(f'  v_lshl_add_u32 v{X[0]}, v{VROW4}, {5 if US else 4}, v{X[0]}')
        a(f'  v_add_u32 v{X[0]}, s26, v{X[0]}')
        a(f'  ds_read_b128 {vr(S,4)}, v{X[0]}')
        a(f'  ds_read_b128 {vr(S+4,4)}, v{X[0]} offset:{16 if US else 64}')
        a(f'  v_lshlrev_b32 v{X[1]}, 16, v{DI+u}')
        a(f'  v_sub_f32 v{X[2]}, v{X[1]}, v{CEN}')
        a(f'  v_sub_f32 v{X[3]}, v{X[1]}, v{CEN+1}')
        def rnd2():
            a(f'  v_cvt_pk_bf16_f32 v{X[4]}, v{X[2]}, v{X[3]}')
            a(f'  v_lshlrev_b32 v{X[2]}, 16, v{X[4]}')
            a(f'  v_and_b32 v{X[3]}, s53, v{X[4]}')
        rnd2()
        a(f'  v_mul_f32 v{X[2]}, v{X[2]}, v{X[2]}')
        a(f'  v_mul_f32 v{X[3]}, v{X[3]}, v{X[3]}')
        rnd2()
        a(f'  v_mul_f32 v{X[2]}, s70, v{X[2]}')
        a(f'  v_mul_f32 v{X[3]}, s70, v{X[3]}')
        rnd2()
        a(f'  v_mul_f32 v{X[2]}, s71, v{X[2]}')
        a(f'  v_mul_f32 v{X[3]}, s71, v{X[3]}')
        a(f'  v_exp_f32 v{X[2]}, v{X[2]}')
        a(f'  v_exp_f32 v{X[3]}, v{X[3]}')
        a('  s_nop 0')
        a(f'  v_cvt_pk_bf16_f32 v{X[4]}, v{X[2]}, v{X[3]}')
        a(f'  v_lshlrev_b32 v{RB}, 16, v{X[4]}')
        a(f'  v_and_b32 v{RB+1}, s53, v{X[4]}')
        a('  s_waitcnt lgkmcnt(0)')
        order = [0, 1, 2, 3] if US else [0, 2, 1, 3]
        for i in range(4):
            a(f'  v_cvt_f32_f64 v{SF+order[i]}, {vr(S+2*i,2)}')
        a('  s_nop 1')
        a(f'  v_mfma_f32_16x16x4_f32 {vr(GG,4)}, v{WS}, v{RB}, 0')
        a(f'  v_mfma_f32_16x16x4_f32 {vr(HH,4)}, v{WR}, v{RB}, 0')
        a(f'  v_mfma_f32_16x16x4_f32 {vr(Y,4)}, v{WD}, v{SF}, 0')
        a(f'  v_mfma_f32_16x16x4_f32 {vr(GG,4)}, v{WS+1}, v{RB+1}, {vr(GG,4)}')
        a(f'  v_mfma_f32_16x16x4_f32 {vr(HH,4)}, v{WR+1}, v{RB+1}, {vr(HH,4)}')
        for q in range(1, 4):
            a(f'  v_mfma_f32_16x16x4_f32 {vr(Y,4)}, v{WD+q}, v{SF+q}, {vr(Y,4)}')
        a('  s_nop 15')
        for q in range(4):
            a(f'  v_mul_f32 v{Y+q}, v{Y+q}, v{GG+q}')
        a('  s_nop 1')
        a(f'  v_mfma_f32_16x16x4_f32 {vr(Z,4)}, v{WU}, v{Y}, 0')
        for q in range(1, 4):
            a(f'  v_mfma_f32_16x16x4_f32 {vr(Z,4)}, v{WU+q}, v{Y+q}, {vr(Z,4)}')
        a(f'  v_cvt_pk_bf16_f32 v{X[0]}, v{HH}, v{HH+1}')
        a(f'  v_cvt_pk_bf16_f32 v{X[1]}, v{HH+2}, v{HH+3}')
        a(f'  v_lshlrev_b32 v{HH}, 16, v{X[0]}')
        a(f'  v_and_b32 v{HH+1}, s53, v{X[0]}')
        a(f'  v_lshlrev_b32 v{HH+2}, 16, v{X[1]}')
        a(f'  v_and_b32 v{HH+3}, s53, v{X[1]}')
        a('  s_nop 15')
        a(f'  v_cvt_pk_bf16_f32 v{X[0]}, v{Z}, v{Z+1}')
        a(f'  v_cvt_pk_bf16_f32 v{X[1]}, v{Z+2}, v{Z+3}')
        a(f'  v_lshlrev_b32 v{Z}, 16, v{X[0]}')
        a(f'  v_and_b32 v{Z+1}, s53, v{X[0]}')
        a(f'  v_lshlrev_b32 v{Z+2}, 16, v{X[1]}')
        a(f'  v_and_b32 v{Z+3}, s53, v{X[1]}')
        for q in range(4):
            a(f'  v_mul_f32 v{Z+q}, v{Z+q}, v{HH+q}')
        a(f'  v_cvt_pk_bf16_f32 v{X[0]}, v{Z}, v{Z+1}')
        a(f'  v_cvt_pk_bf16_f32 v{X[1]}, v{Z+2}, v{Z+3}')
        a(f'  v_lshlrev_b32 v{Z}, 16, v{X[0]}')
        a(f'  v_and_b32 v{Z+1}, s53, v{X[0]}')
        a(f'  v_lshlrev_b32 v{Z+2}, 16, v{X[1]}')
        a(f'  v_and_b32 v{Z+3}, s53, v{X[1]}')
        a(f'  v_lshlrev_b32 v{X[2]}, 16, v{MM+2*u}')
        a(f'  v_and_b32 v{X[3]}, s53, v{MM+2*u}')
        a(f'  v_lshlrev_b32 v{X[4]}, 16, v{MM+2*u+1}')
        a(f'  v_and_b32 v{X[5]}, s53, v{MM+2*u+1}')
        for q in range(4):
            a(f'  v_add_f32 v{Z+q}, v{Z+q}, v{X[2+q]}')
        a(f'  v_cvt_pk_bf16_f32 v{Z}, v{Z}, v{Z+1}')
        a(f'  v_cvt_pk_bf16_f32 v{Z+1}, v{Z+2}, v{Z+3}')
        a(f'  buffer_store_dwordx2 {vr(Z,2)}, v{OFF+u}, s[16:19], 0 offen')
        a.label(f'p2_epi_skip{u}')
    if st.on:
        a('  s_waitcnt vmcnt(0)')
        st()
    st.flush('s24')
    a.label('p2_done')
    a('  s_endpgm')
    return maxv

def descriptor(a, name, vgpr, sgpr):
    a(f'.amdhsa_kernel {name}')
    a(f'  .amdhsa_next_free_vgpr {vgpr}')
    a(f'  .amdhsa_next_free_sgpr {sgpr}')
    a(f'  .amdhsa_accum_offset {(vgpr + 3) // 4 * 4}')
    a('  .amdhsa_group_segment_fixed_size 0')
    a('  .amdhsa_kernarg_size 112')
    a('  .amdhsa_user_sgpr_count 2')
    a('  .amdhsa_user_sgpr_kernarg_segment_ptr 1')
    a('  .amdhsa_system_sgpr_workgroup_id_x 1')
    a('  .amdhsa_float_denorm_mode_32 3')
    a('.end_amdhsa_kernel')

HEADER = '''; Kernarg layout (112 bytes, ptrs only, base s[0:1]):
; @launch kernel=p1_kernel grid=(256,1,1) block=(1024,1,1) lds=163840
; @launch kernel=p2_kernel grid=(256,1,1) block=(1024,1,1) lds=163840
.amdgcn_target "amdgcn-amd-amdhsa--gfx950"
.text
.globl p1_kernel
.globl p2_kernel
'''

def build(opt):
    a = Asm()
    a(HEADER.rstrip('\n'))
    gen_p1(a, opt)
    v2 = gen_p2(a, opt)
    a('.section .rodata,"a"')
    a('.p2align 6')
    ns = 102 if opt.get('stamp') else 80
    descriptor(a, 'p1_kernel', 128, ns)
    a('.p2align 6')
    descriptor(a, 'p2_kernel', v2, ns)
    return a.text()

if __name__ == '__main__':
    out = sys.argv[1] if len(sys.argv) > 1 else 'standalone__molecular_angular_gemnet__graph.s'
    opt = {}
    for kv in sys.argv[2:]:
        k, v = kv.split('=')
        opt[k] = int(v) if v.lstrip('-').isdigit() else v
    open(out, 'w').write(build(opt))
    print('wrote', out)
```

```python
import struct, sys, math

def f32bits(x):
    return struct.unpack('<I', struct.pack('<f', x))[0]
def bits2f(b):
    return struct.unpack('<f', struct.pack('<I', b))[0]

E = 320000
T = 10240000
NT = 256
TILE = T // NT
TILE_LINES = 2752
TILE_BYTES = TILE_LINES * 128
REC_OFF = 0x40000
REC_BYTES = NT * TILE_BYTES
KSH = 14
NK = (E + (1 << KSH) - 1) >> KSH
HIST = 131072
TMP = HIST + NK * 1024
DUMMY_ROW = 1264

class Asm:
    def __init__(self):
        self.lines = []
    def __call__(self, s=''):
        for l in s.split('\n'):
            self.lines.append(l)
    def label(self, s):
        self.lines.append(s + ':')
    def text(self):
        return '\n'.join(self.lines) + '\n'

def vr(a, n=1):
    return f'v{a}' if n == 1 else f'v[{a}:{a+n-1}]'
def sr(a, n=1):
    return f's{a}' if n == 1 else f's[{a}:{a+n-1}]'

def srd(a, d, ptr, size):
    a(f'  s_mov_b32 s{d}, s{ptr}')
    a(f'  s_and_b32 s{d+1}, s{ptr+1}, 0xffff')
    a(f'  s_mov_b32 s{d+2}, {size}')
    a(f'  s_mov_b32 s{d+3}, 0x20000')

class Stamps:
    def __init__(self, a, on, name, slot):
        self.a = a; self.on = on; self.n = 0; self.name = name; self.slot = slot; self.dbg = False; self.dbg_idx = []
    def __call__(self):
        if not self.on: return
        a = self.a
        a('  s_memtime s[80:81]')
        a('  s_memrealtime s[82:83]')
        a('  s_waitcnt lgkmcnt(0)')
        a(f'  s_mov_b32 s{84+2*self.n}, s80')
        a(f'  s_mov_b32 s{85+2*self.n}, s82')
        self.n += 1
        assert self.n <= 9
    def flush(self, wavereg):
        if not self.on: return
        a = self.a
        if self.dbg:
            a(f'  s_cmp_lg_u32 {wavereg}, 0')
            a(f'  s_cbranch_scc1 {self.name}_nostamp')
            a('  s_load_dwordx2 s[80:81], s[0:1], 96')
            a('  s_waitcnt lgkmcnt(0)')
            if self.slot:
                a('  s_sub_u32 s80, s80, 512')
                a('  s_subb_u32 s81, s81, 0')
            a('  v_mov_b32 v1, 0')
            base = 0 if self.slot == 0 else 32
            a('  s_not_b32 s82, s85')
            a('  v_mov_b32 v2, s82')
            a(f'  global_atomic_umax v1, v2, s[80:81] offset:{base}')
            k = 1
            for i in self.dbg_idx:
                a(f'  v_mov_b32 v2, s{85+2*i}')
                a(f'  global_atomic_umax v1, v2, s[80:81] offset:{base+4*k}')
                k += 1
            a.label(f'{self.name}_nostamp')
            return
        a(f'  s_cmp_lg_u32 {wavereg}, 0')
        a(f'  s_cbranch_scc1 {self.name}_nostamp')
        a('  s_load_dwordx2 s[80:81], s[0:1], 104')
        a('  s_waitcnt lgkmcnt(0)')
        a(f'  s_add_u32 s80, s80, {200*1048576 + self.slot*65536}')
        a('  s_addc_u32 s81, s81, 0')
        a('  s_lshl_b32 s82, s2, 7')
        a('  v_mov_b32 v1, s82')
        for i in range(2*self.n):
            a(f'  v_mov_b32 v2, s{84+i}')
            a(f'  global_store_dword v1, v2, s[80:81] offset:{4*i}')
        a.label(f'{self.name}_nostamp')

def gen_p1(a, opt):
    st = Stamps(a, bool(opt.get('stamp')), 'p1', 0)
    st.dbg = opt.get('stamp') == 2; st.dbg_idx = [1, 3, 4, 5, 6, 7]
    NTF = ' nt' if opt.get('nt_in', True) else ''
    STF = ' nt' if opt.get('nt_st', False) else ''
    W0, W1, AUX = 8, 48, 88
    Tm = 108
    inv2pi = 1.0 / (2.0 * math.pi)
    chi_bits = f32bits(inv2pi) & 0xffffff00
    chi = bits2f(chi_bits)
    clo_bits = f32bits(inv2pi - chi)
    a('.p2align 8')
    a('.type p1_kernel,@function')
    a.label('p1_kernel')
    a('  s_cmp_ge_u32 s2, 256')
    a('  s_cbranch_scc1 p1_done')
    a('  s_load_dwordx4 s[32:35], s[0:1], 8')
    a('  s_load_dwordx2 s[36:37], s[0:1], 32')
    a('  s_load_dwordx2 s[38:39], s[0:1], 48')
    a('  s_load_dwordx2 s[28:29], s[0:1], 104')
    a('  v_lshlrev_b32 v1, 4, v0')
    a(f'  v_add_u32 v2, {HIST}, v1')
    for r in range(4, 8):
        a(f'  v_mov_b32 v{r}, 0')
    a('  ds_write_b128 v2, v[4:7]')
    a('  ds_write_b128 v2, v[4:7] offset:16384')
    a('  s_mul_i32 s40, s2, 160000')
    a('  s_mul_i32 s41, s2, 80000')
    a('  v_add_u32 v1, s40, v1')
    a('  v_lshlrev_b32 v3, 3, v0')
    a('  v_add_u32 v3, s41, v3')
    a('  v_readfirstlane_b32 s24, v0')
    a('  v_cmp_gt_u32 vcc, 1000, v0')
    a('  s_lshr_b32 s24, s24, 6')
    a('  s_mov_b64 s[44:45], vcc')
    for i in range(1, 10):
        a(f'  s_mov_b32 s{45+i}, {i*16000}')
        a(f'  s_mov_b32 s{55+i}, {i*8000}')
    a('  s_waitcnt lgkmcnt(0)')
    a('  s_load_dword s26, s[38:39], 0')
    srd(a, 4, 32, T * 4)
    srd(a, 8, 34, T * 4)
    srd(a, 12, 36, T * 2)
    st()
    a('  s_mov_b64 exec, s[44:45]')
    for i in range(10):
        so = '0' if i == 0 else f's{45+i}'
        sa = '0' if i == 0 else f's{55+i}'
        a(f'  buffer_load_dwordx4 {vr(W0+4*i,4)}, v1, s[4:7], {so} offen{NTF}')
        a(f'  buffer_load_dwordx4 {vr(W1+4*i,4)}, v1, s[8:11], {so} offen{NTF}')
        a(f'  buffer_load_dwordx2 {vr(AUX+2*i,2)}, v3, s[12:15], {sa} offen{NTF}')
    a('  s_mov_b32 s27, 0xffff0000')
    a(f'  s_mov_b32 s30, {chi_bits:#x}')
    a(f'  s_mov_b32 s31, {clo_bits:#x}')
    a(f'  s_mov_b32 s42, {HIST}')
    a('  s_mov_b32 s43, 0x3fc')
    a('  v_mov_b32 v2, 1')
    a('  s_waitcnt lgkmcnt(0)')
    a('  s_and_b32 s26, s26, 0xffff')
    a('  s_lshl_b32 s26, s26, 16')
    a('  s_barrier')
    t = [Tm + i for i in range(20)]
    for i in range(10):
        A = [W0 + 4*i + e for e in range(4)]
        O = [W1 + 4*i + e for e in range(4)]
        G = [AUX + 2*i, AUX + 2*i + 1]
        a(f'  s_waitcnt vmcnt({27 - 3*i})')
        a(f'  v_lshlrev_b32 v{t[0]}, 16, v{G[0]}')
        a(f'  v_and_b32 v{t[1]}, s27, v{G[0]}')
        a(f'  v_lshlrev_b32 v{t[2]}, 16, v{G[1]}')
        a(f'  v_and_b32 v{t[3]}, s27, v{G[1]}')
        for e in range(4):
            a(f'  v_mul_f32 v{t[e]}, s26, v{t[e]}')
        a(f'  v_cvt_pk_bf16_f32 v{t[4]}, v{t[0]}, v{t[1]}')
        a(f'  v_cvt_pk_bf16_f32 v{t[5]}, v{t[2]}, v{t[3]}')
        for e in range(4):
            a(f'  v_lshrrev_b32 v{t[8+e]}, 8, v{O[e]}')
        a(f'  v_lshlrev_b32 v{t[0]}, 16, v{t[4]}')
        a(f'  v_and_b32 v{t[1]}, s27, v{t[4]}')
        a(f'  v_lshlrev_b32 v{t[2]}, 16, v{t[5]}')
        a(f'  v_and_b32 v{t[3]}, s27, v{t[5]}')
        for e in range(4):
            a(f'  v_bfi_b32 v{t[8+e]}, 15, v{O[e]}, v{t[8+e]}')
        for e in range(4):
            a(f'  v_mul_f32 v{t[4+e]}, s30, v{t[e]}')
        for e in range(4):
            a(f'  v_fract_f32 v{t[4+e]}, v{t[4+e]}')
        for e in range(4):
            a(f'  v_fma_f32 v{t[4+e]}, v{t[e]}, s31, v{t[4+e]}')
        for e in range(4):
            a(f'  v_cos_f32 v{t[4+e]}, v{t[4+e]}')
        for e in range(4):
            a(f'  v_lshrrev_b32 v{t[12+e]}, 2, v{O[e]}')
        for e in range(4):
            a(f'  v_lshrrev_b32 v{t[e]}, {KSH}, v{A[e]}')
        for e in range(4):
            a(f'  v_and_b32 v{t[12+e]}, s43, v{t[12+e]}')
        for e in range(4):
            a(f'  v_lshl_or_b32 v{t[12+e]}, v{t[e]}, 10, v{t[12+e]}')
        a(f'  v_cvt_pk_bf16_f32 v{t[16]}, v{t[4]}, v{t[5]}')
        a(f'  v_cvt_pk_bf16_f32 v{t[17]}, v{t[6]}, v{t[7]}')
        for e in range(4):
            a(f'  v_add_u32 v{t[e]}, s42, v{t[12+e]}')
        for e in range(4):
            a(f'  ds_add_u32 v{t[e]}, v2')
        for e in range(4):
            a(f'  v_lshlrev_b32 v{A[e]}, 5, v{A[e]}')
        a(f'  v_lshl_or_b32 v{O[0]}, v{t[16]}, 16, v{t[8]}')
        a(f'  v_and_or_b32 v{O[1]}, v{t[16]}, s27, v{t[9]}')
        a(f'  v_lshl_or_b32 v{O[2]}, v{t[17]}, 16, v{t[10]}')
        a(f'  v_and_or_b32 v{O[3]}, v{t[17]}, s27, v{t[11]}')
        a(f'  v_lshl_or_b32 v{G[0]}, v{t[13]}, 16, v{t[12]}')
        a(f'  v_lshl_or_b32 v{G[1]}, v{t[15]}, 16, v{t[14]}')
    a('  s_mov_b64 exec, -1')
    a('  s_waitcnt lgkmcnt(0)')
    a('  s_barrier')
    st()
    a('  v_lshlrev_b32 v4, 2, v0')
    a(f'  v_add_u32 v4, {HIST}, v4')
    a('  s_cmp_ge_u32 s24, 4')
    a('  s_cbranch_scc1 p1_skip1')
    for k in range(NK):
        a(f'  ds_read_b32 v{t[k]}, v4 offset:{k*1024}')
    a('  v_mov_b32 v5, 0')
    a('  s_waitcnt lgkmcnt(0)')
    ra, rb = 5, 6
    for k in range(NK):
        a(f'  v_add_u32 v{rb}, v{ra}, v{t[k]}')
        a(f'  v_mov_b32 v{t[k]}, v{ra}')
        ra, rb = rb, ra
    assert ra == 5
    a('  v_add_u32 v6, 15, v5')
    a('  v_and_b32 v6, -16, v6')
    a('  v_mov_b32 v7, v6')
    for sh in (1, 2, 4, 8):
        a('  s_nop 1')
        a(f'  v_add_u32_dpp v7, v7, v7 row_shr:{sh} row_mask:0xf bank_mask:0xf bound_ctrl:0')
    a('  s_nop 1')
    a('  v_add_u32_dpp v7, v7, v7 row_bcast:15 row_mask:0xa bank_mask:0xf')
    a('  s_nop 1')
    a('  v_add_u32_dpp v7, v7, v7 row_bcast:31 row_mask:0xc bank_mask:0xf')
    a('  s_lshl_b32 s40, s24, 2')
    a(f'  s_add_u32 s40, s40, {TMP}')
    a('  v_mov_b32 v3, s40')
    a('  s_mov_b32 exec_lo, 0')
    a('  s_mov_b32 exec_hi, 0x80000000')
    a('  ds_write_b32 v3, v7')
    a('  s_mov_b64 exec, -1')
    a.label('p1_skip1')
    a('  s_waitcnt lgkmcnt(0)')
    a('  s_barrier')
    a(f'  v_mov_b32 v1, {TMP}')
    a('  ds_read2_b32 v[2:3], v1 offset0:0 offset1:1')
    a('  s_waitcnt lgkmcnt(0)')
    a('  v_readfirstlane_b32 s66, v2')
    a('  v_readfirstlane_b32 s67, v3')
    a('  ds_read2_b32 v[2:3], v1 offset0:2 offset1:3')
    a('  s_waitcnt lgkmcnt(0)')
    a('  v_readfirstlane_b32 s68, v2')
    a('  v_readfirstlane_b32 s69, v3')
    a('  s_nop 3')
    a('  s_add_u32 s70, s66, s67')
    a('  s_add_u32 s71, s70, s68')
    a('  s_add_u32 s72, s71, s69')
    a('  s_cmp_ge_u32 s24, 4')
    a('  s_cbranch_scc1 p1_skip2')
    a('  s_mov_b32 s73, 0')
    a('  s_cmp_eq_u32 s24, 1')
    a('  s_cselect_b32 s73, s66, s73')
    a('  s_cmp_eq_u32 s24, 2')
    a('  s_cselect_b32 s73, s70, s73')
    a('  s_cmp_eq_u32 s24, 3')
    a('  s_cselect_b32 s73, s71, s73')
    a('  v_sub_u32 v7, v7, v6')
    a('  v_add_u32 v7, s73, v7')
    for k in range(NK):
        a(f'  v_add_u32 v{t[k]}, v7, v{t[k]}')
        a(f'  ds_write_b32 v4, v{t[k]} offset:{k*1024}')
    a('  v_lshl_or_b32 v5, v7, 12, v5')
    srd(a, 20, 28, 262144)
    a('  s_lshl_b32 s40, s2, 2')
    a('  v_lshlrev_b32 v6, 10, v0')
    a('  buffer_store_dword v5, v6, s[20:23], s40 offen')
    a.label('p1_skip2')
    a('  s_waitcnt lgkmcnt(0)')
    a('  s_barrier')
    st()
    a('  v_mov_b32 v2, 1')
    a(f'  v_mov_b32 v1, {HIST}')
    a('  s_mov_b64 exec, s[44:45]')
    def rank_issue(b):
        base = (b & 1) * 8
        for x in range(8):
            rec = b * 8 + x
            j, h = rec >> 1, rec & 1
            ad = 4 + (x & 3)
            a(f'  v_add_u32_sdwa v{ad}, v1, v{AUX+j} dst_sel:DWORD dst_unused:UNUSED_PAD src0_sel:DWORD src1_sel:WORD_{h}')
            a(f'  ds_add_rtn_u32 v{t[base+x]}, v{ad}, v2')
    def rank_pack(b):
        base = (b & 1) * 8
        for x in range(0, 8, 2):
            j = (b * 8 + x) >> 1
            a(f'  v_lshl_or_b32 v{AUX+j}, v{t[base+x+1]}, 16, v{t[base+x]}')
    rank_issue(0)
    for b in range(5):
        if b + 1 < 5:
            rank_issue(b + 1)
            a('  s_waitcnt lgkmcnt(8)')
        else:
            a('  s_waitcnt lgkmcnt(0)')
        rank_pack(b)
    st()
    a('  s_mul_i32 s40, s2, %d' % TILE_BYTES)
    a('  s_add_u32 s28, s28, s40')
    a('  s_addc_u32 s29, s29, 0')
    a(f'  s_add_u32 s28, s28, {REC_OFF}')
    a('  s_addc_u32 s29, s29, 0')
    for i in range(1, 8):
        a(f'  s_mov_b32 s{45+i}, {i*16384}')
    a('  s_mov_b32 s43, 0x20000')
    for s in range(3):
        a('  s_mov_b64 exec, s[44:45]')
        if s > 0:
            a(f'  s_mov_b32 s42, {s*131072}')
        for x in range(40):
            j, h = x >> 1, x & 1
            ad = 4 + (x & 3)
            a(f'  v_lshlrev_b32_sdwa v{ad}, 3, v{AUX+j} dst_sel:DWORD dst_unused:UNUSED_PAD src0_sel:DWORD src1_sel:WORD_{h}')
            if s > 0:
                a(f'  v_subrev_u32 v{ad}, s42, v{ad}')
            a(f'  v_cmpx_gt_u32 vcc, s43, v{ad}')
            a(f'  ds_write2_b32 v{ad}, v{W0+x}, v{W1+x} offset0:0 offset1:1')
            a('  s_mov_b64 exec, s[44:45]')
        a('  s_mov_b64 exec, -1')
        a(f'  s_add_u32 s16, s28, {s*131072}')
        a('  s_addc_u32 s17, s29, 0')
        a('  s_and_b32 s17, s17, 0xffff')
        if s < 2:
            a('  s_mov_b32 s18, 131072')
        else:
            a('  s_sub_u32 s18, s72, 32768')
            a('  s_lshl_b32 s18, s18, 3')
        a('  s_mov_b32 s19, 0x20000')
        a('  v_lshlrev_b32 v1, 4, v0')
        a('  v_add_u32 v3, 0x10000, v1')
        a('  s_waitcnt lgkmcnt(0)')
        a('  s_barrier')
        nb = 2
        for bt in range(nb):
            nr = 4 if (s < 2 or bt == 0) else 2
            for u in range(nr):
                a(f'  ds_read_b128 {vr(t[4*u],4)}, v{1 if bt == 0 else 3} offset:{u*16384}')
            for u in range(nr):
                a(f'  s_waitcnt lgkmcnt({nr-1-u})')
                rnd = bt * 4 + u
                so = '0' if rnd == 0 else f's{45+rnd}'
                a(f'  buffer_store_dwordx4 {vr(t[4*u],4)}, v1, s[16:19], {so} offen{STF}')
            if bt == 0:
                a('  s_nop 1')
        if s < 2:
            a('  s_barrier')
        st()
    if st.on:
        a('  s_waitcnt vmcnt(0)')
        st()
    st.flush('s24')
    a.label('p1_done')
    a('  s_endpgm')

def gen_p2(a, opt):
    st = Stamps(a, bool(opt.get('stamp')), 'p2', 1)
    st.dbg = opt.get('stamp') == 2; st.dbg_idx = [1, 2, 3, 4]
    b_lag = opt.get('lag', 3)
    R = b_lag + 1
    US = opt.get('ushort', 0)
    NG = 16 if US else 8
    RNT = ' nt' if opt.get('nt_rec', False) else ''
    J4, J8, P = 1, 2, 3
    VN, VL, VB = 5, 6, 7
    Eq = [8, 9, 10, 11]
    SELA, SELB, VDUM, COL = 12, 13, 14, 15
    D = [16, 18]; PT = [20, 21]; LA = [22, 23]; GAD = [24, 25]; YR = [26, 27]; AB = [28, 29]
    X = [30, 31, 32, 33, 34, 35]
    VROW4, VLANE = 36, 37
    REC = [38 + 2*i for i in range(R)]
    nx = 38 + 2*R
    VV = [nx + i for i in range(R)]; nx += R
    CC = [nx + i for i in range(R)]; nx += R
    ROW = [nx + i for i in range(R)]; nx += R
    G = [nx + NG*i for i in range(R)]; nx += NG*R
    assert nx <= 128, nx
    maxv = nx
    a('.p2align 8')
    a('.type p2_kernel,@function')
    a.label('p2_kernel')
    a('  s_cmp_ge_u32 s2, 256')
    a('  s_cbranch_scc1 p2_done')
    a('  s_load_dwordx2 s[32:33], s[0:1], 0')
    a('  s_load_dwordx2 s[34:35], s[0:1], 24')
    a('  s_load_dwordx2 s[36:37], s[0:1], 40')
    a('  s_load_dwordx4 s[40:43], s[0:1], 56')
    a('  s_load_dwordx4 s[44:47], s[0:1], 72')
    a('  s_load_dwordx2 s[48:49], s[0:1], 88')
    a('  s_load_dwordx2 s[28:29], s[0:1], 104')
    a('  v_readfirstlane_b32 s24, v0')
    a(f'  v_and_b32 v{VLANE}, 63, v0')
    a(f'  v_and_b32 v{P}, 15, v0')
    a('  s_lshr_b32 s24, s24, 6')
    a(f'  v_lshlrev_b32 v{X[0]}, 2, v{P}')
    a('  s_lshl_b32 s25, s2, 8')
    a('  s_lshl_b32 s26, s24, 4')
    a('  s_add_u32 s25, s25, s26')
    a('  s_lshl_b32 s25, s25, 2')
    a('  s_waitcnt lgkmcnt(0)')
    srd(a, 12, 28, 262144)
    a(f'  buffer_load_dword v{VN}, v{X[0]}, s[12:15], s25 offen')
    st()
    srd(a, 4, 32, E * 32)
    a(f'  s_add_u32 s8, s28, {REC_OFF}')
    a('  s_addc_u32 s9, s29, 0')
    a('  s_and_b32 s9, s9, 0xffff')
    a(f'  s_mov_b32 s10, {REC_BYTES}')
    a('  s_mov_b32 s11, 0x20000')
    srd(a, 16, 48, E * 32)
    srd(a, 20, 34, E * 2)
    a('  v_lshlrev_b32 v4, 4, v0')
    for r in range(16, 20):
        a(f'  v_mov_b32 v{r}, 0')
    a(f'  v_add_u32 v{X[1]}, 0x10000, v4')
    a(f'  v_add_u32 v{X[2]}, 0x20000, v4')
    for i in range(4):
        a(f'  ds_write_b128 v4, v[16:19] offset:{i*16384}')
    for i in range(4):
        a(f'  ds_write_b128 v{X[1]}, v[16:19] offset:{i*16384}')
    for i in range(2):
        a(f'  ds_write_b128 v{X[2]}, v[16:19] offset:{i*16384}')
    if US:
        a(f'  v_lshlrev_b32 v{J4}, 1, v{P}')
        for r in range(G[0], G[0] + NG*R):
            a(f'  v_mov_b32 v{r}, 0')
    else:
        a(f'  v_and_b32 v{J4}, 7, v0')
        a(f'  v_lshlrev_b32 v{J4}, 2, v{J4}')
    a(f'  v_lshlrev_b32 v{J8}, 3, v{P}')
    a(f'  v_lshrrev_b32 v{VROW4}, 4, v{VLANE}')
    a(f'  v_mov_b32 v{VDUM}, {DUMMY_ROW*128}')
    a(f'  v_cmp_gt_u32 vcc, 8, v{P}')
    a(f'  v_mov_b32 v{X[3]}, 0x03020c0c')
    a(f'  v_mov_b32 v{X[4]}, 0x05040c0c')
    a(f'  v_cndmask_b32 v{SELA}, v{X[3]}, v{X[4]}, vcc')
    a(f'  v_mov_b32 v{X[3]}, 0x07060c0c')
    a(f'  v_mov_b32 v{X[4]}, 0x01000c0c')
    a(f'  v_cndmask_b32 v{SELB}, v{X[3]}, v{X[4]}, vcc')
    a('  s_waitcnt vmcnt(0)')
    a(f'  v_lshrrev_b32 v{VB}, 16, v{VN}')
    a(f'  v_and_b32 v{VN}, 0xffff, v{VN}')
    a(f'  v_add_u32 v{VL}, 15, v{VN}')
    a(f'  v_lshrrev_b32 v{VL}, 4, v{VL}')
    a('  s_lshl_b32 s26, s24, 4')
    a(f'  v_add_u32 v{X[0]}, s26, v{P}')
    a(f'  s_mov_b32 s27, {TILE_LINES}')
    a(f'  v_mul_lo_u32 v{X[0]}, v{X[0]}, s27')
    a(f'  v_add_u32 v{VB}, v{VB}, v{X[0]}')
    a(f'  v_mov_b32 v{X[0]}, v{VL}')
    for sh in (1, 2, 4, 8):
        a('  s_nop 1')
        a(f'  v_max_u32_dpp v{X[0]}, v{X[0]}, v{X[0]} row_ror:{sh} row_mask:0xf bank_mask:0xf')
    a('  s_nop 1')
    a(f'  v_readfirstlane_b32 s50, v{X[0]}')
    a('  s_mov_b32 s51, 0')
    a('  s_mov_b32 s52, 0xffffff80')
    a('  s_mov_b32 s53, 0xffff0000')
    a('  s_mov_b32 s54, 0x3ff80')
    a('  s_mov_b32 s55, 1')
    se = opt.get('sync', 0)
    if se:
        a(f'  s_mov_b32 s69, {opt.get("nsync", 38 // se)}')
    a.label('p2_outer')
    a('  s_cmp_ge_u32 s51, s50')
    a('  s_cbranch_scc1 p2_main_done')
    for k in range(4):
        a(f'  s_add_u32 s60, s51, {4*k}')
        a(f'  v_add_u32 v{X[0]}, s60, v{VROW4}')
        a(f'  v_cmp_gt_u32 vcc, v{VL}, v{X[0]}')
        a(f'  v_lshlrev_b32 v{X[1]}, 4, v{X[0]}')
        a(f'  v_sub_u32 v{X[1]}, v{VN}, v{X[1]}')
        a(f'  v_min_u32 v{X[1]}, 16, v{X[1]}')
        a(f'  v_add_u32 v{X[2]}, v{VB}, v{X[0]}')
        a(f'  v_lshl_or_b32 v{X[2]}, v{X[2]}, 7, v{X[1]}')
        a(f'  s_bcnt1_i32_b64 s61, vcc')
        a(f'  v_mbcnt_lo_u32_b32 v{X[3]}, vcc_lo, 0')
        a(f'  v_mbcnt_hi_u32_b32 v{X[3]}, vcc_hi, v{X[3]}')
        a(f'  v_sub_u32 v{X[4]}, v{VLANE}, v{X[3]}')
        a(f'  v_add_u32 v{X[4]}, s61, v{X[4]}')
        a(f'  v_cndmask_b32 v{X[4]}, v{X[4]}, v{X[3]}, vcc')
        a(f'  v_cndmask_b32 v{X[2]}, 0, v{X[2]}, vcc')
        a(f'  v_and_b32 v{X[5]}, 3, v{X[4]}')
        a(f'  v_lshlrev_b32 v{X[5]}, 6, v{X[5]}')
        a(f'  v_and_or_b32 v{X[5]}, v{X[4]}, -4, v{X[5]}')
        a(f'  ds_permute_b32 v{Eq[k]}, v{X[5]}, v{X[2]}')
        a(f'  s_add_u32 s{56+k}, s61, 3')
        a(f'  s_lshr_b32 s{56+k}, s{56+k}, 2')
    a('  s_add_u32 s62, s56, s57')
    a('  s_add_u32 s62, s62, s58')
    a('  s_add_u32 s62, s62, s59')
    a('  s_mov_b32 s63, 3')
    a('  s_waitcnt lgkmcnt(0)')
    uid = [0]
    def stageA(b):
        u = uid[0]; uid[0] += 1
        a.label(f'p2_chk{u}')
        a('  s_cmp_lg_u32 s56, 0')
        a(f'  s_cbranch_scc1 p2_go{u}')
        a('  s_cmp_eq_u32 s63, 0')
        a(f'  s_cbranch_scc1 p2_exh{u}')
        a(f'  v_mov_b32 v{Eq[0]}, v{Eq[1]}')
        a(f'  v_mov_b32 v{Eq[1]}, v{Eq[2]}')
        a(f'  v_mov_b32 v{Eq[2]}, v{Eq[3]}')
        a('  s_mov_b32 s56, s57')
        a('  s_mov_b32 s57, s58')
        a('  s_mov_b32 s58, s59')
        a('  s_sub_u32 s63, s63, 1')
        a(f'  s_branch p2_chk{u}')
        a.label(f'p2_exh{u}')
        a(f'  v_mov_b32 v{Eq[0]}, 0')
        a('  s_mov_b32 s56, 1')
        a('  s_nop 0')
        a.label(f'p2_go{u}')
        a('  s_sub_u32 s56, s56, 1')
        a(f'  v_mov_b32_dpp v{X[0]}, v{Eq[0]} row_newbcast:0 row_mask:0xf bank_mask:0xf')
        a(f'  v_mov_b32_dpp v{Eq[0]}, v{Eq[0]} row_shl:1 row_mask:0xf bank_mask:0xf bound_ctrl:0')
        a(f'  v_and_or_b32 v{X[1]}, v{X[0]}, s52, v{J8}')
        a(f'  v_and_b32 v{VV[b]}, 31, v{X[0]}')
        a(f'  buffer_load_dwordx2 {vr(REC[b],2)}, v{X[1]}, s[8:11], 0 offen{RNT}')
    def decode(b):
        a(f'  v_cmp_gt_u32 vcc, v{VV[b]}, v{P}')
        a(f'  v_lshlrev_b32 v{X[2]}, 7, v{REC[b]+1}')
        a(f'  v_and_b32 v{CC[b]}, s53, v{REC[b]+1}')
        a(f'  v_and_b32 v{X[2]}, s54, v{X[2]}')
        a(f'  v_cndmask_b32 v{COL}, 0, v{REC[b]}, vcc')
        if opt.get('colmask'):
            a(f'  v_and_b32 v{COL}, {opt["colmask"]}, v{COL}')
        a(f'  v_cndmask_b32 v{ROW[b]}, v{VDUM}, v{X[2]}, vcc')
        a('  s_nop 0')
    def gather(b, g):
        ad = GAD[g & 1]
        if US:
            a(f'  v_add_u32_dpp v{ad}, v{COL}, v{J4} row_newbcast:{g} row_mask:0xf bank_mask:0xf')
            if opt.get('no_gather'):
                a(f'  buffer_load_short_d16_hi v{G[b]+g}, v{J4}, s[4:7], 0 offen')
            else:
                a(f'  buffer_load_short_d16_hi v{G[b]+g}, v{ad}, s[4:7], 0 offen')
            return
        a(f'  v_add_u32_dpp v{ad}, v{COL}, v{J4} row_newbcast:{2*g} row_mask:0xf bank_mask:0x3')
        a(f'  v_add_u32_dpp v{ad}, v{COL}, v{J4} row_newbcast:{2*g+1} row_mask:0xf bank_mask:0xc')
        if opt.get('no_gather'):
            a(f'  buffer_load_dword v{G[b]+g}, v{J4}, s[4:7], 0 offen')
        else:
            a(f'  buffer_load_dword v{G[b]+g}, v{ad}, s[4:7], 0 offen')
    def consume(b, g):
        x = G[b] + g; y = YR[g & 1]
        if US:
            p, la, d = PT[g & 1], LA[g & 1], D[g & 1]
            a(f'  v_mul_f32_dpp v{p}, v{CC[b]}, v{x} row_newbcast:{g} row_mask:0xf bank_mask:0xf')
            a(f'  v_add_u32_dpp v{la}, v{ROW[b]}, v{J8} row_newbcast:{g} row_mask:0xf bank_mask:0xf')
            a(f'  v_cvt_f64_f32 {vr(d,2)}, v{p}')
            if not opt.get('no_ds'):
                a(f'  ds_add_f64 v{la}, {vr(d,2)}')
            return
        a(f'  v_mov_b32_dpp v{y}, v{x} row_ror:8 row_mask:0xf bank_mask:0xf')
        a(f'  v_add_u32_dpp v{LA[0]}, v{ROW[b]}, v{J8} row_newbcast:{2*g} row_mask:0xf bank_mask:0xf')
        a(f'  v_add_u32_dpp v{LA[1]}, v{ROW[b]}, v{J8} row_newbcast:{2*g+1} row_mask:0xf bank_mask:0xf')
        a(f'  v_perm_b32 v{AB[0]}, v{x}, v{y}, v{SELA}')
        a(f'  v_perm_b32 v{AB[1]}, v{x}, v{y}, v{SELB}')
        a(f'  v_mul_f32_dpp v{PT[0]}, v{CC[b]}, v{AB[0]} row_newbcast:{2*g} row_mask:0xf bank_mask:0xf')
        a(f'  v_mul_f32_dpp v{PT[1]}, v{CC[b]}, v{AB[1]} row_newbcast:{2*g+1} row_mask:0xf bank_mask:0xf')
        a(f'  v_cvt_f64_f32 {vr(D[0],2)}, v{PT[0]}')
        a(f'  v_cvt_f64_f32 {vr(D[1],2)}, v{PT[1]}')
        if not opt.get('no_ds'):
            a(f'  ds_add_f64 v{LA[0]}, {vr(D[0],2)}')
            a(f'  ds_add_f64 v{LA[1]}, {vr(D[1],2)}')
    for t in range(-2*b_lag, -b_lag):
        stageA((t + 2*b_lag) % R)
    for t in range(-b_lag, 0):
        stageA((t + 2*b_lag) % R)
        a(f'  s_waitcnt vmcnt({b_lag + NG*(t + b_lag)})')
        decode((t + b_lag) % R)
        for g in range(NG):
            gather((t + b_lag) % R, g)
    a('  s_cmp_eq_u32 s55, 0')
    a('  s_cbranch_scc1 p2_loop')
    a('  s_mov_b32 s55, 0')
    a('  s_barrier')
    st()
    a.label('p2_loop')
    for t in range(R):
        stageA((t + 2*b_lag) % R)
        a(f'  s_waitcnt vmcnt({(NG+1)*b_lag})')
        decode((t + b_lag) % R)
        for g in range(NG):
            gather((t + b_lag) % R, g)
            a(f'  s_waitcnt vmcnt({(NG+1)*b_lag})')
            consume(t, g)
        if se and (t % se) == se - 1:
            a('  s_cmp_eq_u32 s69, 0')
            a(f'  s_cbranch_scc1 p2_nosync{t}')
            a('  s_barrier')
            a('  s_sub_u32 s69, s69, 1')
            a.label(f'p2_nosync{t}')
        a('  s_sub_u32 s62, s62, 1')
        a('  s_cmp_eq_u32 s62, 0')
        if t < R - 1:
            a('  s_cbranch_scc1 p2_loop_exit')
        else:
            a('  s_cbranch_scc0 p2_loop')
    a.label('p2_loop_exit')
    a('  s_waitcnt vmcnt(0)')
    a('  s_add_u32 s51, s51, 16')
    a('  s_branch p2_outer')
    a.label('p2_main_done')
    a('  s_cmp_eq_u32 s55, 0')
    a('  s_cbranch_scc1 p2_epi')
    a('  s_waitcnt lgkmcnt(0)')
    a('  s_barrier')
    a.label('p2_epi')
    if se:
        a.label('p2_owed')
        a('  s_cmp_eq_u32 s69, 0')
        a('  s_cbranch_scc1 p2_owed_done')
        a('  s_barrier')
        a('  s_sub_u32 s69, s69, 1')
        a('  s_branch p2_owed')
        a.label('p2_owed_done')
    st()
    WD, WU, WS, WR, CEN = 38, 42, 46, 48, 50
    DI = 52
    MM = 58
    OFF = 68
    J2 = 73
    S = 74
    SF = 82
    RB = 86
    Y = 88; GG = 92; HH = 96; Z = 100
    maxv = max(maxv, 104)
    a(f'  v_lshlrev_b32 v{J2}, 1, v{P}')
    a(f'  v_lshlrev_b32 v{X[1]}, 7, v{VROW4}')
    a(f'  v_add_u32 v{X[1]}, v{X[1]}, v{J2}')
    for q in range(4):
        a(f'  global_load_ushort v{WD+q}, v{X[1]}, s[44:45] offset:{q*32}')
    for q in range(4):
        a(f'  global_load_ushort v{WU+q}, v{X[1]}, s[46:47] offset:{q*32}')
    a(f'  v_lshlrev_b32 v{X[2]}, 5, v{VROW4}')
    a(f'  v_add_u32 v{X[2]}, v{X[2]}, v{J2}')
    for q in range(2):
        a(f'  global_load_ushort v{WS+q}, v{X[2]}, s[42:43] offset:{q*128}')
    for q in range(2):
        a(f'  global_load_ushort v{WR+q}, v{X[2]}, s[40:41] offset:{q*128}')
    a(f'  v_lshlrev_b32 v{X[3]}, 1, v{VROW4}')
    for q in range(2):
        a(f'  global_load_ushort v{CEN+q}, v{X[3]}, s[36:37] offset:{q*8}')
    a(f'  s_lshl_b32 s25, s2, 4')
    for u in range(5):
        a(f'  s_add_u32 s26, s24, {16*u}')
        a('  s_lshl_b32 s26, s26, 12')
        a('  s_add_u32 s26, s26, s25')
        a(f'  s_mov_b32 s{64+u}, s26')
        a(f'  v_add_u32 v{X[0]}, s26, v{P}')
        a(f'  v_lshlrev_b32 v{X[1]}, 1, v{X[0]}')
        a(f'  buffer_load_ushort v{DI+u}, v{X[1]}, s[20:23], 0 offen')
        a(f'  v_lshlrev_b32 v{X[1]}, 5, v{X[0]}')
        a(f'  v_lshl_add_u32 v{OFF+u}, v{VROW4}, 3, v{X[1]}')
        a(f'  buffer_load_dwordx2 {vr(MM+2*u,2)}, v{OFF+u}, s[4:7], 0 offen')
    a('  s_waitcnt lgkmcnt(0)')
    a('  s_barrier')
    st()
    a('  s_mov_b32 s70, 0xc1200000')
    a('  s_mov_b32 s71, 0x3fb8aa3b')
    a('  s_waitcnt vmcnt(0)')
    for r in range(WD, CEN + 2):
        a(f'  v_lshlrev_b32 v{r}, 16, v{r}')
    for u in range(5):
        a(f'  s_cmp_ge_u32 s{64+u}, {E}')
        a(f'  s_cbranch_scc1 p2_epi_skip{u}')
        a(f'  s_add_u32 s26, s24, {16*u}')
        a('  s_lshl_b32 s26, s26, 11')
        a(f'  v_lshlrev_b32 v{X[0]}, 7, v{P}')
        a(f'  v_lshl_add_u32 v{X[0]}, v{VROW4}, {5 if US else 4}, v{X[0]}')
        a(f'  v_add_u32 v{X[0]}, s26, v{X[0]}')
        a(f'  ds_read_b128 {vr(S,4)}, v{X[0]}')
        a(f'  ds_read_b128 {vr(S+4,4)}, v{X[0]} offset:{16 if US else 64}')
        a(f'  v_lshlrev_b32 v{X[1]}, 16, v{DI+u}')
        a(f'  v_sub_f32 v{X[2]}, v{X[1]}, v{CEN}')
        a(f'  v_sub_f32 v{X[3]}, v{X[1]}, v{CEN+1}')
        def rnd2():
            a(f'  v_cvt_pk_bf16_f32 v{X[4]}, v{X[2]}, v{X[3]}')
            a(f'  v_lshlrev_b32 v{X[2]}, 16, v{X[4]}')
            a(f'  v_and_b32 v{X[3]}, s53, v{X[4]}')
        rnd2()
        a(f'  v_mul_f32 v{X[2]}, v{X[2]}, v{X[2]}')
        a(f'  v_mul_f32 v{X[3]}, v{X[3]}, v{X[3]}')
        rnd2()
        a(f'  v_mul_f32 v{X[2]}, s70, v{X[2]}')
        a(f'  v_mul_f32 v{X[3]}, s70, v{X[3]}')
        rnd2()
        a(f'  v_mul_f32 v{X[2]}, s71, v{X[2]}')
        a(f'  v_mul_f32 v{X[3]}, s71, v{X[3]}')
        a(f'  v_exp_f32 v{X[2]}, v{X[2]}')
        a(f'  v_exp_f32 v{X[3]}, v{X[3]}')
        a('  s_nop 0')
        a(f'  v_cvt_pk_bf16_f32 v{X[4]}, v{X[2]}, v{X[3]}')
        a(f'  v_lshlrev_b32 v{RB}, 16, v{X[4]}')
        a(f'  v_and_b32 v{RB+1}, s53, v{X[4]}')
        a('  s_waitcnt lgkmcnt(0)')
        order = [0, 1, 2, 3] if US else [0, 2, 1, 3]
        for i in range(4):
            a(f'  v_cvt_f32_f64 v{SF+order[i]}, {vr(S+2*i,2)}')
        a('  s_nop 1')
        a(f'  v_mfma_f32_16x16x4_f32 {vr(GG,4)}, v{WS}, v{RB}, 0')
        a(f'  v_mfma_f32_16x16x4_f32 {vr(HH,4)}, v{WR}, v{RB}, 0')
        a(f'  v_mfma_f32_16x16x4_f32 {vr(Y,4)}, v{WD}, v{SF}, 0')
        a(f'  v_mfma_f32_16x16x4_f32 {vr(GG,4)}, v{WS+1}, v{RB+1}, {vr(GG,4)}')
        a(f'  v_mfma_f32_16x16x4_f32 {vr(HH,4)}, v{WR+1}, v{RB+1}, {vr(HH,4)}')
        for q in range(1, 4):
            a(f'  v_mfma_f32_16x16x4_f32 {vr(Y,4)}, v{WD+q}, v{SF+q}, {vr(Y,4)}')
        a('  s_nop 15')
        for q in range(4):
            a(f'  v_mul_f32 v{Y+q}, v{Y+q}, v{GG+q}')
        a('  s_nop 1')
        a(f'  v_mfma_f32_16x16x4_f32 {vr(Z,4)}, v{WU}, v{Y}, 0')
        for q in range(1, 4):
            a(f'  v_mfma_f32_16x16x4_f32 {vr(Z,4)}, v{WU+q}, v{Y+q}, {vr(Z,4)}')
        a(f'  v_cvt_pk_bf16_f32 v{X[0]}, v{HH}, v{HH+1}')
        a(f'  v_cvt_pk_bf16_f32 v{X[1]}, v{HH+2}, v{HH+3}')
        a(f'  v_lshlrev_b32 v{HH}, 16, v{X[0]}')
        a(f'  v_and_b32 v{HH+1}, s53, v{X[0]}')
        a(f'  v_lshlrev_b32 v{HH+2}, 16, v{X[1]}')
        a(f'  v_and_b32 v{HH+3}, s53, v{X[1]}')
        a('  s_nop 15')
        a(f'  v_cvt_pk_bf16_f32 v{X[0]}, v{Z}, v{Z+1}')
        a(f'  v_cvt_pk_bf16_f32 v{X[1]}, v{Z+2}, v{Z+3}')
        a(f'  v_lshlrev_b32 v{Z}, 16, v{X[0]}')
        a(f'  v_and_b32 v{Z+1}, s53, v{X[0]}')
        a(f'  v_lshlrev_b32 v{Z+2}, 16, v{X[1]}')
        a(f'  v_and_b32 v{Z+3}, s53, v{X[1]}')
        for q in range(4):
            a(f'  v_mul_f32 v{Z+q}, v{Z+q}, v{HH+q}')
        a(f'  v_cvt_pk_bf16_f32 v{X[0]}, v{Z}, v{Z+1}')
        a(f'  v_cvt_pk_bf16_f32 v{X[1]}, v{Z+2}, v{Z+3}')
        a(f'  v_lshlrev_b32 v{Z}, 16, v{X[0]}')
        a(f'  v_and_b32 v{Z+1}, s53, v{X[0]}')
        a(f'  v_lshlrev_b32 v{Z+2}, 16, v{X[1]}')
        a(f'  v_and_b32 v{Z+3}, s53, v{X[1]}')
        a(f'  v_lshlrev_b32 v{X[2]}, 16, v{MM+2*u}')
        a(f'  v_and_b32 v{X[3]}, s53, v{MM+2*u}')
        a(f'  v_lshlrev_b32 v{X[4]}, 16, v{MM+2*u+1}')
        a(f'  v_and_b32 v{X[5]}, s53, v{MM+2*u+1}')
        for q in range(4):
            a(f'  v_add_f32 v{Z+q}, v{Z+q}, v{X[2+q]}')
        a(f'  v_cvt_pk_bf16_f32 v{Z}, v{Z}, v{Z+1}')
        a(f'  v_cvt_pk_bf16_f32 v{Z+1}, v{Z+2}, v{Z+3}')
        a(f'  buffer_store_dwordx2 {vr(Z,2)}, v{OFF+u}, s[16:19], 0 offen')
        a.label(f'p2_epi_skip{u}')
    if st.on:
        a('  s_waitcnt vmcnt(0)')
        st()
    st.flush('s24')
    a.label('p2_done')
    a('  s_endpgm')
    return maxv

def descriptor(a, name, vgpr, sgpr):
    a(f'.amdhsa_kernel {name}')
    a(f'  .amdhsa_next_free_vgpr {vgpr}')
    a(f'  .amdhsa_next_free_sgpr {sgpr}')
    a(f'  .amdhsa_accum_offset {(vgpr + 3) // 4 * 4}')
    a('  .amdhsa_group_segment_fixed_size 0')
    a('  .amdhsa_kernarg_size 112')
    a('  .amdhsa_user_sgpr_count 2')
    a('  .amdhsa_user_sgpr_kernarg_segment_ptr 1')
    a('  .amdhsa_system_sgpr_workgroup_id_x 1')
    a('  .amdhsa_float_denorm_mode_32 3')
    a('.end_amdhsa_kernel')

HEADER = '''; Kernarg layout (112 bytes, ptrs only, base s[0:1]):
; @launch kernel=p1_kernel grid=(256,1,1) block=(1024,1,1) lds=163840
; @launch kernel=p2_kernel grid=(256,1,1) block=(1024,1,1) lds=163840
.amdgcn_target "amdgcn-amd-amdhsa--gfx950"
.text
.globl p1_kernel
.globl p2_kernel
'''

def build(opt):
    a = Asm()
    h = HEADER
    if opt.get('nop'):
        extra = '; @launch kernel=nop_kernel grid=(256,1,1) block=(1024,1,1) lds=163840\n' * opt['nop']
        h = h.replace('; @launch kernel=p2_kernel', extra + '; @launch kernel=p2_kernel').replace('.globl p2_kernel', '.globl p2_kernel\n.globl nop_kernel')
    a(h.rstrip('\n'))
    if opt.get('nop'):
        a('.p2align 8')
        a('.type nop_kernel,@function')
        a.label('nop_kernel')
        a('  s_endpgm')
    gen_p1(a, opt)
    v2 = gen_p2(a, opt)
    a('.section .rodata,"a"')
    a('.p2align 6')
    ns = 102 if opt.get('stamp') else 80
    descriptor(a, 'p1_kernel', 128, ns)
    a('.p2align 6')
    descriptor(a, 'p2_kernel', v2, ns)
    if opt.get('nop'):
        a('.p2align 6')
        descriptor(a, 'nop_kernel', 128, 80)
    return a.text()

if __name__ == '__main__':
    out = sys.argv[1] if len(sys.argv) > 1 else 'standalone__molecular_angular_gemnet__graph.s'
    opt = {}
    for kv in sys.argv[2:]:
        k, v = kv.split('=')
        opt[k] = int(v) if v.lstrip('-').isdigit() else v
    open(out, 'w').write(build(opt))
    print('wrote', out)
```

```python
import struct, sys, math

def f32bits(x):
    return struct.unpack('<I', struct.pack('<f', x))[0]
def bits2f(b):
    return struct.unpack('<f', struct.pack('<I', b))[0]

E = 320000
T = 10240000
NT = 256
TILE = T // NT
TILE_LINES = 2752
TILE_BYTES = TILE_LINES * 128
REC_OFF = 0x40000
REC_BYTES = NT * TILE_BYTES
KSH = 14
NK = (E + (1 << KSH) - 1) >> KSH
HIST = 131072
TMP = HIST + NK * 1024
DUMMY_ROW = 1264

class Asm:
    def __init__(self):
        self.lines = []
    def __call__(self, s=''):
        for l in s.split('\n'):
            self.lines.append(l)
    def label(self, s):
        self.lines.append(s + ':')
    def text(self):
        return '\n'.join(self.lines) + '\n'

def vr(a, n=1):
    return f'v{a}' if n == 1 else f'v[{a}:{a+n-1}]'
def sr(a, n=1):
    return f's{a}' if n == 1 else f's[{a}:{a+n-1}]'

def srd(a, d, ptr, size):
    a(f'  s_mov_b32 s{d}, s{ptr}')
    a(f'  s_and_b32 s{d+1}, s{ptr+1}, 0xffff')
    a(f'  s_mov_b32 s{d+2}, {size}')
    a(f'  s_mov_b32 s{d+3}, 0x20000')

class Stamps:
    def __init__(self, a, on, name, slot):
        self.a = a; self.on = on; self.n = 0; self.name = name; self.slot = slot; self.dbg = False; self.dbg_idx = []
    def __call__(self):
        if not self.on: return
        a = self.a
        a('  s_memtime s[80:81]')
        a('  s_memrealtime s[82:83]')
        a('  s_waitcnt lgkmcnt(0)')
        a(f'  s_mov_b32 s{84+2*self.n}, s80')
        a(f'  s_mov_b32 s{85+2*self.n}, s82')
        self.n += 1
        assert self.n <= 9
    def flush(self, wavereg):
        if not self.on: return
        a = self.a
        if self.dbg:
            a(f'  s_cmp_lg_u32 {wavereg}, 0')
            a(f'  s_cbranch_scc1 {self.name}_nostamp')
            a('  s_load_dwordx2 s[80:81], s[0:1], 96')
            a('  s_waitcnt lgkmcnt(0)')
            if self.slot:
                a('  s_sub_u32 s80, s80, 512')
                a('  s_subb_u32 s81, s81, 0')
            a('  v_mov_b32 v1, 0')
            base = 0 if self.slot == 0 else 32
            a('  s_not_b32 s82, s85')
            a('  v_mov_b32 v2, s82')
            a(f'  global_atomic_umax v1, v2, s[80:81] offset:{base}')
            k = 1
            for i in self.dbg_idx:
                a(f'  v_mov_b32 v2, s{85+2*i}')
                a(f'  global_atomic_umax v1, v2, s[80:81] offset:{base+4*k}')
                k += 1
            a.label(f'{self.name}_nostamp')
            return
        a(f'  s_cmp_lg_u32 {wavereg}, 0')
        a(f'  s_cbranch_scc1 {self.name}_nostamp')
        a('  s_load_dwordx2 s[80:81], s[0:1], 104')
        a('  s_waitcnt lgkmcnt(0)')
        a(f'  s_add_u32 s80, s80, {200*1048576 + self.slot*65536}')
        a('  s_addc_u32 s81, s81, 0')
        a('  s_lshl_b32 s82, s2, 7')
        a('  v_mov_b32 v1, s82')
        for i in range(2*self.n):
            a(f'  v_mov_b32 v2, s{84+i}')
            a(f'  global_store_dword v1, v2, s[80:81] offset:{4*i}')
        a.label(f'{self.name}_nostamp')

def gen_p1(a, opt):
    st = Stamps(a, bool(opt.get('stamp')), 'p1', 0)
    st.dbg = opt.get('stamp') == 2; st.dbg_idx = [1, 3, 4, 5, 6, 7]
    NTF = ' nt' if opt.get('nt_in', True) else ''
    STF = ' nt' if opt.get('nt_st', False) else ''
    W0, W1, AUX = 8, 48, 88
    Tm = 108
    inv2pi = 1.0 / (2.0 * math.pi)
    chi_bits = f32bits(inv2pi) & 0xffffff00
    chi = bits2f(chi_bits)
    clo_bits = f32bits(inv2pi - chi)
    a('.p2align 8')
    a('.type p1_kernel,@function')
    a.label('p1_kernel')
    a('  s_cmp_ge_u32 s2, 256')
    a('  s_cbranch_scc1 p1_done')
    a('  s_load_dwordx4 s[32:35], s[0:1], 8')
    a('  s_load_dwordx2 s[36:37], s[0:1], 32')
    a('  s_load_dwordx2 s[38:39], s[0:1], 48')
    a('  s_load_dwordx2 s[28:29], s[0:1], 104')
    a('  v_lshlrev_b32 v1, 4, v0')
    a(f'  v_add_u32 v2, {HIST}, v1')
    for r in range(4, 8):
        a(f'  v_mov_b32 v{r}, 0')
    a('  ds_write_b128 v2, v[4:7]')
    a('  ds_write_b128 v2, v[4:7] offset:16384')
    a('  s_mul_i32 s40, s2, 160000')
    a('  s_mul_i32 s41, s2, 80000')
    a('  v_add_u32 v1, s40, v1')
    a('  v_lshlrev_b32 v3, 3, v0')
    a('  v_add_u32 v3, s41, v3')
    a('  v_readfirstlane_b32 s24, v0')
    a('  v_cmp_gt_u32 vcc, 1000, v0')
    a('  s_lshr_b32 s24, s24, 6')
    a('  s_mov_b64 s[44:45], vcc')
    for i in range(1, 10):
        a(f'  s_mov_b32 s{45+i}, {i*16000}')
        a(f'  s_mov_b32 s{55+i}, {i*8000}')
    a('  s_waitcnt lgkmcnt(0)')
    a('  s_load_dword s26, s[38:39], 0')
    srd(a, 4, 32, T * 4)
    srd(a, 8, 34, T * 4)
    srd(a, 12, 36, T * 2)
    st()
    a('  s_mov_b64 exec, s[44:45]')
    for i in range(10):
        so = '0' if i == 0 else f's{45+i}'
        sa = '0' if i == 0 else f's{55+i}'
        a(f'  buffer_load_dwordx4 {vr(W0+4*i,4)}, v1, s[4:7], {so} offen{NTF}')
        a(f'  buffer_load_dwordx4 {vr(W1+4*i,4)}, v1, s[8:11], {so} offen{NTF}')
        a(f'  buffer_load_dwordx2 {vr(AUX+2*i,2)}, v3, s[12:15], {sa} offen{NTF}')
    a('  s_mov_b32 s27, 0xffff0000')
    a(f'  s_mov_b32 s30, {chi_bits:#x}')
    a(f'  s_mov_b32 s31, {clo_bits:#x}')
    a(f'  s_mov_b32 s42, {HIST}')
    a('  s_mov_b32 s43, 0x3fc')
    a('  v_mov_b32 v2, 1')
    a('  s_waitcnt lgkmcnt(0)')
    a('  s_and_b32 s26, s26, 0xffff')
    a('  s_lshl_b32 s26, s26, 16')
    a('  s_barrier')
    t = [Tm + i for i in range(20)]
    for i in range(10):
        A = [W0 + 4*i + e for e in range(4)]
        O = [W1 + 4*i + e for e in range(4)]
        G = [AUX + 2*i, AUX + 2*i + 1]
        a(f'  s_waitcnt vmcnt({27 - 3*i})')
        a(f'  v_lshlrev_b32 v{t[0]}, 16, v{G[0]}')
        a(f'  v_and_b32 v{t[1]}, s27, v{G[0]}')
        a(f'  v_lshlrev_b32 v{t[2]}, 16, v{G[1]}')
        a(f'  v_and_b32 v{t[3]}, s27, v{G[1]}')
        for e in range(4):
            a(f'  v_mul_f32 v{t[e]}, s26, v{t[e]}')
        a(f'  v_cvt_pk_bf16_f32 v{t[4]}, v{t[0]}, v{t[1]}')
        a(f'  v_cvt_pk_bf16_f32 v{t[5]}, v{t[2]}, v{t[3]}')
        for e in range(4):
            a(f'  v_lshrrev_b32 v{t[8+e]}, 8, v{O[e]}')
        a(f'  v_lshlrev_b32 v{t[0]}, 16, v{t[4]}')
        a(f'  v_and_b32 v{t[1]}, s27, v{t[4]}')
        a(f'  v_lshlrev_b32 v{t[2]}, 16, v{t[5]}')
        a(f'  v_and_b32 v{t[3]}, s27, v{t[5]}')
        for e in range(4):
            a(f'  v_bfi_b32 v{t[8+e]}, 15, v{O[e]}, v{t[8+e]}')
        for e in range(4):
            a(f'  v_mul_f32 v{t[4+e]}, s30, v{t[e]}')
        for e in range(4):
            a(f'  v_fract_f32 v{t[4+e]}, v{t[4+e]}')
        for e in range(4):
            a(f'  v_fma_f32 v{t[4+e]}, v{t[e]}, s31, v{t[4+e]}')
        for e in range(4):
            a(f'  v_cos_f32 v{t[4+e]}, v{t[4+e]}')
        for e in range(4):
            a(f'  v_lshrrev_b32 v{t[12+e]}, 2, v{O[e]}')
        for e in range(4):
            a(f'  v_lshrrev_b32 v{t[e]}, {KSH}, v{A[e]}')
        for e in range(4):
            a(f'  v_and_b32 v{t[12+e]}, s43, v{t[12+e]}')
        for e in range(4):
            a(f'  v_lshl_or_b32 v{t[12+e]}, v{t[e]}, 10, v{t[12+e]}')
        a(f'  v_cvt_pk_bf16_f32 v{t[16]}, v{t[4]}, v{t[5]}')
        a(f'  v_cvt_pk_bf16_f32 v{t[17]}, v{t[6]}, v{t[7]}')
        for e in range(4):
            a(f'  v_add_u32 v{t[e]}, s42, v{t[12+e]}')
        for e in range(4):
            a(f'  ds_add_u32 v{t[e]}, v2')
        for e in range(4):
            a(f'  v_lshlrev_b32 v{A[e]}, 5, v{A[e]}')
        a(f'  v_lshl_or_b32 v{O[0]}, v{t[16]}, 16, v{t[8]}')
        a(f'  v_and_or_b32 v{O[1]}, v{t[16]}, s27, v{t[9]}')
        a(f'  v_lshl_or_b32 v{O[2]}, v{t[17]}, 16, v{t[10]}')
        a(f'  v_and_or_b32 v{O[3]}, v{t[17]}, s27, v{t[11]}')
        a(f'  v_lshl_or_b32 v{G[0]}, v{t[13]}, 16, v{t[12]}')
        a(f'  v_lshl_or_b32 v{G[1]}, v{t[15]}, 16, v{t[14]}')
    a('  s_mov_b64 exec, -1')
    a('  s_waitcnt lgkmcnt(0)')
    a('  s_barrier')
    st()
    a('  v_lshlrev_b32 v4, 2, v0')
    a(f'  v_add_u32 v4, {HIST}, v4')
    a('  s_cmp_ge_u32 s24, 4')
    a('  s_cbranch_scc1 p1_skip1')
    for k in range(NK):
        a(f'  ds_read_b32 v{t[k]}, v4 offset:{k*1024}')
    a('  v_mov_b32 v5, 0')
    a('  s_waitcnt lgkmcnt(0)')
    ra, rb = 5, 6
    for k in range(NK):
        a(f'  v_add_u32 v{rb}, v{ra}, v{t[k]}')
        a(f'  v_mov_b32 v{t[k]}, v{ra}')
        ra, rb = rb, ra
    assert ra == 5
    a('  v_add_u32 v6, 15, v5')
    a('  v_and_b32 v6, -16, v6')
    a('  v_mov_b32 v7, v6')
    for sh in (1, 2, 4, 8):
        a('  s_nop 1')
        a(f'  v_add_u32_dpp v7, v7, v7 row_shr:{sh} row_mask:0xf bank_mask:0xf bound_ctrl:0')
    a('  s_nop 1')
    a('  v_add_u32_dpp v7, v7, v7 row_bcast:15 row_mask:0xa bank_mask:0xf')
    a('  s_nop 1')
    a('  v_add_u32_dpp v7, v7, v7 row_bcast:31 row_mask:0xc bank_mask:0xf')
    a('  s_lshl_b32 s40, s24, 2')
    a(f'  s_add_u32 s40, s40, {TMP}')
    a('  v_mov_b32 v3, s40')
    a('  s_mov_b32 exec_lo, 0')
    a('  s_mov_b32 exec_hi, 0x80000000')
    a('  ds_write_b32 v3, v7')
    a('  s_mov_b64 exec, -1')
    a.label('p1_skip1')
    a('  s_waitcnt lgkmcnt(0)')
    a('  s_barrier')
    a(f'  v_mov_b32 v1, {TMP}')
    a('  ds_read2_b32 v[2:3], v1 offset0:0 offset1:1')
    a('  s_waitcnt lgkmcnt(0)')
    a('  v_readfirstlane_b32 s66, v2')
    a('  v_readfirstlane_b32 s67, v3')
    a('  ds_read2_b32 v[2:3], v1 offset0:2 offset1:3')
    a('  s_waitcnt lgkmcnt(0)')
    a('  v_readfirstlane_b32 s68, v2')
    a('  v_readfirstlane_b32 s69, v3')
    a('  s_nop 3')
    a('  s_add_u32 s70, s66, s67')
    a('  s_add_u32 s71, s70, s68')
    a('  s_add_u32 s72, s71, s69')
    a('  s_cmp_ge_u32 s24, 4')
    a('  s_cbranch_scc1 p1_skip2')
    a('  s_mov_b32 s73, 0')
    a('  s_cmp_eq_u32 s24, 1')
    a('  s_cselect_b32 s73, s66, s73')
    a('  s_cmp_eq_u32 s24, 2')
    a('  s_cselect_b32 s73, s70, s73')
    a('  s_cmp_eq_u32 s24, 3')
    a('  s_cselect_b32 s73, s71, s73')
    a('  v_sub_u32 v7, v7, v6')
    a('  v_add_u32 v7, s73, v7')
    for k in range(NK):
        a(f'  v_add_u32 v{t[k]}, v7, v{t[k]}')
        a(f'  ds_write_b32 v4, v{t[k]} offset:{k*1024}')
    a('  v_lshl_or_b32 v5, v7, 12, v5')
    srd(a, 20, 28, 262144)
    a('  s_lshl_b32 s40, s2, 2')
    a('  v_lshlrev_b32 v6, 10, v0')
    a('  buffer_store_dword v5, v6, s[20:23], s40 offen')
    a.label('p1_skip2')
    a('  s_waitcnt lgkmcnt(0)')
    a('  s_barrier')
    st()
    a('  v_mov_b32 v2, 1')
    a(f'  v_mov_b32 v1, {HIST}')
    a('  s_mov_b64 exec, s[44:45]')
    def rank_issue(b):
        base = (b & 1) * 8
        for x in range(8):
            rec = b * 8 + x
            j, h = rec >> 1, rec & 1
            ad = 4 + (x & 3)
            a(f'  v_add_u32_sdwa v{ad}, v1, v{AUX+j} dst_sel:DWORD dst_unused:UNUSED_PAD src0_sel:DWORD src1_sel:WORD_{h}')
            a(f'  ds_add_rtn_u32 v{t[base+x]}, v{ad}, v2')
    def rank_pack(b):
        base = (b & 1) * 8
        for x in range(0, 8, 2):
            j = (b * 8 + x) >> 1
            a(f'  v_lshl_or_b32 v{AUX+j}, v{t[base+x+1]}, 16, v{t[base+x]}')
    rank_issue(0)
    for b in range(5):
        if b + 1 < 5:
            rank_issue(b + 1)
            a('  s_waitcnt lgkmcnt(8)')
        else:
            a('  s_waitcnt lgkmcnt(0)')
        rank_pack(b)
    st()
    a('  s_mul_i32 s40, s2, %d' % TILE_BYTES)
    a('  s_add_u32 s28, s28, s40')
    a('  s_addc_u32 s29, s29, 0')
    a(f'  s_add_u32 s28, s28, {REC_OFF}')
    a('  s_addc_u32 s29, s29, 0')
    for i in range(1, 8):
        a(f'  s_mov_b32 s{45+i}, {i*16384}')
    a('  s_mov_b32 s43, 0x20000')
    for s in range(3):
        a('  s_mov_b64 exec, s[44:45]')
        if s > 0:
            a(f'  s_mov_b32 s42, {s*131072}')
        for x in range(40):
            j, h = x >> 1, x & 1
            ad = 4 + (x & 3)
            a(f'  v_lshlrev_b32_sdwa v{ad}, 3, v{AUX+j} dst_sel:DWORD dst_unused:UNUSED_PAD src0_sel:DWORD src1_sel:WORD_{h}')
            if s > 0:
                a(f'  v_subrev_u32 v{ad}, s42, v{ad}')
            a(f'  v_cmpx_gt_u32 vcc, s43, v{ad}')
            a(f'  ds_write2_b32 v{ad}, v{W0+x}, v{W1+x} offset0:0 offset1:1')
            a('  s_mov_b64 exec, s[44:45]')
        a('  s_mov_b64 exec, -1')
        a(f'  s_add_u32 s16, s28, {s*131072}')
        a('  s_addc_u32 s17, s29, 0')
        a('  s_and_b32 s17, s17, 0xffff')
        if s < 2:
            a('  s_mov_b32 s18, 131072')
        else:
            a('  s_sub_u32 s18, s72, 32768')
            a('  s_lshl_b32 s18, s18, 3')
        a('  s_mov_b32 s19, 0x20000')
        a('  v_lshlrev_b32 v1, 4, v0')
        a('  v_add_u32 v3, 0x10000, v1')
        a('  s_waitcnt lgkmcnt(0)')
        a('  s_barrier')
        nb = 2
        for bt in range(nb):
            nr = 4 if (s < 2 or bt == 0) else 2
            for u in range(nr):
                a(f'  ds_read_b128 {vr(t[4*u],4)}, v{1 if bt == 0 else 3} offset:{u*16384}')
            for u in range(nr):
                a(f'  s_waitcnt lgkmcnt({nr-1-u})')
                rnd = bt * 4 + u
                so = '0' if rnd == 0 else f's{45+rnd}'
                a(f'  buffer_store_dwordx4 {vr(t[4*u],4)}, v1, s[16:19], {so} offen{STF}')
            if bt == 0:
                a('  s_nop 1')
        if s < 2:
            a('  s_barrier')
        st()
    if st.on:
        a('  s_waitcnt vmcnt(0)')
        st()
    st.flush('s24')
    a.label('p1_done')
    a('  s_endpgm')

def gen_p2(a, opt):
    st = Stamps(a, bool(opt.get('stamp')), 'p2', 1)
    st.dbg = opt.get('stamp') == 2; st.dbg_idx = [1, 2, 3, 4]
    b_lag = opt.get('lag', 3)
    R = b_lag + 1
    US = opt.get('ushort', 0)
    NG = 16 if US else 8
    RNT = ' nt' if opt.get('nt_rec', False) else ''
    J4, J8, P = 1, 2, 3
    VN, VL, VB = 5, 6, 7
    Eq = [8, 9, 10, 11]
    SELA, SELB, VDUM, COL = 12, 13, 14, 15
    D = [16, 18]; PT = [20, 21]; LA = [22, 23]; GAD = [24, 25]; YR = [26, 27]; AB = [28, 29]
    X = [30, 31, 32, 33, 34, 35]
    VROW4, VLANE = 36, 37
    REC = [38 + 2*i for i in range(R)]
    nx = 38 + 2*R
    VV = [nx + i for i in range(R)]; nx += R
    CC = [nx + i for i in range(R)]; nx += R
    ROW = [nx + i for i in range(R)]; nx += R
    G = [nx + NG*i for i in range(R)]; nx += NG*R
    assert nx <= 128, nx
    maxv = nx
    a('.p2align 8')
    a('.type p2_kernel,@function')
    a.label('p2_kernel')
    a('  s_cmp_ge_u32 s2, 256')
    a('  s_cbranch_scc1 p2_done')
    a('  s_load_dwordx2 s[32:33], s[0:1], 0')
    a('  s_load_dwordx2 s[34:35], s[0:1], 24')
    a('  s_load_dwordx2 s[36:37], s[0:1], 40')
    a('  s_load_dwordx4 s[40:43], s[0:1], 56')
    a('  s_load_dwordx4 s[44:47], s[0:1], 72')
    a('  s_load_dwordx2 s[48:49], s[0:1], 88')
    a('  s_load_dwordx2 s[28:29], s[0:1], 104')
    a('  v_readfirstlane_b32 s24, v0')
    a(f'  v_and_b32 v{VLANE}, 63, v0')
    a(f'  v_and_b32 v{P}, 15, v0')
    a('  s_lshr_b32 s24, s24, 6')
    a(f'  v_lshlrev_b32 v{X[0]}, 2, v{P}')
    a('  s_lshl_b32 s25, s2, 8')
    a('  s_lshl_b32 s26, s24, 4')
    a('  s_add_u32 s25, s25, s26')
    a('  s_lshl_b32 s25, s25, 2')
    a('  s_waitcnt lgkmcnt(0)')
    srd(a, 12, 28, 262144)
    a(f'  buffer_load_dword v{VN}, v{X[0]}, s[12:15], s25 offen')
    st()
    srd(a, 4, 32, E * 32)
    if opt.get('mpf'):
        a('  s_mul_i32 s26, s2, 40000')
        a(f'  v_lshlrev_b32 v{X[5]}, 7, v0')
        a(f'  v_cmp_gt_u32 vcc, 313, v0')
        a('  s_and_b32 s26, s26, 0xffffff80')
        a('  s_and_saveexec_b64 s[56:57], vcc')
        a('  s_cbranch_execz p2_nopf')
        a(f'  buffer_load_dword v{ROW[0]}, v{X[5]}, s[4:7], s26 offen')
        a.label('p2_nopf')
        a('  s_mov_b64 exec, s[56:57]')
    a(f'  s_add_u32 s8, s28, {REC_OFF}')
    a('  s_addc_u32 s9, s29, 0')
    a('  s_and_b32 s9, s9, 0xffff')
    a(f'  s_mov_b32 s10, {REC_BYTES}')
    a('  s_mov_b32 s11, 0x20000')
    srd(a, 16, 48, E * 32)
    srd(a, 20, 34, E * 2)
    a('  v_lshlrev_b32 v4, 4, v0')
    for r in range(16, 20):
        a(f'  v_mov_b32 v{r}, 0')
    a(f'  v_add_u32 v{X[1]}, 0x10000, v4')
    a(f'  v_add_u32 v{X[2]}, 0x20000, v4')
    for i in range(4):
        a(f'  ds_write_b128 v4, v[16:19] offset:{i*16384}')
    for i in range(4):
        a(f'  ds_write_b128 v{X[1]}, v[16:19] offset:{i*16384}')
    for i in range(2):
        a(f'  ds_write_b128 v{X[2]}, v[16:19] offset:{i*16384}')
    if US:
        a(f'  v_lshlrev_b32 v{J4}, 1, v{P}')
        for r in range(G[0], G[0] + NG*R):
            a(f'  v_mov_b32 v{r}, 0')
    else:
        a(f'  v_and_b32 v{J4}, 7, v0')
        a(f'  v_lshlrev_b32 v{J4}, 2, v{J4}')
    a(f'  v_lshlrev_b32 v{J8}, 3, v{P}')
    a(f'  v_lshrrev_b32 v{VROW4}, 4, v{VLANE}')
    a(f'  v_mov_b32 v{VDUM}, {DUMMY_ROW*128}')
    a(f'  v_cmp_gt_u32 vcc, 8, v{P}')
    a(f'  v_mov_b32 v{X[3]}, 0x03020c0c')
    a(f'  v_mov_b32 v{X[4]}, 0x05040c0c')
    a(f'  v_cndmask_b32 v{SELA}, v{X[3]}, v{X[4]}, vcc')
    a(f'  v_mov_b32 v{X[3]}, 0x07060c0c')
    a(f'  v_mov_b32 v{X[4]}, 0x01000c0c')
    a(f'  v_cndmask_b32 v{SELB}, v{X[3]}, v{X[4]}, vcc')
    a('  s_waitcnt vmcnt(0)')
    a(f'  v_lshrrev_b32 v{VB}, 16, v{VN}')
    a(f'  v_and_b32 v{VN}, 0xffff, v{VN}')
    a(f'  v_add_u32 v{VL}, 15, v{VN}')
    a(f'  v_lshrrev_b32 v{VL}, 4, v{VL}')
    a('  s_lshl_b32 s26, s24, 4')
    a(f'  v_add_u32 v{X[0]}, s26, v{P}')
    a(f'  s_mov_b32 s27, {TILE_LINES}')
    a(f'  v_mul_lo_u32 v{X[0]}, v{X[0]}, s27')
    a(f'  v_add_u32 v{VB}, v{VB}, v{X[0]}')
    a(f'  v_mov_b32 v{X[0]}, v{VL}')
    for sh in (1, 2, 4, 8):
        a('  s_nop 1')
        a(f'  v_max_u32_dpp v{X[0]}, v{X[0]}, v{X[0]} row_ror:{sh} row_mask:0xf bank_mask:0xf')
    a('  s_nop 1')
    a(f'  v_readfirstlane_b32 s50, v{X[0]}')
    a('  s_mov_b32 s51, 0')
    a('  s_mov_b32 s52, 0xffffff80')
    a('  s_mov_b32 s53, 0xffff0000')
    a('  s_mov_b32 s54, 0x3ff80')
    a('  s_mov_b32 s55, 1')
    se = opt.get('sync', 0)
    if se:
        a(f'  s_mov_b32 s69, {opt.get("nsync", 38 // se)}')
    a.label('p2_outer')
    a('  s_cmp_ge_u32 s51, s50')
    a('  s_cbranch_scc1 p2_main_done')
    for k in range(4):
        a(f'  s_add_u32 s60, s51, {4*k}')
        a(f'  v_add_u32 v{X[0]}, s60, v{VROW4}')
        a(f'  v_cmp_gt_u32 vcc, v{VL}, v{X[0]}')
        a(f'  v_lshlrev_b32 v{X[1]}, 4, v{X[0]}')
        a(f'  v_sub_u32 v{X[1]}, v{VN}, v{X[1]}')
        a(f'  v_min_u32 v{X[1]}, 16, v{X[1]}')
        a(f'  v_add_u32 v{X[2]}, v{VB}, v{X[0]}')
        a(f'  v_lshl_or_b32 v{X[2]}, v{X[2]}, 7, v{X[1]}')
        a(f'  s_bcnt1_i32_b64 s61, vcc')
        a(f'  v_mbcnt_lo_u32_b32 v{X[3]}, vcc_lo, 0')
        a(f'  v_mbcnt_hi_u32_b32 v{X[3]}, vcc_hi, v{X[3]}')
        a(f'  v_sub_u32 v{X[4]}, v{VLANE}, v{X[3]}')
        a(f'  v_add_u32 v{X[4]}, s61, v{X[4]}')
        a(f'  v_cndmask_b32 v{X[4]}, v{X[4]}, v{X[3]}, vcc')
        a(f'  v_cndmask_b32 v{X[2]}, 0, v{X[2]}, vcc')
        a(f'  v_and_b32 v{X[5]}, 3, v{X[4]}')
        a(f'  v_lshlrev_b32 v{X[5]}, 6, v{X[5]}')
        a(f'  v_and_or_b32 v{X[5]}, v{X[4]}, -4, v{X[5]}')
        a(f'  ds_permute_b32 v{Eq[k]}, v{X[5]}, v{X[2]}')
        a(f'  s_add_u32 s{56+k}, s61, 3')
        a(f'  s_lshr_b32 s{56+k}, s{56+k}, 2')
    a('  s_add_u32 s62, s56, s57')
    a('  s_add_u32 s62, s62, s58')
    a('  s_add_u32 s62, s62, s59')
    a('  s_mov_b32 s63, 3')
    a('  s_waitcnt lgkmcnt(0)')
    uid = [0]
    def stageA(b):
        u = uid[0]; uid[0] += 1
        a.label(f'p2_chk{u}')
        a('  s_cmp_lg_u32 s56, 0')
        a(f'  s_cbranch_scc1 p2_go{u}')
        a('  s_cmp_eq_u32 s63, 0')
        a(f'  s_cbranch_scc1 p2_exh{u}')
        a(f'  v_mov_b32 v{Eq[0]}, v{Eq[1]}')
        a(f'  v_mov_b32 v{Eq[1]}, v{Eq[2]}')
        a(f'  v_mov_b32 v{Eq[2]}, v{Eq[3]}')
        a('  s_mov_b32 s56, s57')
        a('  s_mov_b32 s57, s58')
        a('  s_mov_b32 s58, s59')
        a('  s_sub_u32 s63, s63, 1')
        a(f'  s_branch p2_chk{u}')
        a.label(f'p2_exh{u}')
        a(f'  v_mov_b32 v{Eq[0]}, 0')
        a('  s_mov_b32 s56, 1')
        a('  s_nop 0')
        a.label(f'p2_go{u}')
        a('  s_sub_u32 s56, s56, 1')
        a(f'  v_mov_b32_dpp v{X[0]}, v{Eq[0]} row_newbcast:0 row_mask:0xf bank_mask:0xf')
        a(f'  v_mov_b32_dpp v{Eq[0]}, v{Eq[0]} row_shl:1 row_mask:0xf bank_mask:0xf bound_ctrl:0')
        a(f'  v_and_or_b32 v{X[1]}, v{X[0]}, s52, v{J8}')
        a(f'  v_and_b32 v{VV[b]}, 31, v{X[0]}')
        a(f'  buffer_load_dwordx2 {vr(REC[b],2)}, v{X[1]}, s[8:11], 0 offen{RNT}')
    def decode(b):
        a(f'  v_cmp_gt_u32 vcc, v{VV[b]}, v{P}')
        a(f'  v_lshlrev_b32 v{X[2]}, 7, v{REC[b]+1}')
        a(f'  v_and_b32 v{CC[b]}, s53, v{REC[b]+1}')
        a(f'  v_and_b32 v{X[2]}, s54, v{X[2]}')
        a(f'  v_cndmask_b32 v{COL}, 0, v{REC[b]}, vcc')
        if opt.get('colmask'):
            a(f'  v_and_b32 v{COL}, {opt["colmask"]}, v{COL}')
        a(f'  v_cndmask_b32 v{ROW[b]}, v{VDUM}, v{X[2]}, vcc')
        a('  s_nop 0')
    def gather(b, g):
        ad = GAD[g & 1]
        if US:
            a(f'  v_add_u32_dpp v{ad}, v{COL}, v{J4} row_newbcast:{g} row_mask:0xf bank_mask:0xf')
            if opt.get('no_gather'):
                a(f'  buffer_load_short_d16_hi v{G[b]+g}, v{J4}, s[4:7], 0 offen')
            else:
                a(f'  buffer_load_short_d16_hi v{G[b]+g}, v{ad}, s[4:7], 0 offen')
            return
        a(f'  v_add_u32_dpp v{ad}, v{COL}, v{J4} row_newbcast:{2*g} row_mask:0xf bank_mask:0x3')
        a(f'  v_add_u32_dpp v{ad}, v{COL}, v{J4} row_newbcast:{2*g+1} row_mask:0xf bank_mask:0xc')
        if opt.get('no_gather'):
            a(f'  buffer_load_dword v{G[b]+g}, v{J4}, s[4:7], 0 offen')
        else:
            a(f'  buffer_load_dword v{G[b]+g}, v{ad}, s[4:7], 0 offen')
    def consume(b, g):
        x = G[b] + g; y = YR[g & 1]
        if US:
            p, la, d = PT[g & 1], LA[g & 1], D[g & 1]
            a(f'  v_mul_f32_dpp v{p}, v{CC[b]}, v{x} row_newbcast:{g} row_mask:0xf bank_mask:0xf')
            a(f'  v_add_u32_dpp v{la}, v{ROW[b]}, v{J8} row_newbcast:{g} row_mask:0xf bank_mask:0xf')
            a(f'  v_cvt_f64_f32 {vr(d,2)}, v{p}')
            if not opt.get('no_ds'):
                a(f'  ds_add_f64 v{la}, {vr(d,2)}')
            return
        a(f'  v_mov_b32_dpp v{y}, v{x} row_ror:8 row_mask:0xf bank_mask:0xf')
        a(f'  v_add_u32_dpp v{LA[0]}, v{ROW[b]}, v{J8} row_newbcast:{2*g} row_mask:0xf bank_mask:0xf')
        a(f'  v_add_u32_dpp v{LA[1]}, v{ROW[b]}, v{J8} row_newbcast:{2*g+1} row_mask:0xf bank_mask:0xf')
        a(f'  v_perm_b32 v{AB[0]}, v{x}, v{y}, v{SELA}')
        a(f'  v_perm_b32 v{AB[1]}, v{x}, v{y}, v{SELB}')
        a(f'  v_mul_f32_dpp v{PT[0]}, v{CC[b]}, v{AB[0]} row_newbcast:{2*g} row_mask:0xf bank_mask:0xf')
        a(f'  v_mul_f32_dpp v{PT[1]}, v{CC[b]}, v{AB[1]} row_newbcast:{2*g+1} row_mask:0xf bank_mask:0xf')
        a(f'  v_cvt_f64_f32 {vr(D[0],2)}, v{PT[0]}')
        a(f'  v_cvt_f64_f32 {vr(D[1],2)}, v{PT[1]}')
        if not opt.get('no_ds'):
            a(f'  ds_add_f64 v{LA[0]}, {vr(D[0],2)}')
            a(f'  ds_add_f64 v{LA[1]}, {vr(D[1],2)}')
    for t in range(-2*b_lag, -b_lag):
        stageA((t + 2*b_lag) % R)
    for t in range(-b_lag, 0):
        stageA((t + 2*b_lag) % R)
        a(f'  s_waitcnt vmcnt({b_lag + NG*(t + b_lag)})')
        decode((t + b_lag) % R)
        for g in range(NG):
            gather((t + b_lag) % R, g)
    a('  s_cmp_eq_u32 s55, 0')
    a('  s_cbranch_scc1 p2_loop')
    a('  s_mov_b32 s55, 0')
    a('  s_barrier')
    st()
    a.label('p2_loop')
    for t in range(R):
        stageA((t + 2*b_lag) % R)
        a(f'  s_waitcnt vmcnt({(NG+1)*b_lag})')
        decode((t + b_lag) % R)
        for g in range(NG):
            gather((t + b_lag) % R, g)
            a(f'  s_waitcnt vmcnt({(NG+1)*b_lag})')
            consume(t, g)
        if se and (t % se) == se - 1:
            a('  s_cmp_eq_u32 s69, 0')
            a(f'  s_cbranch_scc1 p2_nosync{t}')
            a('  s_barrier')
            a('  s_sub_u32 s69, s69, 1')
            a.label(f'p2_nosync{t}')
        a('  s_sub_u32 s62, s62, 1')
        a('  s_cmp_eq_u32 s62, 0')
        if t < R - 1:
            a('  s_cbranch_scc1 p2_loop_exit')
        else:
            a('  s_cbranch_scc0 p2_loop')
    a.label('p2_loop_exit')
    a('  s_waitcnt vmcnt(0)')
    a('  s_add_u32 s51, s51, 16')
    a('  s_branch p2_outer')
    a.label('p2_main_done')
    a('  s_cmp_eq_u32 s55, 0')
    a('  s_cbranch_scc1 p2_epi')
    a('  s_waitcnt lgkmcnt(0)')
    a('  s_barrier')
    a.label('p2_epi')
    if se:
        a.label('p2_owed')
        a('  s_cmp_eq_u32 s69, 0')
        a('  s_cbranch_scc1 p2_owed_done')
        a('  s_barrier')
        a('  s_sub_u32 s69, s69, 1')
        a('  s_branch p2_owed')
        a.label('p2_owed_done')
    st()
    WD, WU, WS, WR, CEN = 38, 42, 46, 48, 50
    DI = 52
    MM = 58
    OFF = 68
    J2 = 73
    S = 74
    SF = 82
    RB = 86
    Y = 88; GG = 92; HH = 96; Z = 100
    maxv = max(maxv, 104)
    a(f'  v_lshlrev_b32 v{J2}, 1, v{P}')
    a(f'  v_lshlrev_b32 v{X[1]}, 7, v{VROW4}')
    a(f'  v_add_u32 v{X[1]}, v{X[1]}, v{J2}')
    for q in range(4):
        a(f'  global_load_ushort v{WD+q}, v{X[1]}, s[44:45] offset:{q*32}')
    for q in range(4):
        a(f'  global_load_ushort v{WU+q}, v{X[1]}, s[46:47] offset:{q*32}')
    a(f'  v_lshlrev_b32 v{X[2]}, 5, v{VROW4}')
    a(f'  v_add_u32 v{X[2]}, v{X[2]}, v{J2}')
    for q in range(2):
        a(f'  global_load_ushort v{WS+q}, v{X[2]}, s[42:43] offset:{q*128}')
    for q in range(2):
        a(f'  global_load_ushort v{WR+q}, v{X[2]}, s[40:41] offset:{q*128}')
    a(f'  v_lshlrev_b32 v{X[3]}, 1, v{VROW4}')
    for q in range(2):
        a(f'  global_load_ushort v{CEN+q}, v{X[3]}, s[36:37] offset:{q*8}')
    a(f'  s_lshl_b32 s25, s2, 4')
    for u in range(5):
        a(f'  s_add_u32 s26, s24, {16*u}')
        a('  s_lshl_b32 s26, s26, 12')
        a('  s_add_u32 s26, s26, s25')
        a(f'  s_mov_b32 s{64+u}, s26')
        a(f'  v_add_u32 v{X[0]}, s26, v{P}')
        a(f'  v_lshlrev_b32 v{X[1]}, 1, v{X[0]}')
        a(f'  buffer_load_ushort v{DI+u}, v{X[1]}, s[20:23], 0 offen')
        a(f'  v_lshlrev_b32 v{X[1]}, 5, v{X[0]}')
        a(f'  v_lshl_add_u32 v{OFF+u}, v{VROW4}, 3, v{X[1]}')
        a(f'  buffer_load_dwordx2 {vr(MM+2*u,2)}, v{OFF+u}, s[4:7], 0 offen')
    a('  s_waitcnt lgkmcnt(0)')
    a('  s_barrier')
    st()
    a('  s_mov_b32 s70, 0xc1200000')
    a('  s_mov_b32 s71, 0x3fb8aa3b')
    a('  s_waitcnt vmcnt(0)')
    for r in range(WD, CEN + 2):
        a(f'  v_lshlrev_b32 v{r}, 16, v{r}')
    for u in range(5):
        a(f'  s_cmp_ge_u32 s{64+u}, {E}')
        a(f'  s_cbranch_scc1 p2_epi_skip{u}')
        a(f'  s_add_u32 s26, s24, {16*u}')
        a('  s_lshl_b32 s26, s26, 11')
        a(f'  v_lshlrev_b32 v{X[0]}, 7, v{P}')
        a(f'  v_lshl_add_u32 v{X[0]}, v{VROW4}, {5 if US else 4}, v{X[0]}')
        a(f'  v_add_u32 v{X[0]}, s26, v{X[0]}')
        a(f'  ds_read_b128 {vr(S,4)}, v{X[0]}')
        a(f'  ds_read_b128 {vr(S+4,4)}, v{X[0]} offset:{16 if US else 64}')
        a(f'  v_lshlrev_b32 v{X[1]}, 16, v{DI+u}')
        a(f'  v_sub_f32 v{X[2]}, v{X[1]}, v{CEN}')
        a(f'  v_sub_f32 v{X[3]}, v{X[1]}, v{CEN+1}')
        def rnd2():
            a(f'  v_cvt_pk_bf16_f32 v{X[4]}, v{X[2]}, v{X[3]}')
            a(f'  v_lshlrev_b32 v{X[2]}, 16, v{X[4]}')
            a(f'  v_and_b32 v{X[3]}, s53, v{X[4]}')
        rnd2()
        a(f'  v_mul_f32 v{X[2]}, v{X[2]}, v{X[2]}')
        a(f'  v_mul_f32 v{X[3]}, v{X[3]}, v{X[3]}')
        rnd2()
        a(f'  v_mul_f32 v{X[2]}, s70, v{X[2]}')
        a(f'  v_mul_f32 v{X[3]}, s70, v{X[3]}')
        rnd2()
        a(f'  v_mul_f32 v{X[2]}, s71, v{X[2]}')
        a(f'  v_mul_f32 v{X[3]}, s71, v{X[3]}')
        a(f'  v_exp_f32 v{X[2]}, v{X[2]}')
        a(f'  v_exp_f32 v{X[3]}, v{X[3]}')
        a('  s_nop 0')
        a(f'  v_cvt_pk_bf16_f32 v{X[4]}, v{X[2]}, v{X[3]}')
        a(f'  v_lshlrev_b32 v{RB}, 16, v{X[4]}')
        a(f'  v_and_b32 v{RB+1}, s53, v{X[4]}')
        a('  s_waitcnt lgkmcnt(0)')
        order = [0, 1, 2, 3] if US else [0, 2, 1, 3]
        for i in range(4):
            a(f'  v_cvt_f32_f64 v{SF+order[i]}, {vr(S+2*i,2)}')
        a('  s_nop 1')
        a(f'  v_mfma_f32_16x16x4_f32 {vr(GG,4)}, v{WS}, v{RB}, 0')
        a(f'  v_mfma_f32_16x16x4_f32 {vr(HH,4)}, v{WR}, v{RB}, 0')
        a(f'  v_mfma_f32_16x16x4_f32 {vr(Y,4)}, v{WD}, v{SF}, 0')
        a(f'  v_mfma_f32_16x16x4_f32 {vr(GG,4)}, v{WS+1}, v{RB+1}, {vr(GG,4)}')
        a(f'  v_mfma_f32_16x16x4_f32 {vr(HH,4)}, v{WR+1}, v{RB+1}, {vr(HH,4)}')
        for q in range(1, 4):
            a(f'  v_mfma_f32_16x16x4_f32 {vr(Y,4)}, v{WD+q}, v{SF+q}, {vr(Y,4)}')
        a('  s_nop 15')
        for q in range(4):
            a(f'  v_mul_f32 v{Y+q}, v{Y+q}, v{GG+q}')
        a('  s_nop 1')
        a(f'  v_mfma_f32_16x16x4_f32 {vr(Z,4)}, v{WU}, v{Y}, 0')
        for q in range(1, 4):
            a(f'  v_mfma_f32_16x16x4_f32 {vr(Z,4)}, v{WU+q}, v{Y+q}, {vr(Z,4)}')
        a(f'  v_cvt_pk_bf16_f32 v{X[0]}, v{HH}, v{HH+1}')
        a(f'  v_cvt_pk_bf16_f32 v{X[1]}, v{HH+2}, v{HH+3}')
        a(f'  v_lshlrev_b32 v{HH}, 16, v{X[0]}')
        a(f'  v_and_b32 v{HH+1}, s53, v{X[0]}')
        a(f'  v_lshlrev_b32 v{HH+2}, 16, v{X[1]}')
        a(f'  v_and_b32 v{HH+3}, s53, v{X[1]}')
        a('  s_nop 15')
        a(f'  v_cvt_pk_bf16_f32 v{X[0]}, v{Z}, v{Z+1}')
        a(f'  v_cvt_pk_bf16_f32 v{X[1]}, v{Z+2}, v{Z+3}')
        a(f'  v_lshlrev_b32 v{Z}, 16, v{X[0]}')
        a(f'  v_and_b32 v{Z+1}, s53, v{X[0]}')
        a(f'  v_lshlrev_b32 v{Z+2}, 16, v{X[1]}')
        a(f'  v_and_b32 v{Z+3}, s53, v{X[1]}')
        for q in range(4):
            a(f'  v_mul_f32 v{Z+q}, v{Z+q}, v{HH+q}')
        a(f'  v_cvt_pk_bf16_f32 v{X[0]}, v{Z}, v{Z+1}')
        a(f'  v_cvt_pk_bf16_f32 v{X[1]}, v{Z+2}, v{Z+3}')
        a(f'  v_lshlrev_b32 v{Z}, 16, v{X[0]}')
        a(f'  v_and_b32 v{Z+1}, s53, v{X[0]}')
        a(f'  v_lshlrev_b32 v{Z+2}, 16, v{X[1]}')
        a(f'  v_and_b32 v{Z+3}, s53, v{X[1]}')
        a(f'  v_lshlrev_b32 v{X[2]}, 16, v{MM+2*u}')
        a(f'  v_and_b32 v{X[3]}, s53, v{MM+2*u}')
        a(f'  v_lshlrev_b32 v{X[4]}, 16, v{MM+2*u+1}')
        a(f'  v_and_b32 v{X[5]}, s53, v{MM+2*u+1}')
        for q in range(4):
            a(f'  v_add_f32 v{Z+q}, v{Z+q}, v{X[2+q]}')
        a(f'  v_cvt_pk_bf16_f32 v{Z}, v{Z}, v{Z+1}')
        a(f'  v_cvt_pk_bf16_f32 v{Z+1}, v{Z+2}, v{Z+3}')
        a(f'  buffer_store_dwordx2 {vr(Z,2)}, v{OFF+u}, s[16:19], 0 offen')
        a.label(f'p2_epi_skip{u}')
    if st.on:
        a('  s_waitcnt vmcnt(0)')
        st()
    st.flush('s24')
    a.label('p2_done')
    a('  s_endpgm')
    return maxv

def descriptor(a, name, vgpr, sgpr):
    a(f'.amdhsa_kernel {name}')
    a(f'  .amdhsa_next_free_vgpr {vgpr}')
    a(f'  .amdhsa_next_free_sgpr {sgpr}')
    a(f'  .amdhsa_accum_offset {(vgpr + 3) // 4 * 4}')
    a('  .amdhsa_group_segment_fixed_size 0')
    a('  .amdhsa_kernarg_size 112')
    a('  .amdhsa_user_sgpr_count 2')
    a('  .amdhsa_user_sgpr_kernarg_segment_ptr 1')
    a('  .amdhsa_system_sgpr_workgroup_id_x 1')
    a('  .amdhsa_float_denorm_mode_32 3')
    a('.end_amdhsa_kernel')

HEADER = '''; Kernarg layout (112 bytes, ptrs only, base s[0:1]):
; @launch kernel=p1_kernel grid=(256,1,1) block=(1024,1,1) lds=163840
; @launch kernel=p2_kernel grid=(256,1,1) block=(1024,1,1) lds=163840
.amdgcn_target "amdgcn-amd-amdhsa--gfx950"
.text
.globl p1_kernel
.globl p2_kernel
'''

def build(opt):
    a = Asm()
    h = HEADER
    if opt.get('nop'):
        extra = '; @launch kernel=nop_kernel grid=(256,1,1) block=(1024,1,1) lds=163840\n' * opt['nop']
        h = h.replace('; @launch kernel=p2_kernel', extra + '; @launch kernel=p2_kernel').replace('.globl p2_kernel', '.globl p2_kernel\n.globl nop_kernel')
    a(h.rstrip('\n'))
    if opt.get('nop'):
        a('.p2align 8')
        a('.type nop_kernel,@function')
        a.label('nop_kernel')
        a('  s_endpgm')
    gen_p1(a, opt)
    v2 = gen_p2(a, opt)
    a('.section .rodata,"a"')
    a('.p2align 6')
    ns = 102 if opt.get('stamp') else 80
    descriptor(a, 'p1_kernel', 128, ns)
    a('.p2align 6')
    descriptor(a, 'p2_kernel', v2, ns)
    if opt.get('nop'):
        a('.p2align 6')
        descriptor(a, 'nop_kernel', 128, 80)
    return a.text()

if __name__ == '__main__':
    out = sys.argv[1] if len(sys.argv) > 1 else 'standalone__molecular_angular_gemnet__graph.s'
    opt = {}
    for kv in sys.argv[2:]:
        k, v = kv.split('=')
        opt[k] = int(v) if v.lstrip('-').isdigit() else v
    open(out, 'w').write(build(opt))
    print('wrote', out)
```

```python
import struct, sys, math

def f32bits(x):
    return struct.unpack('<I', struct.pack('<f', x))[0]
def bits2f(b):
    return struct.unpack('<f', struct.pack('<I', b))[0]

E = 320000
T = 10240000
NT = 256
TILE = T // NT
TILE_LINES = 2752
TILE_BYTES = TILE_LINES * 128
REC_OFF = 0x40000
REC_BYTES = NT * TILE_BYTES
KSH = 14
NK = (E + (1 << KSH) - 1) >> KSH
HIST = 131072
TMP = HIST + NK * 1024
DUMMY_ROW = 1264

class Asm:
    def __init__(self):
        self.lines = []
    def __call__(self, s=''):
        for l in s.split('\n'):
            self.lines.append(l)
    def label(self, s):
        self.lines.append(s + ':')
    def text(self):
        return '\n'.join(self.lines) + '\n'

def vr(a, n=1):
    return f'v{a}' if n == 1 else f'v[{a}:{a+n-1}]'
def sr(a, n=1):
    return f's{a}' if n == 1 else f's[{a}:{a+n-1}]'

def srd(a, d, ptr, size):
    a(f'  s_mov_b32 s{d}, s{ptr}')
    a(f'  s_and_b32 s{d+1}, s{ptr+1}, 0xffff')
    a(f'  s_mov_b32 s{d+2}, {size}')
    a(f'  s_mov_b32 s{d+3}, 0x20000')

class Stamps:
    def __init__(self, a, on, name, slot):
        self.a = a; self.on = on; self.n = 0; self.name = name; self.slot = slot; self.dbg = False; self.dbg_idx = []
    def __call__(self):
        if not self.on: return
        a = self.a
        a('  s_memtime s[80:81]')
        a('  s_memrealtime s[82:83]')
        a('  s_waitcnt lgkmcnt(0)')
        a(f'  s_mov_b32 s{84+2*self.n}, s80')
        a(f'  s_mov_b32 s{85+2*self.n}, s82')
        self.n += 1
        assert self.n <= 9
    def flush(self, wavereg):
        if not self.on: return
        a = self.a
        if self.dbg:
            a(f'  s_cmp_lg_u32 {wavereg}, 0')
            a(f'  s_cbranch_scc1 {self.name}_nostamp')
            a('  s_load_dwordx2 s[80:81], s[0:1], 96')
            a('  s_waitcnt lgkmcnt(0)')
            if self.slot:
                a('  s_sub_u32 s80, s80, 512')
                a('  s_subb_u32 s81, s81, 0')
            a('  v_mov_b32 v1, 0')
            base = 0 if self.slot == 0 else 32
            a('  s_not_b32 s82, s85')
            a('  v_mov_b32 v2, s82')
            a(f'  global_atomic_umax v1, v2, s[80:81] offset:{base}')
            k = 1
            for i in self.dbg_idx:
                a(f'  v_mov_b32 v2, s{85+2*i}')
                a(f'  global_atomic_umax v1, v2, s[80:81] offset:{base+4*k}')
                k += 1
            a.label(f'{self.name}_nostamp')
            return
        a(f'  s_cmp_lg_u32 {wavereg}, 0')
        a(f'  s_cbranch_scc1 {self.name}_nostamp')
        a('  s_load_dwordx2 s[80:81], s[0:1], 104')
        a('  s_waitcnt lgkmcnt(0)')
        a(f'  s_add_u32 s80, s80, {200*1048576 + self.slot*65536}')
        a('  s_addc_u32 s81, s81, 0')
        a('  s_lshl_b32 s82, s2, 7')
        a('  v_mov_b32 v1, s82')
        for i in range(2*self.n):
            a(f'  v_mov_b32 v2, s{84+i}')
            a(f'  global_store_dword v1, v2, s[80:81] offset:{4*i}')
        a.label(f'{self.name}_nostamp')

def gen_p1(a, opt):
    st = Stamps(a, bool(opt.get('stamp')), 'p1', 0)
    st.dbg = opt.get('stamp') == 2; st.dbg_idx = [1, 3, 4, 5, 6, 7]
    NTF = ' nt' if opt.get('nt_in', True) else ''
    STF = ' nt' if opt.get('nt_st', False) else ''
    W0, W1, AUX = 8, 48, 88
    Tm = 108
    inv2pi = 1.0 / (2.0 * math.pi)
    chi_bits = f32bits(inv2pi) & 0xffffff00
    chi = bits2f(chi_bits)
    clo_bits = f32bits(inv2pi - chi)
    a('.p2align 8')
    a('.type p1_kernel,@function')
    a.label('p1_kernel')
    a('  s_cmp_ge_u32 s2, 256')
    a('  s_cbranch_scc1 p1_done')
    a('  s_load_dwordx4 s[32:35], s[0:1], 8')
    a('  s_load_dwordx2 s[36:37], s[0:1], 32')
    a('  s_load_dwordx2 s[38:39], s[0:1], 48')
    a('  s_load_dwordx2 s[28:29], s[0:1], 104')
    a('  v_lshlrev_b32 v1, 4, v0')
    a(f'  v_add_u32 v2, {HIST}, v1')
    for r in range(4, 8):
        a(f'  v_mov_b32 v{r}, 0')
    a('  ds_write_b128 v2, v[4:7]')
    a('  ds_write_b128 v2, v[4:7] offset:16384')
    a('  s_mul_i32 s40, s2, 160000')
    a('  s_mul_i32 s41, s2, 80000')
    a('  v_add_u32 v1, s40, v1')
    a('  v_lshlrev_b32 v3, 3, v0')
    a('  v_add_u32 v3, s41, v3')
    a('  v_readfirstlane_b32 s24, v0')
    a('  v_cmp_gt_u32 vcc, 1000, v0')
    a('  s_lshr_b32 s24, s24, 6')
    a('  s_mov_b64 s[44:45], vcc')
    for i in range(1, 10):
        a(f'  s_mov_b32 s{45+i}, {i*16000}')
        a(f'  s_mov_b32 s{55+i}, {i*8000}')
    a('  s_waitcnt lgkmcnt(0)')
    a('  s_load_dword s26, s[38:39], 0')
    srd(a, 4, 32, T * 4)
    srd(a, 8, 34, T * 4)
    srd(a, 12, 36, T * 2)
    st()
    a('  s_mov_b64 exec, s[44:45]')
    for i in range(10):
        so = '0' if i == 0 else f's{45+i}'
        sa = '0' if i == 0 else f's{55+i}'
        a(f'  buffer_load_dwordx4 {vr(W0+4*i,4)}, v1, s[4:7], {so} offen{NTF}')
        a(f'  buffer_load_dwordx4 {vr(W1+4*i,4)}, v1, s[8:11], {so} offen{NTF}')
        a(f'  buffer_load_dwordx2 {vr(AUX+2*i,2)}, v3, s[12:15], {sa} offen{NTF}')
    a('  s_mov_b32 s27, 0xffff0000')
    a(f'  s_mov_b32 s30, {chi_bits:#x}')
    a(f'  s_mov_b32 s31, {clo_bits:#x}')
    a(f'  s_mov_b32 s42, {HIST}')
    a('  s_mov_b32 s43, 0x3fc')
    a('  v_mov_b32 v2, 1')
    a('  s_waitcnt lgkmcnt(0)')
    a('  s_and_b32 s26, s26, 0xffff')
    a('  s_lshl_b32 s26, s26, 16')
    a('  s_barrier')
    t = [Tm + i for i in range(20)]
    for i in range(10):
        A = [W0 + 4*i + e for e in range(4)]
        O = [W1 + 4*i + e for e in range(4)]
        G = [AUX + 2*i, AUX + 2*i + 1]
        a(f'  s_waitcnt vmcnt({27 - 3*i})')
        a(f'  v_lshlrev_b32 v{t[0]}, 16, v{G[0]}')
        a(f'  v_and_b32 v{t[1]}, s27, v{G[0]}')
        a(f'  v_lshlrev_b32 v{t[2]}, 16, v{G[1]}')
        a(f'  v_and_b32 v{t[3]}, s27, v{G[1]}')
        for e in range(4):
            a(f'  v_mul_f32 v{t[e]}, s26, v{t[e]}')
        a(f'  v_cvt_pk_bf16_f32 v{t[4]}, v{t[0]}, v{t[1]}')
        a(f'  v_cvt_pk_bf16_f32 v{t[5]}, v{t[2]}, v{t[3]}')
        for e in range(4):
            a(f'  v_lshrrev_b32 v{t[8+e]}, 8, v{O[e]}')
        a(f'  v_lshlrev_b32 v{t[0]}, 16, v{t[4]}')
        a(f'  v_and_b32 v{t[1]}, s27, v{t[4]}')
        a(f'  v_lshlrev_b32 v{t[2]}, 16, v{t[5]}')
        a(f'  v_and_b32 v{t[3]}, s27, v{t[5]}')
        for e in range(4):
            a(f'  v_bfi_b32 v{t[8+e]}, 15, v{O[e]}, v{t[8+e]}')
        for e in range(4):
            a(f'  v_mul_f32 v{t[4+e]}, s30, v{t[e]}')
        for e in range(4):
            a(f'  v_fract_f32 v{t[4+e]}, v{t[4+e]}')
        for e in range(4):
            a(f'  v_fma_f32 v{t[4+e]}, v{t[e]}, s31, v{t[4+e]}')
        for e in range(4):
            a(f'  v_cos_f32 v{t[4+e]}, v{t[4+e]}')
        for e in range(4):
            a(f'  v_lshrrev_b32 v{t[12+e]}, 2, v{O[e]}')
        for e in range(4):
            a(f'  v_lshrrev_b32 v{t[e]}, {KSH}, v{A[e]}')
        for e in range(4):
            a(f'  v_and_b32 v{t[12+e]}, s43, v{t[12+e]}')
        for e in range(4):
            a(f'  v_lshl_or_b32 v{t[12+e]}, v{t[e]}, 10, v{t[12+e]}')
        a(f'  v_cvt_pk_bf16_f32 v{t[16]}, v{t[4]}, v{t[5]}')
        a(f'  v_cvt_pk_bf16_f32 v{t[17]}, v{t[6]}, v{t[7]}')
        for e in range(4):
            a(f'  v_add_u32 v{t[e]}, s42, v{t[12+e]}')
        for e in range(4):
            a(f'  ds_add_u32 v{t[e]}, v2')
        for e in range(4):
            a(f'  v_lshlrev_b32 v{A[e]}, 5, v{A[e]}')
        a(f'  v_lshl_or_b32 v{O[0]}, v{t[16]}, 16, v{t[8]}')
        a(f'  v_and_or_b32 v{O[1]}, v{t[16]}, s27, v{t[9]}')
        a(f'  v_lshl_or_b32 v{O[2]}, v{t[17]}, 16, v{t[10]}')
        a(f'  v_and_or_b32 v{O[3]}, v{t[17]}, s27, v{t[11]}')
        a(f'  v_lshl_or_b32 v{G[0]}, v{t[13]}, 16, v{t[12]}')
        a(f'  v_lshl_or_b32 v{G[1]}, v{t[15]}, 16, v{t[14]}')
    a('  s_mov_b64 exec, -1')
    a('  s_waitcnt lgkmcnt(0)')
    a('  s_barrier')
    st()
    if opt.get('mpf1'):
        a('  s_sub_u32 s40, s24, 4')
        a('  s_cmp_ge_u32 s40, 5')
        a('  s_cbranch_scc1 p1_nopf')
        a('  s_load_dwordx2 s[74:75], s[0:1], 0')
        a('  s_mul_i32 s41, s2, 40000')
        a('  s_and_b32 s41, s41, 0xffffff80')
        a('  v_subrev_u32 v5, 256, v0')
        a('  v_lshlrev_b32 v5, 7, v5')
        a('  s_waitcnt lgkmcnt(0)')
        srd(a, 76, 74, E * 32)
        a(f'  buffer_load_dword v{t[16]}, v5, s[76:79], s41 offen')
        a.label('p1_nopf')
    a('  v_lshlrev_b32 v4, 2, v0')
    a(f'  v_add_u32 v4, {HIST}, v4')
    a('  s_cmp_ge_u32 s24, 4')
    a('  s_cbranch_scc1 p1_skip1')
    for k in range(NK):
        a(f'  ds_read_b32 v{t[k]}, v4 offset:{k*1024}')
    a('  v_mov_b32 v5, 0')
    a('  s_waitcnt lgkmcnt(0)')
    ra, rb = 5, 6
    for k in range(NK):
        a(f'  v_add_u32 v{rb}, v{ra}, v{t[k]}')
        a(f'  v_mov_b32 v{t[k]}, v{ra}')
        ra, rb = rb, ra
    assert ra == 5
    a('  v_add_u32 v6, 15, v5')
    a('  v_and_b32 v6, -16, v6')
    a('  v_mov_b32 v7, v6')
    for sh in (1, 2, 4, 8):
        a('  s_nop 1')
        a(f'  v_add_u32_dpp v7, v7, v7 row_shr:{sh} row_mask:0xf bank_mask:0xf bound_ctrl:0')
    a('  s_nop 1')
    a('  v_add_u32_dpp v7, v7, v7 row_bcast:15 row_mask:0xa bank_mask:0xf')
    a('  s_nop 1')
    a('  v_add_u32_dpp v7, v7, v7 row_bcast:31 row_mask:0xc bank_mask:0xf')
    a('  s_lshl_b32 s40, s24, 2')
    a(f'  s_add_u32 s40, s40, {TMP}')
    a('  v_mov_b32 v3, s40')
    a('  s_mov_b32 exec_lo, 0')
    a('  s_mov_b32 exec_hi, 0x80000000')
    a('  ds_write_b32 v3, v7')
    a('  s_mov_b64 exec, -1')
    a.label('p1_skip1')
    a('  s_waitcnt lgkmcnt(0)')
    a('  s_barrier')
    a(f'  v_mov_b32 v1, {TMP}')
    a('  ds_read2_b32 v[2:3], v1 offset0:0 offset1:1')
    a('  s_waitcnt lgkmcnt(0)')
    a('  v_readfirstlane_b32 s66, v2')
    a('  v_readfirstlane_b32 s67, v3')
    a('  ds_read2_b32 v[2:3], v1 offset0:2 offset1:3')
    a('  s_waitcnt lgkmcnt(0)')
    a('  v_readfirstlane_b32 s68, v2')
    a('  v_readfirstlane_b32 s69, v3')
    a('  s_nop 3')
    a('  s_add_u32 s70, s66, s67')
    a('  s_add_u32 s71, s70, s68')
    a('  s_add_u32 s72, s71, s69')
    a('  s_cmp_ge_u32 s24, 4')
    a('  s_cbranch_scc1 p1_skip2')
    a('  s_mov_b32 s73, 0')
    a('  s_cmp_eq_u32 s24, 1')
    a('  s_cselect_b32 s73, s66, s73')
    a('  s_cmp_eq_u32 s24, 2')
    a('  s_cselect_b32 s73, s70, s73')
    a('  s_cmp_eq_u32 s24, 3')
    a('  s_cselect_b32 s73, s71, s73')
    a('  v_sub_u32 v7, v7, v6')
    a('  v_add_u32 v7, s73, v7')
    for k in range(NK):
        a(f'  v_add_u32 v{t[k]}, v7, v{t[k]}')
        a(f'  ds_write_b32 v4, v{t[k]} offset:{k*1024}')
    a('  v_lshl_or_b32 v5, v7, 12, v5')
    srd(a, 20, 28, 262144)
    a('  s_lshl_b32 s40, s2, 2')
    a('  v_lshlrev_b32 v6, 10, v0')
    a('  buffer_store_dword v5, v6, s[20:23], s40 offen')
    a.label('p1_skip2')
    a('  s_waitcnt lgkmcnt(0)')
    a('  s_barrier')
    st()
    a('  v_mov_b32 v2, 1')
    a(f'  v_mov_b32 v1, {HIST}')
    a('  s_mov_b64 exec, s[44:45]')
    def rank_issue(b):
        base = (b & 1) * 8
        for x in range(8):
            rec = b * 8 + x
            j, h = rec >> 1, rec & 1
            ad = 4 + (x & 3)
            a(f'  v_add_u32_sdwa v{ad}, v1, v{AUX+j} dst_sel:DWORD dst_unused:UNUSED_PAD src0_sel:DWORD src1_sel:WORD_{h}')
            a(f'  ds_add_rtn_u32 v{t[base+x]}, v{ad}, v2')
    def rank_pack(b):
        base = (b & 1) * 8
        for x in range(0, 8, 2):
            j = (b * 8 + x) >> 1
            a(f'  v_lshl_or_b32 v{AUX+j}, v{t[base+x+1]}, 16, v{t[base+x]}')
    rank_issue(0)
    for b in range(5):
        if b + 1 < 5:
            rank_issue(b + 1)
            a('  s_waitcnt lgkmcnt(8)')
        else:
            a('  s_waitcnt lgkmcnt(0)')
        rank_pack(b)
    st()
    a('  s_mul_i32 s40, s2, %d' % TILE_BYTES)
    a('  s_add_u32 s28, s28, s40')
    a('  s_addc_u32 s29, s29, 0')
    a(f'  s_add_u32 s28, s28, {REC_OFF}')
    a('  s_addc_u32 s29, s29, 0')
    for i in range(1, 8):
        a(f'  s_mov_b32 s{45+i}, {i*16384}')
    a('  s_mov_b32 s43, 0x20000')
    for s in range(3):
        a('  s_mov_b64 exec, s[44:45]')
        if s > 0:
            a(f'  s_mov_b32 s42, {s*131072}')
        for x in range(40):
            j, h = x >> 1, x & 1
            ad = 4 + (x & 3)
            a(f'  v_lshlrev_b32_sdwa v{ad}, 3, v{AUX+j} dst_sel:DWORD dst_unused:UNUSED_PAD src0_sel:DWORD src1_sel:WORD_{h}')
            if s > 0:
                a(f'  v_subrev_u32 v{ad}, s42, v{ad}')
            a(f'  v_cmpx_gt_u32 vcc, s43, v{ad}')
            a(f'  ds_write2_b32 v{ad}, v{W0+x}, v{W1+x} offset0:0 offset1:1')
            a('  s_mov_b64 exec, s[44:45]')
        a('  s_mov_b64 exec, -1')
        a(f'  s_add_u32 s16, s28, {s*131072}')
        a('  s_addc_u32 s17, s29, 0')
        a('  s_and_b32 s17, s17, 0xffff')
        if s < 2:
            a('  s_mov_b32 s18, 131072')
        else:
            a('  s_sub_u32 s18, s72, 32768')
            a('  s_lshl_b32 s18, s18, 3')
        a('  s_mov_b32 s19, 0x20000')
        a('  v_lshlrev_b32 v1, 4, v0')
        a('  v_add_u32 v3, 0x10000, v1')
        a('  s_waitcnt lgkmcnt(0)')
        a('  s_barrier')
        nb = 2
        for bt in range(nb):
            nr = 4 if (s < 2 or bt == 0) else 2
            for u in range(nr):
                a(f'  ds_read_b128 {vr(t[4*u],4)}, v{1 if bt == 0 else 3} offset:{u*16384}')
            for u in range(nr):
                a(f'  s_waitcnt lgkmcnt({nr-1-u})')
                rnd = bt * 4 + u
                so = '0' if rnd == 0 else f's{45+rnd}'
                a(f'  buffer_store_dwordx4 {vr(t[4*u],4)}, v1, s[16:19], {so} offen{STF}')
            if bt == 0:
                a('  s_nop 1')
        if s < 2:
            a('  s_barrier')
        st()
    if st.on:
        a('  s_waitcnt vmcnt(0)')
        st()
    st.flush('s24')
    a.label('p1_done')
    a('  s_endpgm')

def gen_p2(a, opt):
    st = Stamps(a, bool(opt.get('stamp')), 'p2', 1)
    st.dbg = opt.get('stamp') == 2; st.dbg_idx = [1, 2, 3, 4]
    b_lag = opt.get('lag', 3)
    R = b_lag + 1
    US = opt.get('ushort', 0)
    NG = 16 if US else 8
    RNT = ' nt' if opt.get('nt_rec', False) else ''
    J4, J8, P = 1, 2, 3
    VN, VL, VB = 5, 6, 7
    Eq = [8, 9, 10, 11]
    SELA, SELB, VDUM, COL = 12, 13, 14, 15
    D = [16, 18]; PT = [20, 21]; LA = [22, 23]; GAD = [24, 25]; YR = [26, 27]; AB = [28, 29]
    X = [30, 31, 32, 33, 34, 35]
    VROW4, VLANE = 36, 37
    REC = [38 + 2*i for i in range(R)]
    nx = 38 + 2*R
    VV = [nx + i for i in range(R)]; nx += R
    CC = [nx + i for i in range(R)]; nx += R
    ROW = [nx + i for i in range(R)]; nx += R
    G = [nx + NG*i for i in range(R)]; nx += NG*R
    assert nx <= 128, nx
    maxv = nx
    a('.p2align 8')
    a('.type p2_kernel,@function')
    a.label('p2_kernel')
    a('  s_cmp_ge_u32 s2, 256')
    a('  s_cbranch_scc1 p2_done')
    a('  s_load_dwordx2 s[32:33], s[0:1], 0')
    a('  s_load_dwordx2 s[34:35], s[0:1], 24')
    a('  s_load_dwordx2 s[36:37], s[0:1], 40')
    a('  s_load_dwordx4 s[40:43], s[0:1], 56')
    a('  s_load_dwordx4 s[44:47], s[0:1], 72')
    a('  s_load_dwordx2 s[48:49], s[0:1], 88')
    a('  s_load_dwordx2 s[28:29], s[0:1], 104')
    a('  v_readfirstlane_b32 s24, v0')
    a(f'  v_and_b32 v{VLANE}, 63, v0')
    a(f'  v_and_b32 v{P}, 15, v0')
    a('  s_lshr_b32 s24, s24, 6')
    a(f'  v_lshlrev_b32 v{X[0]}, 2, v{P}')
    a('  s_lshl_b32 s25, s2, 8')
    a('  s_lshl_b32 s26, s24, 4')
    a('  s_add_u32 s25, s25, s26')
    a('  s_lshl_b32 s25, s25, 2')
    a('  s_waitcnt lgkmcnt(0)')
    srd(a, 12, 28, 262144)
    a(f'  buffer_load_dword v{VN}, v{X[0]}, s[12:15], s25 offen')
    st()
    srd(a, 4, 32, E * 32)
    if opt.get('mpf'):
        a('  s_mul_i32 s26, s2, 40000')
        a(f'  v_lshlrev_b32 v{X[5]}, 7, v0')
        a(f'  v_cmp_gt_u32 vcc, 313, v0')
        a('  s_and_b32 s26, s26, 0xffffff80')
        a('  s_and_saveexec_b64 s[56:57], vcc')
        a('  s_cbranch_execz p2_nopf')
        a(f'  buffer_load_dword v{ROW[0]}, v{X[5]}, s[4:7], s26 offen')
        a.label('p2_nopf')
        a('  s_mov_b64 exec, s[56:57]')
    a(f'  s_add_u32 s8, s28, {REC_OFF}')
    a('  s_addc_u32 s9, s29, 0')
    a('  s_and_b32 s9, s9, 0xffff')
    a(f'  s_mov_b32 s10, {REC_BYTES}')
    a('  s_mov_b32 s11, 0x20000')
    srd(a, 16, 48, E * 32)
    srd(a, 20, 34, E * 2)
    a('  v_lshlrev_b32 v4, 4, v0')
    for r in range(16, 20):
        a(f'  v_mov_b32 v{r}, 0')
    a(f'  v_add_u32 v{X[1]}, 0x10000, v4')
    a(f'  v_add_u32 v{X[2]}, 0x20000, v4')
    for i in range(4):
        a(f'  ds_write_b128 v4, v[16:19] offset:{i*16384}')
    for i in range(4):
        a(f'  ds_write_b128 v{X[1]}, v[16:19] offset:{i*16384}')
    for i in range(2):
        a(f'  ds_write_b128 v{X[2]}, v[16:19] offset:{i*16384}')
    if US:
        a(f'  v_lshlrev_b32 v{J4}, 1, v{P}')
        for r in range(G[0], G[0] + NG*R):
            a(f'  v_mov_b32 v{r}, 0')
    else:
        a(f'  v_and_b32 v{J4}, 7, v0')
        a(f'  v_lshlrev_b32 v{J4}, 2, v{J4}')
    a(f'  v_lshlrev_b32 v{J8}, 3, v{P}')
    a(f'  v_lshrrev_b32 v{VROW4}, 4, v{VLANE}')
    a(f'  v_mov_b32 v{VDUM}, {DUMMY_ROW*128}')
    a(f'  v_cmp_gt_u32 vcc, 8, v{P}')
    a(f'  v_mov_b32 v{X[3]}, 0x03020c0c')
    a(f'  v_mov_b32 v{X[4]}, 0x05040c0c')
    a(f'  v_cndmask_b32 v{SELA}, v{X[3]}, v{X[4]}, vcc')
    a(f'  v_mov_b32 v{X[3]}, 0x07060c0c')
    a(f'  v_mov_b32 v{X[4]}, 0x01000c0c')
    a(f'  v_cndmask_b32 v{SELB}, v{X[3]}, v{X[4]}, vcc')
    a('  s_waitcnt vmcnt(0)')
    a(f'  v_lshrrev_b32 v{VB}, 16, v{VN}')
    a(f'  v_and_b32 v{VN}, 0xffff, v{VN}')
    a(f'  v_add_u32 v{VL}, 15, v{VN}')
    a(f'  v_lshrrev_b32 v{VL}, 4, v{VL}')
    a('  s_lshl_b32 s26, s24, 4')
    a(f'  v_add_u32 v{X[0]}, s26, v{P}')
    a(f'  s_mov_b32 s27, {TILE_LINES}')
    a(f'  v_mul_lo_u32 v{X[0]}, v{X[0]}, s27')
    a(f'  v_add_u32 v{VB}, v{VB}, v{X[0]}')
    a(f'  v_mov_b32 v{X[0]}, v{VL}')
    for sh in (1, 2, 4, 8):
        a('  s_nop 1')
        a(f'  v_max_u32_dpp v{X[0]}, v{X[0]}, v{X[0]} row_ror:{sh} row_mask:0xf bank_mask:0xf')
    a('  s_nop 1')
    a(f'  v_readfirstlane_b32 s50, v{X[0]}')
    a('  s_mov_b32 s51, 0')
    a('  s_mov_b32 s52, 0xffffff80')
    a('  s_mov_b32 s53, 0xffff0000')
    a('  s_mov_b32 s54, 0x3ff80')
    a('  s_mov_b32 s55, 1')
    se = opt.get('sync', 0)
    if se:
        a(f'  s_mov_b32 s69, {opt.get("nsync", 38 // se)}')
    a.label('p2_outer')
    a('  s_cmp_ge_u32 s51, s50')
    a('  s_cbranch_scc1 p2_main_done')
    for k in range(4):
        a(f'  s_add_u32 s60, s51, {4*k}')
        a(f'  v_add_u32 v{X[0]}, s60, v{VROW4}')
        a(f'  v_cmp_gt_u32 vcc, v{VL}, v{X[0]}')
        a(f'  v_lshlrev_b32 v{X[1]}, 4, v{X[0]}')
        a(f'  v_sub_u32 v{X[1]}, v{VN}, v{X[1]}')
        a(f'  v_min_u32 v{X[1]}, 16, v{X[1]}')
        a(f'  v_add_u32 v{X[2]}, v{VB}, v{X[0]}')
        a(f'  v_lshl_or_b32 v{X[2]}, v{X[2]}, 7, v{X[1]}')
        a(f'  s_bcnt1_i32_b64 s61, vcc')
        a(f'  v_mbcnt_lo_u32_b32 v{X[3]}, vcc_lo, 0')
        a(f'  v_mbcnt_hi_u32_b32 v{X[3]}, vcc_hi, v{X[3]}')
        a(f'  v_sub_u32 v{X[4]}, v{VLANE}, v{X[3]}')
        a(f'  v_add_u32 v{X[4]}, s61, v{X[4]}')
        a(f'  v_cndmask_b32 v{X[4]}, v{X[4]}, v{X[3]}, vcc')
        a(f'  v_cndmask_b32 v{X[2]}, 0, v{X[2]}, vcc')
        a(f'  v_and_b32 v{X[5]}, 3, v{X[4]}')
        a(f'  v_lshlrev_b32 v{X[5]}, 6, v{X[5]}')
        a(f'  v_and_or_b32 v{X[5]}, v{X[4]}, -4, v{X[5]}')
        a(f'  ds_permute_b32 v{Eq[k]}, v{X[5]}, v{X[2]}')
        a(f'  s_add_u32 s{56+k}, s61, 3')
        a(f'  s_lshr_b32 s{56+k}, s{56+k}, 2')
    a('  s_add_u32 s62, s56, s57')
    a('  s_add_u32 s62, s62, s58')
    a('  s_add_u32 s62, s62, s59')
    a('  s_mov_b32 s63, 3')
    a('  s_waitcnt lgkmcnt(0)')
    uid = [0]
    def stageA(b):
        u = uid[0]; uid[0] += 1
        a.label(f'p2_chk{u}')
        a('  s_cmp_lg_u32 s56, 0')
        a(f'  s_cbranch_scc1 p2_go{u}')
        a('  s_cmp_eq_u32 s63, 0')
        a(f'  s_cbranch_scc1 p2_exh{u}')
        a(f'  v_mov_b32 v{Eq[0]}, v{Eq[1]}')
        a(f'  v_mov_b32 v{Eq[1]}, v{Eq[2]}')
        a(f'  v_mov_b32 v{Eq[2]}, v{Eq[3]}')
        a('  s_mov_b32 s56, s57')
        a('  s_mov_b32 s57, s58')
        a('  s_mov_b32 s58, s59')
        a('  s_sub_u32 s63, s63, 1')
        a(f'  s_branch p2_chk{u}')
        a.label(f'p2_exh{u}')
        a(f'  v_mov_b32 v{Eq[0]}, 0')
        a('  s_mov_b32 s56, 1')
        a('  s_nop 0')
        a.label(f'p2_go{u}')
        a('  s_sub_u32 s56, s56, 1')
        a(f'  v_mov_b32_dpp v{X[0]}, v{Eq[0]} row_newbcast:0 row_mask:0xf bank_mask:0xf')
        a(f'  v_mov_b32_dpp v{Eq[0]}, v{Eq[0]} row_shl:1 row_mask:0xf bank_mask:0xf bound_ctrl:0')
        a(f'  v_and_or_b32 v{X[1]}, v{X[0]}, s52, v{J8}')
        a(f'  v_and_b32 v{VV[b]}, 31, v{X[0]}')
        a(f'  buffer_load_dwordx2 {vr(REC[b],2)}, v{X[1]}, s[8:11], 0 offen{RNT}')
    def decode(b):
        a(f'  v_cmp_gt_u32 vcc, v{VV[b]}, v{P}')
        a(f'  v_lshlrev_b32 v{X[2]}, 7, v{REC[b]+1}')
        a(f'  v_and_b32 v{CC[b]}, s53, v{REC[b]+1}')
        a(f'  v_and_b32 v{X[2]}, s54, v{X[2]}')
        a(f'  v_cndmask_b32 v{COL}, 0, v{REC[b]}, vcc')
        if opt.get('colmask'):
            a(f'  v_and_b32 v{COL}, {opt["colmask"]}, v{COL}')
        a(f'  v_cndmask_b32 v{ROW[b]}, v{VDUM}, v{X[2]}, vcc')
        a('  s_nop 0')
    def gather(b, g):
        ad = GAD[g & 1]
        if US:
            a(f'  v_add_u32_dpp v{ad}, v{COL}, v{J4} row_newbcast:{g} row_mask:0xf bank_mask:0xf')
            if opt.get('no_gather'):
                a(f'  buffer_load_short_d16_hi v{G[b]+g}, v{J4}, s[4:7], 0 offen')
            else:
                a(f'  buffer_load_short_d16_hi v{G[b]+g}, v{ad}, s[4:7], 0 offen')
            return
        a(f'  v_add_u32_dpp v{ad}, v{COL}, v{J4} row_newbcast:{2*g} row_mask:0xf bank_mask:0x3')
        a(f'  v_add_u32_dpp v{ad}, v{COL}, v{J4} row_newbcast:{2*g+1} row_mask:0xf bank_mask:0xc')
        if opt.get('no_gather'):
            a(f'  buffer_load_dword v{G[b]+g}, v{J4}, s[4:7], 0 offen')
        else:
            a(f'  buffer_load_dword v{G[b]+g}, v{ad}, s[4:7], 0 offen')
    def consume(b, g):
        x = G[b] + g; y = YR[g & 1]
        if US:
            p, la, d = PT[g & 1], LA[g & 1], D[g & 1]
            a(f'  v_mul_f32_dpp v{p}, v{CC[b]}, v{x} row_newbcast:{g} row_mask:0xf bank_mask:0xf')
            a(f'  v_add_u32_dpp v{la}, v{ROW[b]}, v{J8} row_newbcast:{g} row_mask:0xf bank_mask:0xf')
            a(f'  v_cvt_f64_f32 {vr(d,2)}, v{p}')
            if not opt.get('no_ds'):
                a(f'  ds_add_f64 v{la}, {vr(d,2)}')
            return
        a(f'  v_mov_b32_dpp v{y}, v{x} row_ror:8 row_mask:0xf bank_mask:0xf')
        a(f'  v_add_u32_dpp v{LA[0]}, v{ROW[b]}, v{J8} row_newbcast:{2*g} row_mask:0xf bank_mask:0xf')
        a(f'  v_add_u32_dpp v{LA[1]}, v{ROW[b]}, v{J8} row_newbcast:{2*g+1} row_mask:0xf bank_mask:0xf')
        a(f'  v_perm_b32 v{AB[0]}, v{x}, v{y}, v{SELA}')
        a(f'  v_perm_b32 v{AB[1]}, v{x}, v{y}, v{SELB}')
        a(f'  v_mul_f32_dpp v{PT[0]}, v{CC[b]}, v{AB[0]} row_newbcast:{2*g} row_mask:0xf bank_mask:0xf')
        a(f'  v_mul_f32_dpp v{PT[1]}, v{CC[b]}, v{AB[1]} row_newbcast:{2*g+1} row_mask:0xf bank_mask:0xf')
        a(f'  v_cvt_f64_f32 {vr(D[0],2)}, v{PT[0]}')
        a(f'  v_cvt_f64_f32 {vr(D[1],2)}, v{PT[1]}')
        if not opt.get('no_ds'):
            a(f'  ds_add_f64 v{LA[0]}, {vr(D[0],2)}')
            a(f'  ds_add_f64 v{LA[1]}, {vr(D[1],2)}')
    for t in range(-2*b_lag, -b_lag):
        stageA((t + 2*b_lag) % R)
    for t in range(-b_lag, 0):
        stageA((t + 2*b_lag) % R)
        a(f'  s_waitcnt vmcnt({b_lag + NG*(t + b_lag)})')
        decode((t + b_lag) % R)
        for g in range(NG):
            gather((t + b_lag) % R, g)
    a('  s_cmp_eq_u32 s55, 0')
    a('  s_cbranch_scc1 p2_loop')
    a('  s_mov_b32 s55, 0')
    a('  s_barrier')
    st()
    a.label('p2_loop')
    for t in range(R):
        stageA((t + 2*b_lag) % R)
        a(f'  s_waitcnt vmcnt({(NG+1)*b_lag})')
        decode((t + b_lag) % R)
        for g in range(NG):
            gather((t + b_lag) % R, g)
            a(f'  s_waitcnt vmcnt({(NG+1)*b_lag})')
            consume(t, g)
        if se and (t % se) == se - 1:
            a('  s_cmp_eq_u32 s69, 0')
            a(f'  s_cbranch_scc1 p2_nosync{t}')
            a('  s_barrier')
            a('  s_sub_u32 s69, s69, 1')
            a.label(f'p2_nosync{t}')
        a('  s_sub_u32 s62, s62, 1')
        a('  s_cmp_eq_u32 s62, 0')
        if t < R - 1:
            a('  s_cbranch_scc1 p2_loop_exit')
        else:
            a('  s_cbranch_scc0 p2_loop')
    a.label('p2_loop_exit')
    a('  s_waitcnt vmcnt(0)')
    a('  s_add_u32 s51, s51, 16')
    a('  s_branch p2_outer')
    a.label('p2_main_done')
    a('  s_cmp_eq_u32 s55, 0')
    a('  s_cbranch_scc1 p2_epi')
    a('  s_waitcnt lgkmcnt(0)')
    a('  s_barrier')
    a.label('p2_epi')
    if se:
        a.label('p2_owed')
        a('  s_cmp_eq_u32 s69, 0')
        a('  s_cbranch_scc1 p2_owed_done')
        a('  s_barrier')
        a('  s_sub_u32 s69, s69, 1')
        a('  s_branch p2_owed')
        a.label('p2_owed_done')
    st()
    WD, WU, WS, WR, CEN = 38, 42, 46, 48, 50
    DI = 52
    MM = 58
    OFF = 68
    J2 = 73
    S = 74
    SF = 82
    RB = 86
    Y = 88; GG = 92; HH = 96; Z = 100
    maxv = max(maxv, 104)
    a(f'  v_lshlrev_b32 v{J2}, 1, v{P}')
    a(f'  v_lshlrev_b32 v{X[1]}, 7, v{VROW4}')
    a(f'  v_add_u32 v{X[1]}, v{X[1]}, v{J2}')
    for q in range(4):
        a(f'  global_load_ushort v{WD+q}, v{X[1]}, s[44:45] offset:{q*32}')
    for q in range(4):
        a(f'  global_load_ushort v{WU+q}, v{X[1]}, s[46:47] offset:{q*32}')
    a(f'  v_lshlrev_b32 v{X[2]}, 5, v{VROW4}')
    a(f'  v_add_u32 v{X[2]}, v{X[2]}, v{J2}')
    for q in range(2):
        a(f'  global_load_ushort v{WS+q}, v{X[2]}, s[42:43] offset:{q*128}')
    for q in range(2):
        a(f'  global_load_ushort v{WR+q}, v{X[2]}, s[40:41] offset:{q*128}')
    a(f'  v_lshlrev_b32 v{X[3]}, 1, v{VROW4}')
    for q in range(2):
        a(f'  global_load_ushort v{CEN+q}, v{X[3]}, s[36:37] offset:{q*8}')
    a(f'  s_lshl_b32 s25, s2, 4')
    for u in range(5):
        a(f'  s_add_u32 s26, s24, {16*u}')
        a('  s_lshl_b32 s26, s26, 12')
        a('  s_add_u32 s26, s26, s25')
        a(f'  s_mov_b32 s{64+u}, s26')
        a(f'  v_add_u32 v{X[0]}, s26, v{P}')
        a(f'  v_lshlrev_b32 v{X[1]}, 1, v{X[0]}')
        a(f'  buffer_load_ushort v{DI+u}, v{X[1]}, s[20:23], 0 offen')
        a(f'  v_lshlrev_b32 v{X[1]}, 5, v{X[0]}')
        a(f'  v_lshl_add_u32 v{OFF+u}, v{VROW4}, 3, v{X[1]}')
        a(f'  buffer_load_dwordx2 {vr(MM+2*u,2)}, v{OFF+u}, s[4:7], 0 offen')
    a('  s_waitcnt lgkmcnt(0)')
    a('  s_barrier')
    st()
    a('  s_mov_b32 s70, 0xc1200000')
    a('  s_mov_b32 s71, 0x3fb8aa3b')
    a('  s_waitcnt vmcnt(0)')
    for r in range(WD, CEN + 2):
        a(f'  v_lshlrev_b32 v{r}, 16, v{r}')
    for u in range(5):
        a(f'  s_cmp_ge_u32 s{64+u}, {E}')
        a(f'  s_cbranch_scc1 p2_epi_skip{u}')
        a(f'  s_add_u32 s26, s24, {16*u}')
        a('  s_lshl_b32 s26, s26, 11')
        a(f'  v_lshlrev_b32 v{X[0]}, 7, v{P}')
        a(f'  v_lshl_add_u32 v{X[0]}, v{VROW4}, {5 if US else 4}, v{X[0]}')
        a(f'  v_add_u32 v{X[0]}, s26, v{X[0]}')
        a(f'  ds_read_b128 {vr(S,4)}, v{X[0]}')
        a(f'  ds_read_b128 {vr(S+4,4)}, v{X[0]} offset:{16 if US else 64}')
        a(f'  v_lshlrev_b32 v{X[1]}, 16, v{DI+u}')
        a(f'  v_sub_f32 v{X[2]}, v{X[1]}, v{CEN}')
        a(f'  v_sub_f32 v{X[3]}, v{X[1]}, v{CEN+1}')
        def rnd2():
            a(f'  v_cvt_pk_bf16_f32 v{X[4]}, v{X[2]}, v{X[3]}')
            a(f'  v_lshlrev_b32 v{X[2]}, 16, v{X[4]}')
            a(f'  v_and_b32 v{X[3]}, s53, v{X[4]}')
        rnd2()
        a(f'  v_mul_f32 v{X[2]}, v{X[2]}, v{X[2]}')
        a(f'  v_mul_f32 v{X[3]}, v{X[3]}, v{X[3]}')
        rnd2()
        a(f'  v_mul_f32 v{X[2]}, s70, v{X[2]}')
        a(f'  v_mul_f32 v{X[3]}, s70, v{X[3]}')
        rnd2()
        a(f'  v_mul_f32 v{X[2]}, s71, v{X[2]}')
        a(f'  v_mul_f32 v{X[3]}, s71, v{X[3]}')
        a(f'  v_exp_f32 v{X[2]}, v{X[2]}')
        a(f'  v_exp_f32 v{X[3]}, v{X[3]}')
        a('  s_nop 0')
        a(f'  v_cvt_pk_bf16_f32 v{X[4]}, v{X[2]}, v{X[3]}')
        a(f'  v_lshlrev_b32 v{RB}, 16, v{X[4]}')
        a(f'  v_and_b32 v{RB+1}, s53, v{X[4]}')
        a('  s_waitcnt lgkmcnt(0)')
        order = [0, 1, 2, 3] if US else [0, 2, 1, 3]
        for i in range(4):
            a(f'  v_cvt_f32_f64 v{SF+order[i]}, {vr(S+2*i,2)}')
        a('  s_nop 1')
        a(f'  v_mfma_f32_16x16x4_f32 {vr(GG,4)}, v{WS}, v{RB}, 0')
        a(f'  v_mfma_f32_16x16x4_f32 {vr(HH,4)}, v{WR}, v{RB}, 0')
        a(f'  v_mfma_f32_16x16x4_f32 {vr(Y,4)}, v{WD}, v{SF}, 0')
        a(f'  v_mfma_f32_16x16x4_f32 {vr(GG,4)}, v{WS+1}, v{RB+1}, {vr(GG,4)}')
        a(f'  v_mfma_f32_16x16x4_f32 {vr(HH,4)}, v{WR+1}, v{RB+1}, {vr(HH,4)}')
        for q in range(1, 4):
            a(f'  v_mfma_f32_16x16x4_f32 {vr(Y,4)}, v{WD+q}, v{SF+q}, {vr(Y,4)}')
        a('  s_nop 15')
        for q in range(4):
            a(f'  v_mul_f32 v{Y+q}, v{Y+q}, v{GG+q}')
        a('  s_nop 1')
        a(f'  v_mfma_f32_16x16x4_f32 {vr(Z,4)}, v{WU}, v{Y}, 0')
        for q in range(1, 4):
            a(f'  v_mfma_f32_16x16x4_f32 {vr(Z,4)}, v{WU+q}, v{Y+q}, {vr(Z,4)}')
        a(f'  v_cvt_pk_bf16_f32 v{X[0]}, v{HH}, v{HH+1}')
        a(f'  v_cvt_pk_bf16_f32 v{X[1]}, v{HH+2}, v{HH+3}')
        a(f'  v_lshlrev_b32 v{HH}, 16, v{X[0]}')
        a(f'  v_and_b32 v{HH+1}, s53, v{X[0]}')
        a(f'  v_lshlrev_b32 v{HH+2}, 16, v{X[1]}')
        a(f'  v_and_b32 v{HH+3}, s53, v{X[1]}')
        a('  s_nop 15')
        a(f'  v_cvt_pk_bf16_f32 v{X[0]}, v{Z}, v{Z+1}')
        a(f'  v_cvt_pk_bf16_f32 v{X[1]}, v{Z+2}, v{Z+3}')
        a(f'  v_lshlrev_b32 v{Z}, 16, v{X[0]}')
        a(f'  v_and_b32 v{Z+1}, s53, v{X[0]}')
        a(f'  v_lshlrev_b32 v{Z+2}, 16, v{X[1]}')
        a(f'  v_and_b32 v{Z+3}, s53, v{X[1]}')
        for q in range(4):
            a(f'  v_mul_f32 v{Z+q}, v{Z+q}, v{HH+q}')
        a(f'  v_cvt_pk_bf16_f32 v{X[0]}, v{Z}, v{Z+1}')
        a(f'  v_cvt_pk_bf16_f32 v{X[1]}, v{Z+2}, v{Z+3}')
        a(f'  v_lshlrev_b32 v{Z}, 16, v{X[0]}')
        a(f'  v_and_b32 v{Z+1}, s53, v{X[0]}')
        a(f'  v_lshlrev_b32 v{Z+2}, 16, v{X[1]}')
        a(f'  v_and_b32 v{Z+3}, s53, v{X[1]}')
        a(f'  v_lshlrev_b32 v{X[2]}, 16, v{MM+2*u}')
        a(f'  v_and_b32 v{X[3]}, s53, v{MM+2*u}')
        a(f'  v_lshlrev_b32 v{X[4]}, 16, v{MM+2*u+1}')
        a(f'  v_and_b32 v{X[5]}, s53, v{MM+2*u+1}')
        for q in range(4):
            a(f'  v_add_f32 v{Z+q}, v{Z+q}, v{X[2+q]}')
        a(f'  v_cvt_pk_bf16_f32 v{Z}, v{Z}, v{Z+1}')
        a(f'  v_cvt_pk_bf16_f32 v{Z+1}, v{Z+2}, v{Z+3}')
        a(f'  buffer_store_dwordx2 {vr(Z,2)}, v{OFF+u}, s[16:19], 0 offen')
        a.label(f'p2_epi_skip{u}')
    if st.on:
        a('  s_waitcnt vmcnt(0)')
        st()
    st.flush('s24')
    a.label('p2_done')
    a('  s_endpgm')
    return maxv

def descriptor(a, name, vgpr, sgpr):
    a(f'.amdhsa_kernel {name}')
    a(f'  .amdhsa_next_free_vgpr {vgpr}')
    a(f'  .amdhsa_next_free_sgpr {sgpr}')
    a(f'  .amdhsa_accum_offset {(vgpr + 3) // 4 * 4}')
    a('  .amdhsa_group_segment_fixed_size 0')
    a('  .amdhsa_kernarg_size 112')
    a('  .amdhsa_user_sgpr_count 2')
    a('  .amdhsa_user_sgpr_kernarg_segment_ptr 1')
    a('  .amdhsa_system_sgpr_workgroup_id_x 1')
    a('  .amdhsa_float_denorm_mode_32 3')
    a('.end_amdhsa_kernel')

HEADER = '''; Kernarg layout (112 bytes, ptrs only, base s[0:1]):
; @launch kernel=p1_kernel grid=(256,1,1) block=(1024,1,1) lds=163840
; @launch kernel=p2_kernel grid=(256,1,1) block=(1024,1,1) lds=163840
.amdgcn_target "amdgcn-amd-amdhsa--gfx950"
.text
.globl p1_kernel
.globl p2_kernel
'''

def build(opt):
    a = Asm()
    h = HEADER
    if opt.get('nop'):
        extra = '; @launch kernel=nop_kernel grid=(256,1,1) block=(1024,1,1) lds=163840\n' * opt['nop']
        h = h.replace('; @launch kernel=p2_kernel', extra + '; @launch kernel=p2_kernel').replace('.globl p2_kernel', '.globl p2_kernel\n.globl nop_kernel')
    a(h.rstrip('\n'))
    if opt.get('nop'):
        a('.p2align 8')
        a('.type nop_kernel,@function')
        a.label('nop_kernel')
        a('  s_endpgm')
    gen_p1(a, opt)
    v2 = gen_p2(a, opt)
    a('.section .rodata,"a"')
    a('.p2align 6')
    ns = 102 if opt.get('stamp') else 80
    descriptor(a, 'p1_kernel', 128, ns)
    a('.p2align 6')
    descriptor(a, 'p2_kernel', v2, ns)
    if opt.get('nop'):
        a('.p2align 6')
        descriptor(a, 'nop_kernel', 128, 80)
    return a.text()

if __name__ == '__main__':
    out = sys.argv[1] if len(sys.argv) > 1 else 'standalone__molecular_angular_gemnet__graph.s'
    opt = {}
    for kv in sys.argv[2:]:
        k, v = kv.split('=')
        opt[k] = int(v) if v.lstrip('-').isdigit() else v
    open(out, 'w').write(build(opt))
    print('wrote', out)
```

```python
import struct, sys, math

def f32bits(x):
    return struct.unpack('<I', struct.pack('<f', x))[0]
def bits2f(b):
    return struct.unpack('<f', struct.pack('<I', b))[0]

E = 320000
T = 10240000
NWG = 256
KSH = 14
NK = (E + (1 << KSH) - 1) >> KSH
HIST = 131072
TMP = HIST + NK * 1024
DUMMY_ROW = 1264

class Cfg:
    def __init__(self, opt):
        self.S = opt.get('S', 2)
        self.NTT = NWG * self.S
        self.SUB = 40000 // self.S
        self.RPS = 10 // self.S
        maxpad = self.SUB + 256 * 15
        self.TILE_LINES = ((maxpad + 15) // 16 + 15) // 16 * 16
        self.TILE_BYTES = self.TILE_LINES * 128
        self.TAB_BYTES = 256 * self.NTT * 4
        self.REC_OFF = self.TAB_BYTES
        self.REC_BYTES = self.NTT * self.TILE_BYTES
        self.NSL = (maxpad + 16383) // 16384
        self.LAST_ROUNDS = ((maxpad - (self.NSL - 1) * 16384) * 8 + 16383) // 16384
        assert self.SUB > (self.NSL - 1) * 16384

class Asm:
    def __init__(self):
        self.lines = []
    def __call__(self, s=''):
        for l in s.split('\n'):
            self.lines.append(l)
    def label(self, s):
        self.lines.append(s + ':')
    def text(self):
        return '\n'.join(self.lines) + '\n'

def vr(a, n=1):
    return f'v{a}' if n == 1 else f'v[{a}:{a+n-1}]'

def srd(a, d, ptr, size):
    a(f'  s_mov_b32 s{d}, s{ptr}')
    a(f'  s_and_b32 s{d+1}, s{ptr+1}, 0xffff')
    a(f'  s_mov_b32 s{d+2}, {size}')
    a(f'  s_mov_b32 s{d+3}, 0x20000')

class Stamps:
    def __init__(self, a, on, name, slot):
        self.a = a; self.on = on; self.n = 0; self.name = name; self.slot = slot
    def __call__(self):
        if not self.on: return
        a = self.a
        a('  s_memtime s[80:81]')
        a('  s_memrealtime s[82:83]')
        a('  s_waitcnt lgkmcnt(0)')
        a(f'  s_mov_b32 s{84+2*self.n}, s80')
        a(f'  s_mov_b32 s{85+2*self.n}, s82')
        self.n += 1
        assert self.n <= 9
    def flush(self, wavereg):
        if not self.on: return
        a = self.a
        a(f'  s_cmp_lg_u32 {wavereg}, 0')
        a(f'  s_cbranch_scc1 {self.name}_nostamp')
        a('  s_load_dwordx2 s[80:81], s[0:1], 104')
        a('  s_waitcnt lgkmcnt(0)')
        a(f'  s_add_u32 s80, s80, {200*1048576 + self.slot*65536}')
        a('  s_addc_u32 s81, s81, 0')
        a('  s_lshl_b32 s82, s2, 7')
        a('  v_mov_b32 v1, s82')
        for i in range(2*self.n):
            a(f'  v_mov_b32 v2, s{84+i}')
            a(f'  global_store_dword v1, v2, s[80:81] offset:{4*i}')
        a.label(f'{self.name}_nostamp')

def gen_p1(a, opt, cfg):
    st = Stamps(a, bool(opt.get('stamp')), 'p1', 0)
    NTF = ' nt' if opt.get('nt_in', 1) else ''
    STF = {0: '', 1: ' nt', 2: ' sc1', 3: ' sc0 sc1', 4: ' sc0'}[opt.get('nt_st', 0)]
    S = cfg.S
    W0, W1, AUX = 8, 48, 88
    CO = 32
    t = [108 + i for i in range(20)]
    inv2pi = 1.0 / (2.0 * math.pi)
    chi_bits = f32bits(inv2pi) & 0xffffff00
    clo_bits = f32bits(inv2pi - bits2f(chi_bits))
    a('.p2align 8')
    a('.type p1_kernel,@function')
    a.label('p1_kernel')
    a('  s_cmp_ge_u32 s2, 256')
    a('  s_cbranch_scc1 p1_done')
    a('  s_load_dwordx4 s[32:35], s[0:1], 8')
    a('  s_load_dwordx2 s[36:37], s[0:1], 32')
    a('  s_load_dwordx2 s[38:39], s[0:1], 48')
    a('  s_load_dwordx2 s[28:29], s[0:1], 104')
    a('  s_load_dwordx2 s[74:75], s[0:1], 0')
    a('  v_lshlrev_b32 v1, 4, v0')
    a(f'  v_add_u32 v2, {HIST}, v1')
    for r in range(4, 8):
        a(f'  v_mov_b32 v{r}, 0')
    a('  ds_write_b128 v2, v[4:7]')
    a('  ds_write_b128 v2, v[4:7] offset:16384')
    a('  s_mul_i32 s40, s2, 160000')
    a('  s_mul_i32 s41, s2, 80000')
    a('  v_add_u32 v1, s40, v1')
    a('  v_lshlrev_b32 v3, 3, v0')
    a('  v_add_u32 v3, s41, v3')
    a('  v_readfirstlane_b32 s24, v0')
    a('  v_cmp_gt_u32 vcc, 1000, v0')
    a('  s_lshr_b32 s24, s24, 6')
    a('  s_mov_b64 s[44:45], vcc')
    for i in range(1, 10):
        a(f'  s_mov_b32 s{45+i}, {i*16000}')
        a(f'  s_mov_b32 s{55+i}, {i*8000}')
    a('  s_waitcnt lgkmcnt(0)')
    a('  s_load_dword s26, s[38:39], 0')
    srd(a, 4, 32, T * 4)
    srd(a, 8, 34, T * 4)
    srd(a, 12, 36, T * 2)
    st()
    a('  s_mov_b64 exec, s[44:45]')
    def issue_round(i):
        so = '0' if i == 0 else f's{45+i}'
        sa = '0' if i == 0 else f's{55+i}'
        a(f'  buffer_load_dwordx4 {vr(W0+4*i,4)}, v1, s[4:7], {so} offen{NTF}')
        a(f'  buffer_load_dwordx4 {vr(W1+4*i,4)}, v1, s[8:11], {so} offen{NTF}')
        a(f'  buffer_load_dwordx2 {vr(AUX+2*i,2)}, v3, s[12:15], {sa} offen{NTF}')
    AHEAD = opt.get('ahead', 5)
    for i in range(AHEAD):
        issue_round(i)
    issued = AHEAD
    a('  s_mov_b32 s27, 0xffff0000')
    a(f'  s_mov_b32 s30, {chi_bits:#x}')
    a(f'  s_mov_b32 s31, {clo_bits:#x}')
    a(f'  s_mov_b32 s42, {HIST}')
    a('  s_mov_b32 s43, 0x3fc')
    a('  v_mov_b32 v2, 1')
    srd(a, 20, 28, cfg.TAB_BYTES)
    srd(a, 76, 74, E * 32)
    a(f'  s_mul_i32 s40, s2, {S * cfg.TILE_BYTES}')
    a('  s_add_u32 s28, s28, s40')
    a('  s_addc_u32 s29, s29, 0')
    a(f'  s_add_u32 s28, s28, {cfg.REC_OFF}')
    a('  s_addc_u32 s29, s29, 0')
    a('  s_waitcnt lgkmcnt(0)')
    a('  s_and_b32 s26, s26, 0xffff')
    a('  s_lshl_b32 s26, s26, 16')
    a('  s_barrier')
    for i in range(1, 8):
        a(f'  s_mov_b32 s{CO+i}, {i*16384}')
    stores_done = 0
    for h in range(S):
        sfx = f'_{h}'
        if h > 0:
            a('  v_mov_b32 v2, 1')
            a(f'  s_mov_b32 s42, {HIST}')
            a('  s_mov_b32 s43, 0x3fc')
            a('  s_mov_b64 exec, s[44:45]')
        for i in range(h * cfg.RPS, (h + 1) * cfg.RPS):
            A = [W0 + 4*i + e for e in range(4)]
            O = [W1 + 4*i + e for e in range(4)]
            G = [AUX + 2*i, AUX + 2*i + 1]
            a(f'  s_waitcnt vmcnt({3*(issued - 1 - i) + stores_done})')
            if issued < 10:
                issue_round(issued); issued += 1
            a(f'  v_lshlrev_b32 v{t[0]}, 16, v{G[0]}')
            a(f'  v_and_b32 v{t[1]}, s27, v{G[0]}')
            a(f'  v_lshlrev_b32 v{t[2]}, 16, v{G[1]}')
            a(f'  v_and_b32 v{t[3]}, s27, v{G[1]}')
            for e in range(4):
                a(f'  v_mul_f32 v{t[e]}, s26, v{t[e]}')
            a(f'  v_cvt_pk_bf16_f32 v{t[4]}, v{t[0]}, v{t[1]}')
            a(f'  v_cvt_pk_bf16_f32 v{t[5]}, v{t[2]}, v{t[3]}')
            for e in range(4):
                a(f'  v_lshrrev_b32 v{t[8+e]}, 8, v{O[e]}')
            a(f'  v_lshlrev_b32 v{t[0]}, 16, v{t[4]}')
            a(f'  v_and_b32 v{t[1]}, s27, v{t[4]}')
            a(f'  v_lshlrev_b32 v{t[2]}, 16, v{t[5]}')
            a(f'  v_and_b32 v{t[3]}, s27, v{t[5]}')
            for e in range(4):
                a(f'  v_bfi_b32 v{t[8+e]}, 15, v{O[e]}, v{t[8+e]}')
            for e in range(4):
                a(f'  v_mul_f32 v{t[4+e]}, s30, v{t[e]}')
            for e in range(4):
                a(f'  v_fract_f32 v{t[4+e]}, v{t[4+e]}')
            for e in range(4):
                a(f'  v_fma_f32 v{t[4+e]}, v{t[e]}, s31, v{t[4+e]}')
            for e in range(4):
                a(f'  v_cos_f32 v{t[4+e]}, v{t[4+e]}')
            for e in range(4):
                a(f'  v_lshrrev_b32 v{t[12+e]}, 2, v{O[e]}')
            for e in range(4):
                a(f'  v_lshrrev_b32 v{t[e]}, {KSH}, v{A[e]}')
            for e in range(4):
                a(f'  v_and_b32 v{t[12+e]}, s43, v{t[12+e]}')
            for e in range(4):
                a(f'  v_lshl_or_b32 v{t[12+e]}, v{t[e]}, 10, v{t[12+e]}')
            a(f'  v_cvt_pk_bf16_f32 v{t[16]}, v{t[4]}, v{t[5]}')
            a(f'  v_cvt_pk_bf16_f32 v{t[17]}, v{t[6]}, v{t[7]}')
            for e in range(4):
                a(f'  v_add_u32 v{t[e]}, s42, v{t[12+e]}')
            for e in range(4):
                a(f'  ds_add_u32 v{t[e]}, v2')
            for e in range(4):
                a(f'  v_lshlrev_b32 v{A[e]}, 5, v{A[e]}')
            a(f'  v_lshl_or_b32 v{O[0]}, v{t[16]}, 16, v{t[8]}')
            a(f'  v_and_or_b32 v{O[1]}, v{t[16]}, s27, v{t[9]}')
            a(f'  v_lshl_or_b32 v{O[2]}, v{t[17]}, 16, v{t[10]}')
            a(f'  v_and_or_b32 v{O[3]}, v{t[17]}, s27, v{t[11]}')
            a(f'  v_lshl_or_b32 v{G[0]}, v{t[13]}, 16, v{t[12]}')
            a(f'  v_lshl_or_b32 v{G[1]}, v{t[15]}, 16, v{t[14]}')
        a('  s_mov_b64 exec, -1')
        a('  s_waitcnt lgkmcnt(0)')
        a('  s_barrier')
        st()
        if h == S - 1 and opt.get('mpf1', 1):
            a('  s_sub_u32 s40, s24, 4')
            a('  s_cmp_ge_u32 s40, 5')
            a('  s_cbranch_scc1 p1_nopf')
            a('  s_mul_i32 s41, s2, 40000')
            a('  s_and_b32 s41, s41, 0xffffff80')
            a('  v_subrev_u32 v5, 256, v0')
            a('  v_lshlrev_b32 v5, 7, v5')
            a(f'  buffer_load_dword v{t[18]}, v5, s[76:79], s41 offen')
            a.label('p1_nopf')
        a('  v_lshlrev_b32 v4, 2, v0')
        a(f'  v_add_u32 v4, {HIST}, v4')
        a('  s_cmp_ge_u32 s24, 4')
        a(f'  s_cbranch_scc1 p1_skip1{sfx}')
        for k in range(NK):
            a(f'  ds_read_b32 v{t[k]}, v4 offset:{k*1024}')
        a('  v_mov_b32 v5, 0')
        a('  s_waitcnt lgkmcnt(0)')
        ra, rb = 5, 6
        for k in range(NK):
            a(f'  v_add_u32 v{rb}, v{ra}, v{t[k]}')
            a(f'  v_mov_b32 v{t[k]}, v{ra}')
            ra, rb = rb, ra
        assert ra == 5
        a('  v_add_u32 v6, 15, v5')
        a('  v_and_b32 v6, -16, v6')
        a('  v_mov_b32 v7, v6')
        for sh in (1, 2, 4, 8):
            a('  s_nop 1')
            a(f'  v_add_u32_dpp v7, v7, v7 row_shr:{sh} row_mask:0xf bank_mask:0xf bound_ctrl:0')
        a('  s_nop 1')
        a('  v_add_u32_dpp v7, v7, v7 row_bcast:15 row_mask:0xa bank_mask:0xf')
        a('  s_nop 1')
        a('  v_add_u32_dpp v7, v7, v7 row_bcast:31 row_mask:0xc bank_mask:0xf')
        a('  s_lshl_b32 s40, s24, 2')
        a(f'  s_add_u32 s40, s40, {TMP}')
        a('  v_mov_b32 v3, s40')
        a('  s_mov_b32 exec_lo, 0')
        a('  s_mov_b32 exec_hi, 0x80000000')
        a('  ds_write_b32 v3, v7')
        a('  s_mov_b64 exec, -1')
        a.label(f'p1_skip1{sfx}')
        a('  s_waitcnt lgkmcnt(0)')
        a('  s_barrier')
        a(f'  v_mov_b32 v1, {TMP}')
        a('  ds_read2_b32 v[2:3], v1 offset0:0 offset1:1')
        a('  s_waitcnt lgkmcnt(0)')
        a('  v_readfirstlane_b32 s66, v2')
        a('  v_readfirstlane_b32 s67, v3')
        a('  ds_read2_b32 v[2:3], v1 offset0:2 offset1:3')
        a('  s_waitcnt lgkmcnt(0)')
        a('  v_readfirstlane_b32 s68, v2')
        a('  v_readfirstlane_b32 s69, v3')
        a('  s_nop 3')
        a('  s_add_u32 s70, s66, s67')
        a('  s_add_u32 s71, s70, s68')
        a('  s_add_u32 s72, s71, s69')
        a('  s_cmp_ge_u32 s24, 4')
        a(f'  s_cbranch_scc1 p1_skip2{sfx}')
        a('  s_mov_b32 s73, 0')
        a('  s_cmp_eq_u32 s24, 1')
        a('  s_cselect_b32 s73, s66, s73')
        a('  s_cmp_eq_u32 s24, 2')
        a('  s_cselect_b32 s73, s70, s73')
        a('  s_cmp_eq_u32 s24, 3')
        a('  s_cselect_b32 s73, s71, s73')
        a('  v_sub_u32 v7, v7, v6')
        a('  v_add_u32 v7, s73, v7')
        for k in range(NK):
            a(f'  v_add_u32 v{t[k]}, v7, v{t[k]}')
            a(f'  ds_write_b32 v4, v{t[k]} offset:{k*1024}')
        a('  v_lshl_or_b32 v5, v7, 12, v5')
        a(f'  s_mul_i32 s40, s2, {S*4}')
        if h: a(f'  s_add_u32 s40, s40, {h*4}')
        a(f'  s_mov_b32 s41, {cfg.NTT*4}')
        a('  v_mul_lo_u32 v6, v0, s41')
        a('  buffer_store_dword v5, v6, s[20:23], s40 offen')
        a.label(f'p1_skip2{sfx}')
        a('  s_waitcnt lgkmcnt(0)')
        a('  s_barrier')
        st()
        a('  v_mov_b32 v2, 1')
        a(f'  v_mov_b32 v1, {HIST}')
        a('  s_mov_b64 exec, s[44:45]')
        r0 = h * cfg.RPS * 4
        nrec = cfg.RPS * 4
        batches = [(b, min(8, nrec - b)) for b in range(0, nrec, 8)]
        def rank_issue(bi):
            b, n = batches[bi]
            base = (bi & 1) * 8
            for x in range(n):
                rec = r0 + b + x
                j, hh = rec >> 1, rec & 1
                ad = 4 + (x & 3)
                a(f'  v_add_u32_sdwa v{ad}, v1, v{AUX+j} dst_sel:DWORD dst_unused:UNUSED_PAD src0_sel:DWORD src1_sel:WORD_{hh}')
                a(f'  ds_add_rtn_u32 v{t[base+x]}, v{ad}, v2')
        def rank_pack(bi):
            b, n = batches[bi]
            base = (bi & 1) * 8
            for x in range(0, n, 2):
                j = (r0 + b + x) >> 1
                a(f'  v_lshl_or_b32 v{AUX+j}, v{t[base+x+1]}, 16, v{t[base+x]}')
        rank_issue(0)
        for bi in range(len(batches)):
            if bi + 1 < len(batches):
                rank_issue(bi + 1)
                a(f'  s_waitcnt lgkmcnt({batches[bi+1][1]})')
            else:
                a('  s_waitcnt lgkmcnt(0)')
            rank_pack(bi)
        a('  s_mov_b32 s43, 0x20000')
        for s in range(cfg.NSL):
            a('  s_mov_b64 exec, s[44:45]')
            if s > 0:
                a(f'  s_mov_b32 s42, {s*131072}')
            for x in range(r0, r0 + nrec):
                j, hh = x >> 1, x & 1
                ad = 4 + (x & 3)
                a(f'  v_lshlrev_b32_sdwa v{ad}, 3, v{AUX+j} dst_sel:DWORD dst_unused:UNUSED_PAD src0_sel:DWORD src1_sel:WORD_{hh}')
                if s > 0:
                    a(f'  v_subrev_u32 v{ad}, s42, v{ad}')
                a(f'  v_cmpx_gt_u32 vcc, s43, v{ad}')
                a(f'  ds_write2_b32 v{ad}, v{W0+x}, v{W1+x} offset0:0 offset1:1')
                a('  s_mov_b64 exec, s[44:45]')
            a('  s_mov_b64 exec, -1')
            a(f'  s_add_u32 s16, s28, {h*cfg.TILE_BYTES + s*131072}')
            a('  s_addc_u32 s17, s29, 0')
            a('  s_and_b32 s17, s17, 0xffff')
            last = (s == cfg.NSL - 1)
            if not last:
                a('  s_mov_b32 s18, 131072')
            else:
                a(f'  s_sub_u32 s18, s72, {s*16384}')
                a('  s_lshl_b32 s18, s18, 3')
            a('  s_mov_b32 s19, 0x20000')
            a('  v_lshlrev_b32 v1, 4, v0')
            a('  v_add_u32 v3, 0x10000, v1')
            a('  s_waitcnt lgkmcnt(0)')
            a('  s_barrier')
            if s == 0 and h + 1 < S:
                a(f'  v_add_u32 v2, {HIST}, v1')
                for r in range(4, 8):
                    a(f'  v_mov_b32 v{r}, 0')
                a('  ds_write_b128 v2, v[4:7]')
                a('  ds_write_b128 v2, v[4:7] offset:16384')
            rounds = 8 if not last else cfg.LAST_ROUNDS
            rnd = 0
            while rnd < rounds:
                nr = min(4, rounds - rnd)
                for u in range(nr):
                    a(f'  ds_read_b128 {vr(t[4*u],4)}, v{1 if rnd < 4 else 3} offset:{u*16384}')
                for u in range(nr):
                    a(f'  s_waitcnt lgkmcnt({nr-1-u})')
                    so = '0' if rnd + u == 0 else f's{CO+rnd+u}'
                    a(f'  buffer_store_dwordx4 {vr(t[4*u],4)}, v1, s[16:19], {so} offen{STF}')
                    stores_done += 1
                a('  s_nop 1')
                rnd += nr
            if not (last and h == S - 1):
                a('  s_barrier')
        st()
    if st.on:
        a('  s_waitcnt vmcnt(0)')
        st()
    st.flush('s24')
    a.label('p1_done')
    a('  s_endpgm')

class RegAlloc:
    def __init__(self, start):
        self.n = start
    def get(self, k=1, align=1):
        self.n = (self.n + align - 1) // align * align
        r = self.n; self.n += k
        return r

def gen_p2(a, opt, cfg):
    st = Stamps(a, bool(opt.get('stamp')), 'p2', 1)
    b_lag = opt.get('lag', 1)
    R = b_lag + 1
    US = opt.get('ushort', 0)
    NG = 16 if US else 8
    RNT = ' nt' if opt.get('nt_rec', 0) else ''
    se = opt.get('sync', 2)
    NSEG = 16 * cfg.S
    JPC = 32 // NSEG
    NCH = 8
    ra = RegAlloc(1)
    J4 = ra.get(); J8 = ra.get(); P = ra.get(); P7 = ra.get(); J8H = ra.get()
    VN = ra.get(); VL = ra.get(); VB = ra.get(); VOFF8 = ra.get()
    Eq = [ra.get() for _ in range(NCH)]
    SELA = ra.get(); SELB = ra.get(); VDUM = ra.get(); COL = ra.get()
    D = [ra.get(2, 2), ra.get(2, 2)]
    PT = [ra.get(), ra.get()]; LA = [ra.get(), ra.get()]; GAD = [ra.get(), ra.get()]
    YR = [ra.get(), ra.get()]; AB = [ra.get(), ra.get()]
    X = [ra.get() for _ in range(6)]
    VROW4 = ra.get(); VLANE = ra.get()
    WD = ra.get(4); WU = ra.get(4); WS = ra.get(2); WR = ra.get(2); CEN = ra.get(2)
    DI = ra.get(5); OFF = ra.get(5); MM = ra.get(10, 2)
    main0 = ra.n
    REC = [ra.get(2, 2) for _ in range(R)]
    VV = [ra.get() for _ in range(R)]
    CC = [ra.get() for _ in range(R)]
    ROW = [ra.get() for _ in range(R)]
    G = [ra.get(NG) for _ in range(R)]
    maxv = ra.n
    ra2 = RegAlloc(main0)
    Sg = ra2.get(8, 2); SF = ra2.get(4); RB = ra2.get(2)
    Y = ra2.get(4, 2); GG = ra2.get(4, 2); HH = ra2.get(4, 2); Z = ra2.get(4, 2)
    maxv = max(maxv, ra2.n)
    assert maxv <= 128, maxv
    a('.p2align 8')
    a('.type p2_kernel,@function')
    a.label('p2_kernel')
    a('  s_cmp_ge_u32 s2, 256')
    a('  s_cbranch_scc1 p2_done')
    a('  s_load_dwordx2 s[28:29], s[0:1], 104')
    a('  s_load_dwordx2 s[32:33], s[0:1], 0')
    a('  s_load_dwordx2 s[34:35], s[0:1], 24')
    a('  s_load_dwordx2 s[36:37], s[0:1], 40')
    a('  s_load_dwordx4 s[40:43], s[0:1], 56')
    a('  s_load_dwordx4 s[44:47], s[0:1], 72')
    a('  s_load_dwordx2 s[48:49], s[0:1], 88')
    a('  v_readfirstlane_b32 s24, v0')
    a(f'  v_and_b32 v{VLANE}, 63, v0')
    a(f'  v_and_b32 v{P}, 15, v0')
    a('  s_lshr_b32 s24, s24, 6')
    a(f'  v_lshrrev_b32 v{X[0]}, 1, v{VLANE}')
    a(f'  v_and_b32 v{X[1]}, {NSEG-1}, v{X[0]}')
    a(f'  s_mul_i32 s25, s2, {cfg.NTT}')
    a(f'  s_mul_i32 s26, s24, {NSEG}')
    a('  s_add_u32 s25, s25, s26')
    a('  s_lshl_b32 s25, s25, 2')
    a(f'  v_lshlrev_b32 v{X[2]}, 2, v{X[1]}')
    a(f'  v_lshrrev_b32 v{VROW4}, 4, v{VLANE}')
    a('  s_waitcnt lgkmcnt(0)')
    srd(a, 12, 28, cfg.TAB_BYTES)
    a(f'  buffer_load_dword v{VN}, v{X[2]}, s[12:15], s25 offen')
    st()
    srd(a, 4, 32, E * 32)
    srd(a, 20, 34, E * 2)
    a(f'  v_lshlrev_b32 v{X[3]}, 1, v{P}')
    a(f'  v_lshl_add_u32 v{X[4]}, v{VROW4}, 7, v{X[3]}')
    npf = 0
    for q in range(4):
        a(f'  global_load_ushort v{WD+q}, v{X[4]}, s[44:45] offset:{q*32}'); npf += 1
    for q in range(4):
        a(f'  global_load_ushort v{WU+q}, v{X[4]}, s[46:47] offset:{q*32}'); npf += 1
    a(f'  v_lshl_add_u32 v{X[4]}, v{VROW4}, 5, v{X[3]}')
    for q in range(2):
        a(f'  global_load_ushort v{WS+q}, v{X[4]}, s[42:43] offset:{q*128}'); npf += 1
    for q in range(2):
        a(f'  global_load_ushort v{WR+q}, v{X[4]}, s[40:41] offset:{q*128}'); npf += 1
    a(f'  v_lshlrev_b32 v{X[4]}, 1, v{VROW4}')
    for q in range(2):
        a(f'  global_load_ushort v{CEN+q}, v{X[4]}, s[36:37] offset:{q*8}'); npf += 1
    a(f'  s_lshl_b32 s27, s2, 4')
    for u in range(5):
        a(f'  s_add_u32 s26, s24, {16*u}')
        a('  s_lshl_b32 s26, s26, 12')
        a('  s_add_u32 s26, s26, s27')
        a(f'  s_mov_b32 s{70+u}, s26')
        a(f'  v_add_u32 v{X[3]}, s26, v{P}')
        a(f'  v_lshlrev_b32 v{X[4]}, 1, v{X[3]}')
        a(f'  buffer_load_ushort v{DI+u}, v{X[4]}, s[20:23], 0 offen'); npf += 1
        a(f'  v_lshlrev_b32 v{X[4]}, 5, v{X[3]}')
        a(f'  v_lshl_add_u32 v{OFF+u}, v{VROW4}, 3, v{X[4]}')
        a(f'  buffer_load_dwordx2 {vr(MM+2*u,2)}, v{OFF+u}, s[4:7], 0 offen'); npf += 1
    a(f'  s_add_u32 s8, s28, {cfg.REC_OFF}')
    a('  s_addc_u32 s9, s29, 0')
    a('  s_and_b32 s9, s9, 0xffff')
    a(f'  s_mov_b32 s10, {cfg.REC_BYTES}')
    a('  s_mov_b32 s11, 0x20000')
    srd(a, 16, 48, E * 32)
    a(f'  v_lshlrev_b32 v{X[3]}, 4, v0')
    for r in (D[0], D[0]+1, D[1], D[1]+1):
        a(f'  v_mov_b32 v{r}, 0')
    assert D[1] == D[0] + 2
    a(f'  v_add_u32 v{X[4]}, 0x10000, v{X[3]}')
    a(f'  v_add_u32 v{X[5]}, 0x20000, v{X[3]}')
    for i in range(4):
        a(f'  ds_write_b128 v{X[3]}, {vr(D[0],4)} offset:{i*16384}')
    for i in range(4):
        a(f'  ds_write_b128 v{X[4]}, {vr(D[0],4)} offset:{i*16384}')
    for i in range(2):
        a(f'  ds_write_b128 v{X[5]}, {vr(D[0],4)} offset:{i*16384}')
    a(f'  v_and_b32 v{P7}, 7, v0')
    if US:
        a(f'  v_lshlrev_b32 v{J4}, 1, v{P}')
        for r in range(G[0], G[0] + NG*R):
            a(f'  v_mov_b32 v{r}, 0')
    else:
        a(f'  v_lshlrev_b32 v{J4}, 2, v{P7}')
    a(f'  v_lshlrev_b32 v{J8}, 3, v{P}')
    a(f'  v_lshlrev_b32 v{J8H}, 3, v{P7}')
    a(f'  v_mov_b32 v{VDUM}, {DUMMY_ROW*128}')
    a(f'  v_cmp_gt_u32 vcc, 8, v{P}')
    a(f'  v_mov_b32 v{X[3]}, 0x03020c0c')
    a(f'  v_mov_b32 v{X[4]}, 0x05040c0c')
    a(f'  v_cndmask_b32 v{SELA}, v{X[3]}, v{X[4]}, vcc')
    a(f'  v_mov_b32 v{X[3]}, 0x07060c0c')
    a(f'  v_mov_b32 v{X[4]}, 0x01000c0c')
    a(f'  v_cndmask_b32 v{SELB}, v{X[3]}, v{X[4]}, vcc')
    a(f'  v_and_b32 v{VOFF8}, 1, v{VLANE}')
    a(f'  v_lshlrev_b32 v{VOFF8}, 3, v{VOFF8}')
    if JPC > 1:
        a(f'  v_lshrrev_b32 v{X[3]}, {1 + int(math.log2(NSEG))}, v{VLANE}')
        a(f'  v_lshl_add_u32 v{VOFF8}, v{X[3]}, 4, v{VOFF8}')
    a(f'  s_mul_i32 s26, s24, {NSEG}')
    a(f'  v_add_u32 v{X[0]}, s26, v{X[1]}')
    a(f'  s_mov_b32 s27, {cfg.TILE_LINES}')
    a(f'  v_mul_lo_u32 v{X[0]}, v{X[0]}, s27')
    a(f'  s_waitcnt vmcnt({npf})')
    a(f'  v_lshrrev_b32 v{VB}, 16, v{VN}')
    a(f'  v_and_b32 v{VN}, 0xffff, v{VN}')
    a(f'  v_add_u32 v{VB}, v{VB}, v{X[0]}')
    a(f'  v_lshlrev_b32 v{VB}, 7, v{VB}')
    a(f'  v_mov_b32 v{X[0]}, v{VN}')
    for sh in (1, 2, 4, 8):
        a('  s_nop 1')
        a(f'  v_max_u32_dpp v{X[0]}, v{X[0]}, v{X[0]} row_ror:{sh} row_mask:0xf bank_mask:0xf')
    a('  s_nop 1')
    for i, ln in enumerate((0, 16, 32, 48)):
        a(f'  v_readlane_b32 s{56+i}, v{X[0]}, {ln}')
    a('  s_nop 3')
    a('  s_max_u32 s56, s56, s57')
    a('  s_max_u32 s58, s58, s59')
    a('  s_max_u32 s50, s56, s58')
    a('  s_mov_b32 s51, 0')
    a('  s_mov_b32 s52, 0xffffffc0')
    a('  s_mov_b32 s53, 0xffff0000')
    a('  s_mov_b32 s54, 0x3ff80')
    a('  s_mov_b32 s55, 1')
    if se:
        a(f'  s_mov_b32 s69, {opt.get("nsync", 38 // se)}')
    a.label('p2_outer')
    a('  s_cmp_ge_u32 s51, s50')
    a('  s_cbranch_scc1 p2_main_done')
    for k in range(NCH):
        a(f'  s_add_u32 s66, s51, {16*JPC*k}')
        a(f'  v_add_u32 v{X[0]}, s66, v{VOFF8}')
        a(f'  v_cmp_gt_u32 vcc, v{VN}, v{X[0]}')
        a(f'  v_sub_u32 v{X[1]}, v{VN}, v{X[0]}')
        a(f'  v_min_u32 v{X[1]}, 8, v{X[1]}')
        a(f'  v_lshl_add_u32 v{X[2]}, v{X[0]}, 3, v{VB}')
        a(f'  v_or_b32 v{X[2]}, v{X[2]}, v{X[1]}')
        a(f'  s_bcnt1_i32_b64 s67, vcc')
        a(f'  v_mbcnt_lo_u32_b32 v{X[3]}, vcc_lo, 0')
        a(f'  v_mbcnt_hi_u32_b32 v{X[3]}, vcc_hi, v{X[3]}')
        a(f'  v_sub_u32 v{X[4]}, v{VLANE}, v{X[3]}')
        a(f'  v_add_u32 v{X[4]}, s67, v{X[4]}')
        a(f'  v_cndmask_b32 v{X[4]}, v{X[4]}, v{X[3]}, vcc')
        a(f'  v_cndmask_b32 v{X[2]}, 0, v{X[2]}, vcc')
        a(f'  v_and_b32 v{X[5]}, 6, v{X[4]}')
        a(f'  v_lshlrev_b32 v{X[5]}, 5, v{X[5]}')
        a(f'  v_and_or_b32 v{X[5]}, v{X[4]}, -8, v{X[5]}')
        a(f'  v_and_b32 v{X[4]}, 1, v{X[4]}')
        a(f'  v_lshl_or_b32 v{X[5]}, v{X[4]}, 2, v{X[5]}')
        a(f'  ds_permute_b32 v{Eq[k]}, v{X[5]}, v{X[2]}')
        a(f'  s_add_u32 s{56+k}, s67, 7')
        a(f'  s_lshr_b32 s{56+k}, s{56+k}, 3')
    a('  s_add_u32 s64, s56, s57')
    for k in range(2, NCH):
        a(f'  s_add_u32 s64, s64, s{56+k}')
    a(f'  s_mov_b32 s65, {NCH-1}')
    a('  s_waitcnt lgkmcnt(0)')
    uid = [0]
    def stageA(b):
        u = uid[0]; uid[0] += 1
        a.label(f'p2_chk{u}')
        a('  s_cmp_lg_u32 s56, 0')
        a(f'  s_cbranch_scc1 p2_go{u}')
        a('  s_cmp_eq_u32 s65, 0')
        a(f'  s_cbranch_scc1 p2_exh{u}')
        for k in range(NCH - 1):
            a(f'  v_mov_b32 v{Eq[k]}, v{Eq[k+1]}')
            a(f'  s_mov_b32 s{56+k}, s{57+k}')
        a('  s_sub_u32 s65, s65, 1')
        a(f'  s_branch p2_chk{u}')
        a.label(f'p2_exh{u}')
        a(f'  v_mov_b32 v{Eq[0]}, 0')
        a('  s_mov_b32 s56, 1')
        a('  s_nop 0')
        a.label(f'p2_go{u}')
        a('  s_sub_u32 s56, s56, 1')
        a(f'  v_mov_b32_dpp v{X[0]}, v{Eq[0]} row_newbcast:0 row_mask:0xf bank_mask:0x3')
        a(f'  v_mov_b32_dpp v{X[0]}, v{Eq[0]} row_newbcast:1 row_mask:0xf bank_mask:0xc')
        a(f'  v_mov_b32_dpp v{Eq[0]}, v{Eq[0]} row_shl:2 row_mask:0xf bank_mask:0xf bound_ctrl:0')
        a(f'  v_and_or_b32 v{X[1]}, v{X[0]}, s52, v{J8H}')
        a(f'  v_and_b32 v{VV[b]}, 15, v{X[0]}')
        a(f'  buffer_load_dwordx2 {vr(REC[b],2)}, v{X[1]}, s[8:11], 0 offen{RNT}')
    def decode(b):
        a(f'  v_cmp_gt_u32 vcc, v{VV[b]}, v{P7}')
        a(f'  v_lshlrev_b32 v{X[2]}, 7, v{REC[b]+1}')
        a(f'  v_and_b32 v{CC[b]}, s53, v{REC[b]+1}')
        a(f'  v_and_b32 v{X[2]}, s54, v{X[2]}')
        a(f'  v_cndmask_b32 v{COL}, 0, v{REC[b]}, vcc')
        a(f'  v_cndmask_b32 v{ROW[b]}, v{VDUM}, v{X[2]}, vcc')
        a('  s_nop 0')
    def gather(b, g):
        ad = GAD[g & 1]
        if US:
            a(f'  v_add_u32_dpp v{ad}, v{COL}, v{J4} row_newbcast:{g} row_mask:0xf bank_mask:0xf')
            a(f'  buffer_load_short_d16_hi v{G[b]+g}, v{ad}, s[4:7], 0 offen')
            return
        a(f'  v_add_u32_dpp v{ad}, v{COL}, v{J4} row_newbcast:{2*g} row_mask:0xf bank_mask:0x3')
        a(f'  v_add_u32_dpp v{ad}, v{COL}, v{J4} row_newbcast:{2*g+1} row_mask:0xf bank_mask:0xc')
        a(f'  buffer_load_dword v{G[b]+g}, v{ad}, s[4:7], 0 offen')
    def consume(b, g):
        x = G[b] + g; y = YR[g & 1]
        if US:
            p, la, d = PT[g & 1], LA[g & 1], D[g & 1]
            a(f'  v_mul_f32_dpp v{p}, v{CC[b]}, v{x} row_newbcast:{g} row_mask:0xf bank_mask:0xf')
            a(f'  v_add_u32_dpp v{la}, v{ROW[b]}, v{J8} row_newbcast:{g} row_mask:0xf bank_mask:0xf')
            a(f'  v_cvt_f64_f32 {vr(d,2)}, v{p}')
            a(f'  ds_add_f64 v{la}, {vr(d,2)}')
            return
        a(f'  v_mov_b32_dpp v{y}, v{x} row_ror:8 row_mask:0xf bank_mask:0xf')
        a(f'  v_add_u32_dpp v{LA[0]}, v{ROW[b]}, v{J8} row_newbcast:{2*g} row_mask:0xf bank_mask:0xf')
        a(f'  v_add_u32_dpp v{LA[1]}, v{ROW[b]}, v{J8} row_newbcast:{2*g+1} row_mask:0xf bank_mask:0xf')
        a(f'  v_perm_b32 v{AB[0]}, v{x}, v{y}, v{SELA}')
        a(f'  v_perm_b32 v{AB[1]}, v{x}, v{y}, v{SELB}')
        a(f'  v_mul_f32_dpp v{PT[0]}, v{CC[b]}, v{AB[0]} row_newbcast:{2*g} row_mask:0xf bank_mask:0xf')
        a(f'  v_mul_f32_dpp v{PT[1]}, v{CC[b]}, v{AB[1]} row_newbcast:{2*g+1} row_mask:0xf bank_mask:0xf')
        a(f'  v_cvt_f64_f32 {vr(D[0],2)}, v{PT[0]}')
        a(f'  v_cvt_f64_f32 {vr(D[1],2)}, v{PT[1]}')
        a(f'  ds_add_f64 v{LA[0]}, {vr(D[0],2)}')
        a(f'  ds_add_f64 v{LA[1]}, {vr(D[1],2)}')
    for t in range(-2*b_lag, -b_lag):
        stageA((t + 2*b_lag) % R)
    for t in range(-b_lag, 0):
        stageA((t + 2*b_lag) % R)
        a(f'  s_waitcnt vmcnt({b_lag + NG*(t + b_lag)})')
        decode((t + b_lag) % R)
        for g in range(NG):
            gather((t + b_lag) % R, g)
    a('  s_cmp_eq_u32 s55, 0')
    a('  s_cbranch_scc1 p2_loop')
    a('  s_mov_b32 s55, 0')
    a('  s_barrier')
    st()
    a.label('p2_loop')
    U = R
    if se and se > R and se % R == 0:
        U = se
    for t in range(U):
        tb = t % R
        stageA((tb + 2*b_lag) % R)
        a(f'  s_waitcnt vmcnt({(NG+1)*b_lag})')
        decode((tb + b_lag) % R)
        for g in range(NG):
            gather((tb + b_lag) % R, g)
            a(f'  s_waitcnt vmcnt({(NG+1)*b_lag})')
            consume(tb, g)
        if se and (t % se) == se - 1:
            a('  s_cmp_eq_u32 s69, 0')
            a(f'  s_cbranch_scc1 p2_nosync{t}')
            a('  s_barrier')
            a('  s_sub_u32 s69, s69, 1')
            a.label(f'p2_nosync{t}')
        a('  s_sub_u32 s64, s64, 1')
        a('  s_cmp_eq_u32 s64, 0')
        if t < U - 1:
            a('  s_cbranch_scc1 p2_loop_exit')
        else:
            a('  s_cbranch_scc0 p2_loop')
    a.label('p2_loop_exit')
    a('  s_waitcnt vmcnt(0)')
    a(f'  s_add_u32 s51, s51, {16*JPC*NCH}')
    a('  s_branch p2_outer')
    a.label('p2_main_done')
    a('  s_cmp_eq_u32 s55, 0')
    a('  s_cbranch_scc1 p2_epi')
    a('  s_waitcnt lgkmcnt(0)')
    a('  s_barrier')
    a.label('p2_epi')
    if se:
        a.label('p2_owed')
        a('  s_cmp_eq_u32 s69, 0')
        a('  s_cbranch_scc1 p2_owed_done')
        a('  s_barrier')
        a('  s_sub_u32 s69, s69, 1')
        a('  s_branch p2_owed')
        a.label('p2_owed_done')
    st()
    a('  s_waitcnt vmcnt(0)')
    for r in range(WD, CEN + 2):
        a(f'  v_lshlrev_b32 v{r}, 16, v{r}')
    a('  s_mov_b32 s76, 0xc1200000')
    a('  s_mov_b32 s77, 0x3fb8aa3b')
    a('  s_waitcnt lgkmcnt(0)')
    a('  s_barrier')
    st()
    for u in range(5):
        a(f'  s_cmp_ge_u32 s{70+u}, {E}')
        a(f'  s_cbranch_scc1 p2_epi_skip{u}')
        a(f'  s_add_u32 s26, s24, {16*u}')
        a('  s_lshl_b32 s26, s26, 11')
        a(f'  v_lshlrev_b32 v{X[0]}, 7, v{P}')
        a(f'  v_lshl_add_u32 v{X[0]}, v{VROW4}, {5 if US else 4}, v{X[0]}')
        a(f'  v_add_u32 v{X[0]}, s26, v{X[0]}')
        a(f'  ds_read_b128 {vr(Sg,4)}, v{X[0]}')
        a(f'  ds_read_b128 {vr(Sg+4,4)}, v{X[0]} offset:{16 if US else 64}')
        a(f'  v_lshlrev_b32 v{X[1]}, 16, v{DI+u}')
        a(f'  v_sub_f32 v{X[2]}, v{X[1]}, v{CEN}')
        a(f'  v_sub_f32 v{X[3]}, v{X[1]}, v{CEN+1}')
        def rnd2():
            a(f'  v_cvt_pk_bf16_f32 v{X[4]}, v{X[2]}, v{X[3]}')
            a(f'  v_lshlrev_b32 v{X[2]}, 16, v{X[4]}')
            a(f'  v_and_b32 v{X[3]}, s53, v{X[4]}')
        rnd2()
        a(f'  v_mul_f32 v{X[2]}, v{X[2]}, v{X[2]}')
        a(f'  v_mul_f32 v{X[3]}, v{X[3]}, v{X[3]}')
        rnd2()
        a(f'  v_mul_f32 v{X[2]}, s76, v{X[2]}')
        a(f'  v_mul_f32 v{X[3]}, s76, v{X[3]}')
        rnd2()
        a(f'  v_mul_f32 v{X[2]}, s77, v{X[2]}')
        a(f'  v_mul_f32 v{X[3]}, s77, v{X[3]}')
        a(f'  v_exp_f32 v{X[2]}, v{X[2]}')
        a(f'  v_exp_f32 v{X[3]}, v{X[3]}')
        a('  s_nop 0')
        a(f'  v_cvt_pk_bf16_f32 v{X[4]}, v{X[2]}, v{X[3]}')
        a(f'  v_lshlrev_b32 v{RB}, 16, v{X[4]}')
        a(f'  v_and_b32 v{RB+1}, s53, v{X[4]}')
        a('  s_waitcnt lgkmcnt(0)')
        order = [0, 1, 2, 3] if US else [0, 2, 1, 3]
        for i in range(4):
            a(f'  v_cvt_f32_f64 v{SF+order[i]}, {vr(Sg+2*i,2)}')
        a('  s_nop 1')
        a(f'  v_mfma_f32_16x16x4_f32 {vr(GG,4)}, v{WS}, v{RB}, 0')
        a(f'  v_mfma_f32_16x16x4_f32 {vr(HH,4)}, v{WR}, v{RB}, 0')
        a(f'  v_mfma_f32_16x16x4_f32 {vr(Y,4)}, v{WD}, v{SF}, 0')
        a(f'  v_mfma_f32_16x16x4_f32 {vr(GG,4)}, v{WS+1}, v{RB+1}, {vr(GG,4)}')
        a(f'  v_mfma_f32_16x16x4_f32 {vr(HH,4)}, v{WR+1}, v{RB+1}, {vr(HH,4)}')
        for q in range(1, 4):
            a(f'  v_mfma_f32_16x16x4_f32 {vr(Y,4)}, v{WD+q}, v{SF+q}, {vr(Y,4)}')
        a('  s_nop 15')
        for q in range(4):
            a(f'  v_mul_f32 v{Y+q}, v{Y+q}, v{GG+q}')
        a('  s_nop 1')
        a(f'  v_mfma_f32_16x16x4_f32 {vr(Z,4)}, v{WU}, v{Y}, 0')
        for q in range(1, 4):
            a(f'  v_mfma_f32_16x16x4_f32 {vr(Z,4)}, v{WU+q}, v{Y+q}, {vr(Z,4)}')
        a(f'  v_cvt_pk_bf16_f32 v{X[0]}, v{HH}, v{HH+1}')
        a(f'  v_cvt_pk_bf16_f32 v{X[1]}, v{HH+2}, v{HH+3}')
        a(f'  v_lshlrev_b32 v{HH}, 16, v{X[0]}')
        a(f'  v_and_b32 v{HH+1}, s53, v{X[0]}')
        a(f'  v_lshlrev_b32 v{HH+2}, 16, v{X[1]}')
        a(f'  v_and_b32 v{HH+3}, s53, v{X[1]}')
        a('  s_nop 15')
        a(f'  v_cvt_pk_bf16_f32 v{X[0]}, v{Z}, v{Z+1}')
        a(f'  v_cvt_pk_bf16_f32 v{X[1]}, v{Z+2}, v{Z+3}')
        a(f'  v_lshlrev_b32 v{Z}, 16, v{X[0]}')
        a(f'  v_and_b32 v{Z+1}, s53, v{X[0]}')
        a(f'  v_lshlrev_b32 v{Z+2}, 16, v{X[1]}')
        a(f'  v_and_b32 v{Z+3}, s53, v{X[1]}')
        for q in range(4):
            a(f'  v_mul_f32 v{Z+q}, v{Z+q}, v{HH+q}')
        a(f'  v_cvt_pk_bf16_f32 v{X[0]}, v{Z}, v{Z+1}')
        a(f'  v_cvt_pk_bf16_f32 v{X[1]}, v{Z+2}, v{Z+3}')
        a(f'  v_lshlrev_b32 v{Z}, 16, v{X[0]}')
        a(f'  v_and_b32 v{Z+1}, s53, v{X[0]}')
        a(f'  v_lshlrev_b32 v{Z+2}, 16, v{X[1]}')
        a(f'  v_and_b32 v{Z+3}, s53, v{X[1]}')
        a(f'  v_lshlrev_b32 v{X[2]}, 16, v{MM+2*u}')
        a(f'  v_and_b32 v{X[3]}, s53, v{MM+2*u}')
        a(f'  v_lshlrev_b32 v{X[4]}, 16, v{MM+2*u+1}')
        a(f'  v_and_b32 v{X[5]}, s53, v{MM+2*u+1}')
        for q in range(4):
            a(f'  v_add_f32 v{Z+q}, v{Z+q}, v{X[2+q]}')
        a(f'  v_cvt_pk_bf16_f32 v{Z}, v{Z}, v{Z+1}')
        a(f'  v_cvt_pk_bf16_f32 v{Z+1}, v{Z+2}, v{Z+3}')
        OTF = {0: '', 1: ' nt', 2: ' sc1', 3: ' sc0 sc1', 4: ' sc0'}[opt.get('out_st', 0)]
        a(f'  buffer_store_dwordx2 {vr(Z,2)}, v{OFF+u}, s[16:19], 0 offen{OTF}')
        a.label(f'p2_epi_skip{u}')
    if st.on:
        a('  s_waitcnt vmcnt(0)')
        st()
    st.flush('s24')
    a.label('p2_done')
    a('  s_endpgm')
    return maxv

def descriptor(a, name, vgpr, sgpr):
    a(f'.amdhsa_kernel {name}')
    a(f'  .amdhsa_next_free_vgpr {vgpr}')
    a(f'  .amdhsa_next_free_sgpr {sgpr}')
    a(f'  .amdhsa_accum_offset {(vgpr + 3) // 4 * 4}')
    a('  .amdhsa_group_segment_fixed_size 0')
    a('  .amdhsa_kernarg_size 112')
    a('  .amdhsa_user_sgpr_count 2')
    a('  .amdhsa_user_sgpr_kernarg_segment_ptr 1')
    a('  .amdhsa_system_sgpr_workgroup_id_x 1')
    a('  .amdhsa_float_denorm_mode_32 3')
    a('.end_amdhsa_kernel')

HEADER = '''; Kernarg layout (112 bytes, ptrs only, base s[0:1]):
; @launch kernel=p1_kernel grid=(256,1,1) block=(1024,1,1) lds=163840
; @launch kernel=p2_kernel grid=(256,1,1) block=(1024,1,1) lds=163840
.amdgcn_target "amdgcn-amd-amdhsa--gfx950"
.text
.globl p1_kernel
.globl p2_kernel
'''

def build(opt):
    cfg = Cfg(opt)
    a = Asm()
    a(HEADER.rstrip('\n'))
    gen_p1(a, opt, cfg)
    v2 = gen_p2(a, opt, cfg)
    a('.section .rodata,"a"')
    a('.p2align 6')
    ns = 102 if opt.get('stamp') else 80
    descriptor(a, 'p1_kernel', 128, ns)
    a('.p2align 6')
    descriptor(a, 'p2_kernel', v2, ns)
    return a.text()

if __name__ == '__main__':
    out = sys.argv[1] if len(sys.argv) > 1 else 'standalone__molecular_angular_gemnet__graph.s'
    opt = {}
    for kv in sys.argv[2:]:
        k, v = kv.split('=')
        opt[k] = int(v) if v.lstrip('-').isdigit() else v
    open(out, 'w').write(build(opt))
    print('wrote', out)
```

```python
import struct, sys, math

def f32bits(x):
    return struct.unpack('<I', struct.pack('<f', x))[0]
def bits2f(b):
    return struct.unpack('<f', struct.pack('<I', b))[0]

E = 320000
T = 10240000
NWG = 256
KSH = 14
NK = (E + (1 << KSH) - 1) >> KSH
HIST = 131072
TMP = HIST + NK * 1024
DUMMY_ROW = 1264

class Cfg:
    def __init__(self, opt):
        self.S = opt.get('S', 2)
        self.NTT = NWG * self.S
        self.SUB = 40000 // self.S
        self.RPS = 10 // self.S
        maxpad = self.SUB + 256 * 15
        self.TILE_LINES = ((maxpad + 15) // 16 + 15) // 16 * 16
        self.TILE_BYTES = self.TILE_LINES * 128
        self.TAB_BYTES = 256 * self.NTT * 4
        self.REC_OFF = self.TAB_BYTES
        self.REC_BYTES = self.NTT * self.TILE_BYTES
        self.NSL = (maxpad + 16383) // 16384
        self.LAST_ROUNDS = ((maxpad - (self.NSL - 1) * 16384) * 8 + 16383) // 16384
        assert self.SUB > (self.NSL - 1) * 16384

class Asm:
    def __init__(self):
        self.lines = []
    def __call__(self, s=''):
        for l in s.split('\n'):
            self.lines.append(l)
    def label(self, s):
        self.lines.append(s + ':')
    def text(self):
        return '\n'.join(self.lines) + '\n'

def vr(a, n=1):
    return f'v{a}' if n == 1 else f'v[{a}:{a+n-1}]'

def srd(a, d, ptr, size):
    a(f'  s_mov_b32 s{d}, s{ptr}')
    a(f'  s_and_b32 s{d+1}, s{ptr+1}, 0xffff')
    a(f'  s_mov_b32 s{d+2}, {size}')
    a(f'  s_mov_b32 s{d+3}, 0x20000')

class Stamps:
    def __init__(self, a, on, name, slot):
        self.a = a; self.on = on; self.n = 0; self.name = name; self.slot = slot
    def __call__(self):
        if not self.on: return
        a = self.a
        a('  s_memtime s[80:81]')
        a('  s_memrealtime s[82:83]')
        a('  s_waitcnt lgkmcnt(0)')
        a(f'  s_mov_b32 s{84+2*self.n}, s80')
        a(f'  s_mov_b32 s{85+2*self.n}, s82')
        self.n += 1
        assert self.n <= 9
    def flush(self, wavereg):
        if not self.on: return
        a = self.a
        a(f'  s_cmp_lg_u32 {wavereg}, 0')
        a(f'  s_cbranch_scc1 {self.name}_nostamp')
        a('  s_load_dwordx2 s[80:81], s[0:1], 104')
        a('  s_waitcnt lgkmcnt(0)')
        a(f'  s_add_u32 s80, s80, {200*1048576 + self.slot*65536}')
        a('  s_addc_u32 s81, s81, 0')
        a('  s_lshl_b32 s82, s2, 7')
        a('  v_mov_b32 v1, s82')
        for i in range(2*self.n):
            a(f'  v_mov_b32 v2, s{84+i}')
            a(f'  global_store_dword v1, v2, s[80:81] offset:{4*i}')
        a.label(f'{self.name}_nostamp')

def gen_p1(a, opt, cfg):
    st = Stamps(a, bool(opt.get('stamp')), 'p1', 0)
    NTF = ' nt' if opt.get('nt_in', 1) else ''
    STF = {0: '', 1: ' nt', 2: ' sc1', 3: ' sc0 sc1', 4: ' sc0'}[opt.get('nt_st', 0)]
    S = cfg.S
    W0, W1, AUX = 8, 48, 88
    CO = 32
    t = [108 + i for i in range(20)]
    inv2pi = 1.0 / (2.0 * math.pi)
    chi_bits = f32bits(inv2pi) & 0xffffff00
    clo_bits = f32bits(inv2pi - bits2f(chi_bits))
    a('.p2align 8')
    a('.type p1_kernel,@function')
    a.label('p1_kernel')
    a('  s_cmp_ge_u32 s2, 256')
    a('  s_cbranch_scc1 p1_done')
    a('  s_load_dwordx4 s[32:35], s[0:1], 8')
    a('  s_load_dwordx2 s[36:37], s[0:1], 32')
    a('  s_load_dwordx2 s[38:39], s[0:1], 48')
    a('  s_load_dwordx2 s[28:29], s[0:1], 104')
    a('  s_load_dwordx2 s[74:75], s[0:1], 0')
    a('  v_lshlrev_b32 v1, 4, v0')
    a(f'  v_add_u32 v2, {HIST}, v1')
    for r in range(4, 8):
        a(f'  v_mov_b32 v{r}, 0')
    a('  ds_write_b128 v2, v[4:7]')
    a('  ds_write_b128 v2, v[4:7] offset:16384')
    a('  s_mul_i32 s40, s2, 160000')
    a('  s_mul_i32 s41, s2, 80000')
    a('  v_add_u32 v1, s40, v1')
    a('  v_lshlrev_b32 v3, 3, v0')
    a('  v_add_u32 v3, s41, v3')
    a('  v_readfirstlane_b32 s24, v0')
    a('  v_cmp_gt_u32 vcc, 1000, v0')
    a('  s_lshr_b32 s24, s24, 6')
    a('  s_mov_b64 s[44:45], vcc')
    for i in range(1, 10):
        a(f'  s_mov_b32 s{45+i}, {i*16000}')
        a(f'  s_mov_b32 s{55+i}, {i*8000}')
    a('  s_waitcnt lgkmcnt(0)')
    a('  s_load_dword s26, s[38:39], 0')
    srd(a, 4, 32, T * 4)
    srd(a, 8, 34, T * 4)
    srd(a, 12, 36, T * 2)
    st()
    a('  s_mov_b64 exec, s[44:45]')
    def issue_round(i):
        so = '0' if i == 0 else f's{45+i}'
        sa = '0' if i == 0 else f's{55+i}'
        a(f'  buffer_load_dwordx4 {vr(W0+4*i,4)}, v1, s[4:7], {so} offen{NTF}')
        a(f'  buffer_load_dwordx4 {vr(W1+4*i,4)}, v1, s[8:11], {so} offen{NTF}')
        a(f'  buffer_load_dwordx2 {vr(AUX+2*i,2)}, v3, s[12:15], {sa} offen{NTF}')
    AHEAD = opt.get('ahead', 5)
    for i in range(AHEAD):
        issue_round(i)
    issued = AHEAD
    a('  s_mov_b32 s27, 0xffff0000')
    a(f'  s_mov_b32 s30, {chi_bits:#x}')
    a(f'  s_mov_b32 s31, {clo_bits:#x}')
    a(f'  s_mov_b32 s42, {HIST}')
    a('  s_mov_b32 s43, 0x3fc')
    a('  v_mov_b32 v2, 1')
    srd(a, 20, 28, cfg.TAB_BYTES)
    srd(a, 76, 74, E * 32)
    a(f'  s_mul_i32 s40, s2, {S * cfg.TILE_BYTES}')
    a('  s_add_u32 s28, s28, s40')
    a('  s_addc_u32 s29, s29, 0')
    a(f'  s_add_u32 s28, s28, {cfg.REC_OFF}')
    a('  s_addc_u32 s29, s29, 0')
    a('  s_waitcnt lgkmcnt(0)')
    a('  s_and_b32 s26, s26, 0xffff')
    a('  s_lshl_b32 s26, s26, 16')
    a('  s_barrier')
    for i in range(1, 8):
        a(f'  s_mov_b32 s{CO+i}, {i*16384}')
    stores_done = 0
    for h in range(S):
        sfx = f'_{h}'
        if h > 0:
            a('  v_mov_b32 v2, 1')
            a(f'  s_mov_b32 s42, {HIST}')
            a('  s_mov_b32 s43, 0x3fc')
            a('  s_mov_b64 exec, s[44:45]')
        for i in range(h * cfg.RPS, (h + 1) * cfg.RPS):
            A = [W0 + 4*i + e for e in range(4)]
            O = [W1 + 4*i + e for e in range(4)]
            G = [AUX + 2*i, AUX + 2*i + 1]
            a(f'  s_waitcnt vmcnt({3*(issued - 1 - i) + stores_done})')
            if issued < 10:
                issue_round(issued); issued += 1
            a(f'  v_lshlrev_b32 v{t[0]}, 16, v{G[0]}')
            a(f'  v_and_b32 v{t[1]}, s27, v{G[0]}')
            a(f'  v_lshlrev_b32 v{t[2]}, 16, v{G[1]}')
            a(f'  v_and_b32 v{t[3]}, s27, v{G[1]}')
            for e in range(4):
                a(f'  v_mul_f32 v{t[e]}, s26, v{t[e]}')
            a(f'  v_cvt_pk_bf16_f32 v{t[4]}, v{t[0]}, v{t[1]}')
            a(f'  v_cvt_pk_bf16_f32 v{t[5]}, v{t[2]}, v{t[3]}')
            for e in range(4):
                a(f'  v_lshrrev_b32 v{t[8+e]}, 8, v{O[e]}')
            a(f'  v_lshlrev_b32 v{t[0]}, 16, v{t[4]}')
            a(f'  v_and_b32 v{t[1]}, s27, v{t[4]}')
            a(f'  v_lshlrev_b32 v{t[2]}, 16, v{t[5]}')
            a(f'  v_and_b32 v{t[3]}, s27, v{t[5]}')
            for e in range(4):
                a(f'  v_bfi_b32 v{t[8+e]}, 15, v{O[e]}, v{t[8+e]}')
            for e in range(4):
                a(f'  v_mul_f32 v{t[4+e]}, s30, v{t[e]}')
            for e in range(4):
                a(f'  v_fract_f32 v{t[4+e]}, v{t[4+e]}')
            for e in range(4):
                a(f'  v_fma_f32 v{t[4+e]}, v{t[e]}, s31, v{t[4+e]}')
            for e in range(4):
                a(f'  v_cos_f32 v{t[4+e]}, v{t[4+e]}')
            for e in range(4):
                a(f'  v_lshrrev_b32 v{t[12+e]}, 2, v{O[e]}')
            for e in range(4):
                a(f'  v_lshrrev_b32 v{t[e]}, {KSH}, v{A[e]}')
            for e in range(4):
                a(f'  v_and_b32 v{t[12+e]}, s43, v{t[12+e]}')
            for e in range(4):
                a(f'  v_lshl_or_b32 v{t[12+e]}, v{t[e]}, 10, v{t[12+e]}')
            a(f'  v_cvt_pk_bf16_f32 v{t[16]}, v{t[4]}, v{t[5]}')
            a(f'  v_cvt_pk_bf16_f32 v{t[17]}, v{t[6]}, v{t[7]}')
            for e in range(4):
                a(f'  v_add_u32 v{t[e]}, s42, v{t[12+e]}')
            for e in range(4):
                a(f'  ds_add_u32 v{t[e]}, v2')
            for e in range(4):
                a(f'  v_lshlrev_b32 v{A[e]}, 5, v{A[e]}')
            a(f'  v_lshl_or_b32 v{O[0]}, v{t[16]}, 16, v{t[8]}')
            a(f'  v_and_or_b32 v{O[1]}, v{t[16]}, s27, v{t[9]}')
            a(f'  v_lshl_or_b32 v{O[2]}, v{t[17]}, 16, v{t[10]}')
            a(f'  v_and_or_b32 v{O[3]}, v{t[17]}, s27, v{t[11]}')
            a(f'  v_lshl_or_b32 v{G[0]}, v{t[13]}, 16, v{t[12]}')
            a(f'  v_lshl_or_b32 v{G[1]}, v{t[15]}, 16, v{t[14]}')
        a('  s_mov_b64 exec, -1')
        a('  s_waitcnt lgkmcnt(0)')
        a('  s_barrier')
        st()
        if h == S - 1 and opt.get('mpf1', 1):
            a('  s_sub_u32 s40, s24, 4')
            a('  s_cmp_ge_u32 s40, 5')
            a('  s_cbranch_scc1 p1_nopf')
            a('  s_mul_i32 s41, s2, 40000')
            a('  s_and_b32 s41, s41, 0xffffff80')
            a('  v_subrev_u32 v5, 256, v0')
            a('  v_lshlrev_b32 v5, 7, v5')
            a(f'  buffer_load_dword v{t[18]}, v5, s[76:79], s41 offen')
            a.label('p1_nopf')
        a('  v_lshlrev_b32 v4, 2, v0')
        a(f'  v_add_u32 v4, {HIST}, v4')
        a('  s_cmp_ge_u32 s24, 4')
        a(f'  s_cbranch_scc1 p1_skip1{sfx}')
        for k in range(NK):
            a(f'  ds_read_b32 v{t[k]}, v4 offset:{k*1024}')
        a('  v_mov_b32 v5, 0')
        a('  s_waitcnt lgkmcnt(0)')
        ra, rb = 5, 6
        for k in range(NK):
            a(f'  v_add_u32 v{rb}, v{ra}, v{t[k]}')
            a(f'  v_mov_b32 v{t[k]}, v{ra}')
            ra, rb = rb, ra
        assert ra == 5
        a('  v_add_u32 v6, 15, v5')
        a('  v_and_b32 v6, -16, v6')
        a('  v_mov_b32 v7, v6')
        for sh in (1, 2, 4, 8):
            a('  s_nop 1')
            a(f'  v_add_u32_dpp v7, v7, v7 row_shr:{sh} row_mask:0xf bank_mask:0xf bound_ctrl:0')
        a('  s_nop 1')
        a('  v_add_u32_dpp v7, v7, v7 row_bcast:15 row_mask:0xa bank_mask:0xf')
        a('  s_nop 1')
        a('  v_add_u32_dpp v7, v7, v7 row_bcast:31 row_mask:0xc bank_mask:0xf')
        a('  s_lshl_b32 s40, s24, 2')
        a(f'  s_add_u32 s40, s40, {TMP}')
        a('  v_mov_b32 v3, s40')
        a('  s_mov_b32 exec_lo, 0')
        a('  s_mov_b32 exec_hi, 0x80000000')
        a('  ds_write_b32 v3, v7')
        a('  s_mov_b64 exec, -1')
        a.label(f'p1_skip1{sfx}')
        a('  s_waitcnt lgkmcnt(0)')
        a('  s_barrier')
        a(f'  v_mov_b32 v1, {TMP}')
        a('  ds_read2_b32 v[2:3], v1 offset0:0 offset1:1')
        a('  s_waitcnt lgkmcnt(0)')
        a('  v_readfirstlane_b32 s66, v2')
        a('  v_readfirstlane_b32 s67, v3')
        a('  ds_read2_b32 v[2:3], v1 offset0:2 offset1:3')
        a('  s_waitcnt lgkmcnt(0)')
        a('  v_readfirstlane_b32 s68, v2')
        a('  v_readfirstlane_b32 s69, v3')
        a('  s_nop 3')
        a('  s_add_u32 s70, s66, s67')
        a('  s_add_u32 s71, s70, s68')
        a('  s_add_u32 s72, s71, s69')
        a('  s_cmp_ge_u32 s24, 4')
        a(f'  s_cbranch_scc1 p1_skip2{sfx}')
        a('  s_mov_b32 s73, 0')
        a('  s_cmp_eq_u32 s24, 1')
        a('  s_cselect_b32 s73, s66, s73')
        a('  s_cmp_eq_u32 s24, 2')
        a('  s_cselect_b32 s73, s70, s73')
        a('  s_cmp_eq_u32 s24, 3')
        a('  s_cselect_b32 s73, s71, s73')
        a('  v_sub_u32 v7, v7, v6')
        a('  v_add_u32 v7, s73, v7')
        for k in range(NK):
            a(f'  v_add_u32 v{t[k]}, v7, v{t[k]}')
            a(f'  ds_write_b32 v4, v{t[k]} offset:{k*1024}')
        a('  v_lshl_or_b32 v5, v7, 12, v5')
        a(f'  s_mul_i32 s40, s2, {S*4}')
        if h: a(f'  s_add_u32 s40, s40, {h*4}')
        a(f'  s_mov_b32 s41, {cfg.NTT*4}')
        a('  v_mul_lo_u32 v6, v0, s41')
        a('  buffer_store_dword v5, v6, s[20:23], s40 offen')
        a.label(f'p1_skip2{sfx}')
        a('  s_waitcnt lgkmcnt(0)')
        a('  s_barrier')
        st()
        a('  v_mov_b32 v2, 1')
        a(f'  v_mov_b32 v1, {HIST}')
        a('  s_mov_b64 exec, s[44:45]')
        r0 = h * cfg.RPS * 4
        nrec = cfg.RPS * 4
        batches = [(b, min(8, nrec - b)) for b in range(0, nrec, 8)]
        def rank_issue(bi):
            b, n = batches[bi]
            base = (bi & 1) * 8
            for x in range(n):
                rec = r0 + b + x
                j, hh = rec >> 1, rec & 1
                ad = 4 + (x & 3)
                a(f'  v_add_u32_sdwa v{ad}, v1, v{AUX+j} dst_sel:DWORD dst_unused:UNUSED_PAD src0_sel:DWORD src1_sel:WORD_{hh}')
                a(f'  ds_add_rtn_u32 v{t[base+x]}, v{ad}, v2')
        def rank_pack(bi):
            b, n = batches[bi]
            base = (bi & 1) * 8
            for x in range(0, n, 2):
                j = (r0 + b + x) >> 1
                a(f'  v_lshl_or_b32 v{AUX+j}, v{t[base+x+1]}, 16, v{t[base+x]}')
        rank_issue(0)
        for bi in range(len(batches)):
            if bi + 1 < len(batches):
                rank_issue(bi + 1)
                a(f'  s_waitcnt lgkmcnt({batches[bi+1][1]})')
            else:
                a('  s_waitcnt lgkmcnt(0)')
            rank_pack(bi)
        a('  s_mov_b32 s43, 0x20000')
        for s in range(cfg.NSL):
            a('  s_mov_b64 exec, s[44:45]')
            if s > 0:
                a(f'  s_mov_b32 s42, {s*131072}')
            for x in range(r0, r0 + nrec):
                j, hh = x >> 1, x & 1
                ad = 4 + (x & 3)
                a(f'  v_lshlrev_b32_sdwa v{ad}, 3, v{AUX+j} dst_sel:DWORD dst_unused:UNUSED_PAD src0_sel:DWORD src1_sel:WORD_{hh}')
                if s > 0:
                    a(f'  v_subrev_u32 v{ad}, s42, v{ad}')
                a(f'  v_cmpx_gt_u32 vcc, s43, v{ad}')
                a(f'  ds_write2_b32 v{ad}, v{W0+x}, v{W1+x} offset0:0 offset1:1')
                a('  s_mov_b64 exec, s[44:45]')
            a('  s_mov_b64 exec, -1')
            a(f'  s_add_u32 s16, s28, {h*cfg.TILE_BYTES + s*131072}')
            a('  s_addc_u32 s17, s29, 0')
            a('  s_and_b32 s17, s17, 0xffff')
            last = (s == cfg.NSL - 1)
            if not last:
                a('  s_mov_b32 s18, 131072')
            else:
                a(f'  s_sub_u32 s18, s72, {s*16384}')
                a('  s_lshl_b32 s18, s18, 3')
            a('  s_mov_b32 s19, 0x20000')
            a('  v_lshlrev_b32 v1, 4, v0')
            a('  v_add_u32 v3, 0x10000, v1')
            a('  s_waitcnt lgkmcnt(0)')
            a('  s_barrier')
            if s == 0 and h + 1 < S:
                a(f'  v_add_u32 v2, {HIST}, v1')
                for r in range(4, 8):
                    a(f'  v_mov_b32 v{r}, 0')
                a('  ds_write_b128 v2, v[4:7]')
                a('  ds_write_b128 v2, v[4:7] offset:16384')
            rounds = 8 if not last else cfg.LAST_ROUNDS
            rnd = 0
            while rnd < rounds:
                nr = min(4, rounds - rnd)
                for u in range(nr):
                    a(f'  ds_read_b128 {vr(t[4*u],4)}, v{1 if rnd < 4 else 3} offset:{u*16384}')
                for u in range(nr):
                    a(f'  s_waitcnt lgkmcnt({nr-1-u})')
                    so = '0' if rnd + u == 0 else f's{CO+rnd+u}'
                    a(f'  buffer_store_dwordx4 {vr(t[4*u],4)}, v1, s[16:19], {so} offen{STF}')
                    stores_done += 1
                a('  s_nop 1')
                rnd += nr
            if not (last and h == S - 1):
                a('  s_barrier')
        st()
    if st.on:
        a('  s_waitcnt vmcnt(0)')
        st()
    st.flush('s24')
    a.label('p1_done')
    a('  s_endpgm')

class RegAlloc:
    def __init__(self, start):
        self.n = start
    def get(self, k=1, align=1):
        self.n = (self.n + align - 1) // align * align
        r = self.n; self.n += k
        return r

def gen_p2(a, opt, cfg):
    st = Stamps(a, bool(opt.get('stamp')), 'p2', 1)
    b_lag = opt.get('lag', 1)
    R = b_lag + 1
    US = opt.get('ushort', 0)
    NG = 16 if US else 8
    RNT = {0: '', 1: ' nt', 2: ' sc1', 3: ' sc0 sc1', 4: ' sc0 sc1 nt', 5: ' sc1 nt'}[opt.get('nt_rec', 0)]
    se = opt.get('sync', 2)
    NSEG = 16 * cfg.S
    JPC = 32 // NSEG
    NCH = 8
    ra = RegAlloc(1)
    J4 = ra.get(); J8 = ra.get(); P = ra.get(); P7 = ra.get(); J8H = ra.get()
    VN = ra.get(); VL = ra.get(); VB = ra.get(); VOFF8 = ra.get()
    Eq = [ra.get() for _ in range(NCH)]
    SELA = ra.get(); SELB = ra.get(); VDUM = ra.get(); COL = ra.get()
    D = [ra.get(2, 2), ra.get(2, 2)]
    PT = [ra.get(), ra.get()]; LA = [ra.get(), ra.get()]; GAD = [ra.get(), ra.get()]
    YR = [ra.get(), ra.get()]; AB = [ra.get(), ra.get()]
    X = [ra.get() for _ in range(6)]
    VROW4 = ra.get(); VLANE = ra.get()
    WD = ra.get(4); WU = ra.get(4); WS = ra.get(2); WR = ra.get(2); CEN = ra.get(2)
    DI = ra.get(5); OFF = ra.get(5); MM = ra.get(10, 2)
    main0 = ra.n
    REC = [ra.get(2, 2) for _ in range(R)]
    VV = [ra.get() for _ in range(R)]
    CC = [ra.get() for _ in range(R)]
    ROW = [ra.get() for _ in range(R)]
    G = [ra.get(NG) for _ in range(R)]
    maxv = ra.n
    ra2 = RegAlloc(main0)
    Sg = ra2.get(8, 2); SF = ra2.get(4); RB = ra2.get(2)
    Y = ra2.get(4, 2); GG = ra2.get(4, 2); HH = ra2.get(4, 2); Z = ra2.get(4, 2)
    maxv = max(maxv, ra2.n)
    assert maxv <= 128, maxv
    a('.p2align 8')
    a('.type p2_kernel,@function')
    a.label('p2_kernel')
    a('  s_cmp_ge_u32 s2, 256')
    a('  s_cbranch_scc1 p2_done')
    a('  s_load_dwordx2 s[28:29], s[0:1], 104')
    a('  s_load_dwordx2 s[32:33], s[0:1], 0')
    a('  s_load_dwordx2 s[34:35], s[0:1], 24')
    a('  s_load_dwordx2 s[36:37], s[0:1], 40')
    a('  s_load_dwordx4 s[40:43], s[0:1], 56')
    a('  s_load_dwordx4 s[44:47], s[0:1], 72')
    a('  s_load_dwordx2 s[48:49], s[0:1], 88')
    a('  v_readfirstlane_b32 s24, v0')
    a(f'  v_and_b32 v{VLANE}, 63, v0')
    a(f'  v_and_b32 v{P}, 15, v0')
    a('  s_lshr_b32 s24, s24, 6')
    a(f'  v_lshrrev_b32 v{X[0]}, 1, v{VLANE}')
    a(f'  v_and_b32 v{X[1]}, {NSEG-1}, v{X[0]}')
    a(f'  s_mul_i32 s25, s2, {cfg.NTT}')
    a(f'  s_mul_i32 s26, s24, {NSEG}')
    a('  s_add_u32 s25, s25, s26')
    a('  s_lshl_b32 s25, s25, 2')
    a(f'  v_lshlrev_b32 v{X[2]}, 2, v{X[1]}')
    a(f'  v_lshrrev_b32 v{VROW4}, 4, v{VLANE}')
    a('  s_waitcnt lgkmcnt(0)')
    srd(a, 12, 28, cfg.TAB_BYTES)
    a(f'  buffer_load_dword v{VN}, v{X[2]}, s[12:15], s25 offen')
    st()
    srd(a, 4, 32, E * 32)
    srd(a, 20, 34, E * 2)
    a(f'  v_lshlrev_b32 v{X[3]}, 1, v{P}')
    a(f'  v_lshl_add_u32 v{X[4]}, v{VROW4}, 7, v{X[3]}')
    npf = 0
    for q in range(4):
        a(f'  global_load_ushort v{WD+q}, v{X[4]}, s[44:45] offset:{q*32}'); npf += 1
    for q in range(4):
        a(f'  global_load_ushort v{WU+q}, v{X[4]}, s[46:47] offset:{q*32}'); npf += 1
    a(f'  v_lshl_add_u32 v{X[4]}, v{VROW4}, 5, v{X[3]}')
    for q in range(2):
        a(f'  global_load_ushort v{WS+q}, v{X[4]}, s[42:43] offset:{q*128}'); npf += 1
    for q in range(2):
        a(f'  global_load_ushort v{WR+q}, v{X[4]}, s[40:41] offset:{q*128}'); npf += 1
    a(f'  v_lshlrev_b32 v{X[4]}, 1, v{VROW4}')
    for q in range(2):
        a(f'  global_load_ushort v{CEN+q}, v{X[4]}, s[36:37] offset:{q*8}'); npf += 1
    a(f'  s_lshl_b32 s27, s2, 4')
    for u in range(5):
        a(f'  s_add_u32 s26, s24, {16*u}')
        a('  s_lshl_b32 s26, s26, 12')
        a('  s_add_u32 s26, s26, s27')
        a(f'  s_mov_b32 s{70+u}, s26')
        a(f'  v_add_u32 v{X[3]}, s26, v{P}')
        a(f'  v_lshlrev_b32 v{X[4]}, 1, v{X[3]}')
        a(f'  buffer_load_ushort v{DI+u}, v{X[4]}, s[20:23], 0 offen'); npf += 1
        a(f'  v_lshlrev_b32 v{X[4]}, 5, v{X[3]}')
        a(f'  v_lshl_add_u32 v{OFF+u}, v{VROW4}, 3, v{X[4]}')
        a(f'  buffer_load_dwordx2 {vr(MM+2*u,2)}, v{OFF+u}, s[4:7], 0 offen'); npf += 1
    a(f'  s_add_u32 s8, s28, {cfg.REC_OFF}')
    a('  s_addc_u32 s9, s29, 0')
    a('  s_and_b32 s9, s9, 0xffff')
    a(f'  s_mov_b32 s10, {cfg.REC_BYTES}')
    a('  s_mov_b32 s11, 0x20000')
    srd(a, 16, 48, E * 32)
    a(f'  v_lshlrev_b32 v{X[3]}, 4, v0')
    for r in (D[0], D[0]+1, D[1], D[1]+1):
        a(f'  v_mov_b32 v{r}, 0')
    assert D[1] == D[0] + 2
    a(f'  v_add_u32 v{X[4]}, 0x10000, v{X[3]}')
    a(f'  v_add_u32 v{X[5]}, 0x20000, v{X[3]}')
    for i in range(4):
        a(f'  ds_write_b128 v{X[3]}, {vr(D[0],4)} offset:{i*16384}')
    for i in range(4):
        a(f'  ds_write_b128 v{X[4]}, {vr(D[0],4)} offset:{i*16384}')
    for i in range(2):
        a(f'  ds_write_b128 v{X[5]}, {vr(D[0],4)} offset:{i*16384}')
    a(f'  v_and_b32 v{P7}, 7, v0')
    if US:
        a(f'  v_lshlrev_b32 v{J4}, 1, v{P}')
        for r in range(G[0], G[0] + NG*R):
            a(f'  v_mov_b32 v{r}, 0')
    else:
        a(f'  v_lshlrev_b32 v{J4}, 2, v{P7}')
    a(f'  v_lshlrev_b32 v{J8}, 3, v{P}')
    a(f'  v_lshlrev_b32 v{J8H}, 3, v{P7}')
    a(f'  v_mov_b32 v{VDUM}, {DUMMY_ROW*128}')
    a(f'  v_cmp_gt_u32 vcc, 8, v{P}')
    a(f'  v_mov_b32 v{X[3]}, 0x03020c0c')
    a(f'  v_mov_b32 v{X[4]}, 0x05040c0c')
    a(f'  v_cndmask_b32 v{SELA}, v{X[3]}, v{X[4]}, vcc')
    a(f'  v_mov_b32 v{X[3]}, 0x07060c0c')
    a(f'  v_mov_b32 v{X[4]}, 0x01000c0c')
    a(f'  v_cndmask_b32 v{SELB}, v{X[3]}, v{X[4]}, vcc')
    a(f'  v_and_b32 v{VOFF8}, 1, v{VLANE}')
    a(f'  v_lshlrev_b32 v{VOFF8}, 3, v{VOFF8}')
    if JPC > 1:
        a(f'  v_lshrrev_b32 v{X[3]}, {1 + int(math.log2(NSEG))}, v{VLANE}')
        a(f'  v_lshl_add_u32 v{VOFF8}, v{X[3]}, 4, v{VOFF8}')
    a(f'  s_mul_i32 s26, s24, {NSEG}')
    a(f'  v_add_u32 v{X[0]}, s26, v{X[1]}')
    a(f'  s_mov_b32 s27, {cfg.TILE_LINES}')
    a(f'  v_mul_lo_u32 v{X[0]}, v{X[0]}, s27')
    a(f'  s_waitcnt vmcnt({npf})')
    a(f'  v_lshrrev_b32 v{VB}, 16, v{VN}')
    a(f'  v_and_b32 v{VN}, 0xffff, v{VN}')
    a(f'  v_add_u32 v{VB}, v{VB}, v{X[0]}')
    a(f'  v_lshlrev_b32 v{VB}, 7, v{VB}')
    a(f'  v_mov_b32 v{X[0]}, v{VN}')
    for sh in (1, 2, 4, 8):
        a('  s_nop 1')
        a(f'  v_max_u32_dpp v{X[0]}, v{X[0]}, v{X[0]} row_ror:{sh} row_mask:0xf bank_mask:0xf')
    a('  s_nop 1')
    for i, ln in enumerate((0, 16, 32, 48)):
        a(f'  v_readlane_b32 s{56+i}, v{X[0]}, {ln}')
    a('  s_nop 3')
    a('  s_max_u32 s56, s56, s57')
    a('  s_max_u32 s58, s58, s59')
    a('  s_max_u32 s50, s56, s58')
    a('  s_mov_b32 s51, 0')
    a('  s_mov_b32 s52, 0xffffffc0')
    a('  s_mov_b32 s53, 0xffff0000')
    a('  s_mov_b32 s54, 0x3ff80')
    a('  s_mov_b32 s55, 1')
    if se:
        a(f'  s_mov_b32 s69, {opt.get("nsync", 38 // se)}')
    a.label('p2_outer')
    a('  s_cmp_ge_u32 s51, s50')
    a('  s_cbranch_scc1 p2_main_done')
    for k in range(NCH):
        a(f'  s_add_u32 s66, s51, {16*JPC*k}')
        a(f'  v_add_u32 v{X[0]}, s66, v{VOFF8}')
        a(f'  v_cmp_gt_u32 vcc, v{VN}, v{X[0]}')
        a(f'  v_sub_u32 v{X[1]}, v{VN}, v{X[0]}')
        a(f'  v_min_u32 v{X[1]}, 8, v{X[1]}')
        a(f'  v_lshl_add_u32 v{X[2]}, v{X[0]}, 3, v{VB}')
        a(f'  v_or_b32 v{X[2]}, v{X[2]}, v{X[1]}')
        a(f'  s_bcnt1_i32_b64 s67, vcc')
        a(f'  v_mbcnt_lo_u32_b32 v{X[3]}, vcc_lo, 0')
        a(f'  v_mbcnt_hi_u32_b32 v{X[3]}, vcc_hi, v{X[3]}')
        a(f'  v_sub_u32 v{X[4]}, v{VLANE}, v{X[3]}')
        a(f'  v_add_u32 v{X[4]}, s67, v{X[4]}')
        a(f'  v_cndmask_b32 v{X[4]}, v{X[4]}, v{X[3]}, vcc')
        a(f'  v_cndmask_b32 v{X[2]}, 0, v{X[2]}, vcc')
        a(f'  v_and_b32 v{X[5]}, 6, v{X[4]}')
        a(f'  v_lshlrev_b32 v{X[5]}, 5, v{X[5]}')
        a(f'  v_and_or_b32 v{X[5]}, v{X[4]}, -8, v{X[5]}')
        a(f'  v_and_b32 v{X[4]}, 1, v{X[4]}')
        a(f'  v_lshl_or_b32 v{X[5]}, v{X[4]}, 2, v{X[5]}')
        a(f'  ds_permute_b32 v{Eq[k]}, v{X[5]}, v{X[2]}')
        a(f'  s_add_u32 s{56+k}, s67, 7')
        a(f'  s_lshr_b32 s{56+k}, s{56+k}, 3')
    a('  s_add_u32 s64, s56, s57')
    for k in range(2, NCH):
        a(f'  s_add_u32 s64, s64, s{56+k}')
    a(f'  s_mov_b32 s65, {NCH-1}')
    a('  s_waitcnt lgkmcnt(0)')
    uid = [0]
    def stageA(b):
        u = uid[0]; uid[0] += 1
        a.label(f'p2_chk{u}')
        a('  s_cmp_lg_u32 s56, 0')
        a(f'  s_cbranch_scc1 p2_go{u}')
        a('  s_cmp_eq_u32 s65, 0')
        a(f'  s_cbranch_scc1 p2_exh{u}')
        for k in range(NCH - 1):
            a(f'  v_mov_b32 v{Eq[k]}, v{Eq[k+1]}')
            a(f'  s_mov_b32 s{56+k}, s{57+k}')
        a('  s_sub_u32 s65, s65, 1')
        a(f'  s_branch p2_chk{u}')
        a.label(f'p2_exh{u}')
        a(f'  v_mov_b32 v{Eq[0]}, 0')
        a('  s_mov_b32 s56, 1')
        a('  s_nop 0')
        a.label(f'p2_go{u}')
        a('  s_sub_u32 s56, s56, 1')
        a(f'  v_mov_b32_dpp v{X[0]}, v{Eq[0]} row_newbcast:0 row_mask:0xf bank_mask:0x3')
        a(f'  v_mov_b32_dpp v{X[0]}, v{Eq[0]} row_newbcast:1 row_mask:0xf bank_mask:0xc')
        a(f'  v_mov_b32_dpp v{Eq[0]}, v{Eq[0]} row_shl:2 row_mask:0xf bank_mask:0xf bound_ctrl:0')
        a(f'  v_and_or_b32 v{X[1]}, v{X[0]}, s52, v{J8H}')
        a(f'  v_and_b32 v{VV[b]}, 15, v{X[0]}')
        a(f'  buffer_load_dwordx2 {vr(REC[b],2)}, v{X[1]}, s[8:11], 0 offen{RNT}')
    def decode(b):
        a(f'  v_cmp_gt_u32 vcc, v{VV[b]}, v{P7}')
        a(f'  v_lshlrev_b32 v{X[2]}, 7, v{REC[b]+1}')
        a(f'  v_and_b32 v{CC[b]}, s53, v{REC[b]+1}')
        a(f'  v_and_b32 v{X[2]}, s54, v{X[2]}')
        a(f'  v_cndmask_b32 v{COL}, 0, v{REC[b]}, vcc')
        if opt.get('colmask'):
            a(f'  v_and_b32 v{COL}, {opt["colmask"]}, v{COL}')
        a(f'  v_cndmask_b32 v{ROW[b]}, v{VDUM}, v{X[2]}, vcc')
        a('  s_nop 0')
    def gather(b, g):
        ad = GAD[g & 1]
        if US:
            a(f'  v_add_u32_dpp v{ad}, v{COL}, v{J4} row_newbcast:{g} row_mask:0xf bank_mask:0xf')
            a(f'  buffer_load_short_d16_hi v{G[b]+g}, v{ad}, s[4:7], 0 offen')
            return
        a(f'  v_add_u32_dpp v{ad}, v{COL}, v{J4} row_newbcast:{2*g} row_mask:0xf bank_mask:0x3')
        a(f'  v_add_u32_dpp v{ad}, v{COL}, v{J4} row_newbcast:{2*g+1} row_mask:0xf bank_mask:0xc')
        a(f'  buffer_load_dword v{G[b]+g}, v{ad}, s[4:7], 0 offen')
    def consume(b, g):
        x = G[b] + g; y = YR[g & 1]
        if US:
            p, la, d = PT[g & 1], LA[g & 1], D[g & 1]
            a(f'  v_mul_f32_dpp v{p}, v{CC[b]}, v{x} row_newbcast:{g} row_mask:0xf bank_mask:0xf')
            a(f'  v_add_u32_dpp v{la}, v{ROW[b]}, v{J8} row_newbcast:{g} row_mask:0xf bank_mask:0xf')
            a(f'  v_cvt_f64_f32 {vr(d,2)}, v{p}')
            a(f'  ds_add_f64 v{la}, {vr(d,2)}')
            return
        a(f'  v_mov_b32_dpp v{y}, v{x} row_ror:8 row_mask:0xf bank_mask:0xf')
        a(f'  v_add_u32_dpp v{LA[0]}, v{ROW[b]}, v{J8} row_newbcast:{2*g} row_mask:0xf bank_mask:0xf')
        a(f'  v_add_u32_dpp v{LA[1]}, v{ROW[b]}, v{J8} row_newbcast:{2*g+1} row_mask:0xf bank_mask:0xf')
        a(f'  v_perm_b32 v{AB[0]}, v{x}, v{y}, v{SELA}')
        a(f'  v_perm_b32 v{AB[1]}, v{x}, v{y}, v{SELB}')
        a(f'  v_mul_f32_dpp v{PT[0]}, v{CC[b]}, v{AB[0]} row_newbcast:{2*g} row_mask:0xf bank_mask:0xf')
        a(f'  v_mul_f32_dpp v{PT[1]}, v{CC[b]}, v{AB[1]} row_newbcast:{2*g+1} row_mask:0xf bank_mask:0xf')
        a(f'  v_cvt_f64_f32 {vr(D[0],2)}, v{PT[0]}')
        a(f'  v_cvt_f64_f32 {vr(D[1],2)}, v{PT[1]}')
        if not opt.get('no_ds'):
            a(f'  ds_add_f64 v{LA[0]}, {vr(D[0],2)}')
            a(f'  ds_add_f64 v{LA[1]}, {vr(D[1],2)}')
    for t in range(-2*b_lag, -b_lag):
        stageA((t + 2*b_lag) % R)
    for t in range(-b_lag, 0):
        stageA((t + 2*b_lag) % R)
        a(f'  s_waitcnt vmcnt({b_lag + NG*(t + b_lag)})')
        decode((t + b_lag) % R)
        for g in range(NG):
            gather((t + b_lag) % R, g)
    a('  s_cmp_eq_u32 s55, 0')
    a('  s_cbranch_scc1 p2_loop')
    a('  s_mov_b32 s55, 0')
    a('  s_barrier')
    st()
    a.label('p2_loop')
    U = R
    if se and se > R and se % R == 0:
        U = se
    for t in range(U):
        tb = t % R
        stageA((tb + 2*b_lag) % R)
        a(f'  s_waitcnt vmcnt({(NG+1)*b_lag})')
        decode((tb + b_lag) % R)
        for g in range(NG):
            gather((tb + b_lag) % R, g)
            a(f'  s_waitcnt vmcnt({(NG+1)*b_lag})')
            consume(tb, g)
        if se and (t % se) == se - 1:
            a('  s_cmp_eq_u32 s69, 0')
            a(f'  s_cbranch_scc1 p2_nosync{t}')
            a('  s_barrier')
            a('  s_sub_u32 s69, s69, 1')
            a.label(f'p2_nosync{t}')
        a('  s_sub_u32 s64, s64, 1')
        a('  s_cmp_eq_u32 s64, 0')
        if t < U - 1:
            a('  s_cbranch_scc1 p2_loop_exit')
        else:
            a('  s_cbranch_scc0 p2_loop')
    a.label('p2_loop_exit')
    a('  s_waitcnt vmcnt(0)')
    a(f'  s_add_u32 s51, s51, {16*JPC*NCH}')
    a('  s_branch p2_outer')
    a.label('p2_main_done')
    a('  s_cmp_eq_u32 s55, 0')
    a('  s_cbranch_scc1 p2_epi')
    a('  s_waitcnt lgkmcnt(0)')
    a('  s_barrier')
    a.label('p2_epi')
    if se:
        a.label('p2_owed')
        a('  s_cmp_eq_u32 s69, 0')
        a('  s_cbranch_scc1 p2_owed_done')
        a('  s_barrier')
        a('  s_sub_u32 s69, s69, 1')
        a('  s_branch p2_owed')
        a.label('p2_owed_done')
    st()
    a('  s_waitcnt vmcnt(0)')
    for r in range(WD, CEN + 2):
        a(f'  v_lshlrev_b32 v{r}, 16, v{r}')
    a('  s_mov_b32 s76, 0xc1200000')
    a('  s_mov_b32 s77, 0x3fb8aa3b')
    a('  s_waitcnt lgkmcnt(0)')
    a('  s_barrier')
    st()
    for u in range(5):
        a(f'  s_cmp_ge_u32 s{70+u}, {E}')
        a(f'  s_cbranch_scc1 p2_epi_skip{u}')
        a(f'  s_add_u32 s26, s24, {16*u}')
        a('  s_lshl_b32 s26, s26, 11')
        a(f'  v_lshlrev_b32 v{X[0]}, 7, v{P}')
        a(f'  v_lshl_add_u32 v{X[0]}, v{VROW4}, {5 if US else 4}, v{X[0]}')
        a(f'  v_add_u32 v{X[0]}, s26, v{X[0]}')
        a(f'  ds_read_b128 {vr(Sg,4)}, v{X[0]}')
        a(f'  ds_read_b128 {vr(Sg+4,4)}, v{X[0]} offset:{16 if US else 64}')
        a(f'  v_lshlrev_b32 v{X[1]}, 16, v{DI+u}')
        a(f'  v_sub_f32 v{X[2]}, v{X[1]}, v{CEN}')
        a(f'  v_sub_f32 v{X[3]}, v{X[1]}, v{CEN+1}')
        def rnd2():
            a(f'  v_cvt_pk_bf16_f32 v{X[4]}, v{X[2]}, v{X[3]}')
            a(f'  v_lshlrev_b32 v{X[2]}, 16, v{X[4]}')
            a(f'  v_and_b32 v{X[3]}, s53, v{X[4]}')
        rnd2()
        a(f'  v_mul_f32 v{X[2]}, v{X[2]}, v{X[2]}')
        a(f'  v_mul_f32 v{X[3]}, v{X[3]}, v{X[3]}')
        rnd2()
        a(f'  v_mul_f32 v{X[2]}, s76, v{X[2]}')
        a(f'  v_mul_f32 v{X[3]}, s76, v{X[3]}')
        rnd2()
        a(f'  v_mul_f32 v{X[2]}, s77, v{X[2]}')
        a(f'  v_mul_f32 v{X[3]}, s77, v{X[3]}')
        a(f'  v_exp_f32 v{X[2]}, v{X[2]}')
        a(f'  v_exp_f32 v{X[3]}, v{X[3]}')
        a('  s_nop 0')
        a(f'  v_cvt_pk_bf16_f32 v{X[4]}, v{X[2]}, v{X[3]}')
        a(f'  v_lshlrev_b32 v{RB}, 16, v{X[4]}')
        a(f'  v_and_b32 v{RB+1}, s53, v{X[4]}')
        a('  s_waitcnt lgkmcnt(0)')
        order = [0, 1, 2, 3] if US else [0, 2, 1, 3]
        for i in range(4):
            a(f'  v_cvt_f32_f64 v{SF+order[i]}, {vr(Sg+2*i,2)}')
        a('  s_nop 1')
        a(f'  v_mfma_f32_16x16x4_f32 {vr(GG,4)}, v{WS}, v{RB}, 0')
        a(f'  v_mfma_f32_16x16x4_f32 {vr(HH,4)}, v{WR}, v{RB}, 0')
        a(f'  v_mfma_f32_16x16x4_f32 {vr(Y,4)}, v{WD}, v{SF}, 0')
        a(f'  v_mfma_f32_16x16x4_f32 {vr(GG,4)}, v{WS+1}, v{RB+1}, {vr(GG,4)}')
        a(f'  v_mfma_f32_16x16x4_f32 {vr(HH,4)}, v{WR+1}, v{RB+1}, {vr(HH,4)}')
        for q in range(1, 4):
            a(f'  v_mfma_f32_16x16x4_f32 {vr(Y,4)}, v{WD+q}, v{SF+q}, {vr(Y,4)}')
        a('  s_nop 15')
        for q in range(4):
            a(f'  v_mul_f32 v{Y+q}, v{Y+q}, v{GG+q}')
        a('  s_nop 1')
        a(f'  v_mfma_f32_16x16x4_f32 {vr(Z,4)}, v{WU}, v{Y}, 0')
        for q in range(1, 4):
            a(f'  v_mfma_f32_16x16x4_f32 {vr(Z,4)}, v{WU+q}, v{Y+q}, {vr(Z,4)}')
        a(f'  v_cvt_pk_bf16_f32 v{X[0]}, v{HH}, v{HH+1}')
        a(f'  v_cvt_pk_bf16_f32 v{X[1]}, v{HH+2}, v{HH+3}')
        a(f'  v_lshlrev_b32 v{HH}, 16, v{X[0]}')
        a(f'  v_and_b32 v{HH+1}, s53, v{X[0]}')
        a(f'  v_lshlrev_b32 v{HH+2}, 16, v{X[1]}')
        a(f'  v_and_b32 v{HH+3}, s53, v{X[1]}')
        a('  s_nop 15')
        a(f'  v_cvt_pk_bf16_f32 v{X[0]}, v{Z}, v{Z+1}')
        a(f'  v_cvt_pk_bf16_f32 v{X[1]}, v{Z+2}, v{Z+3}')
        a(f'  v_lshlrev_b32 v{Z}, 16, v{X[0]}')
        a(f'  v_and_b32 v{Z+1}, s53, v{X[0]}')
        a(f'  v_lshlrev_b32 v{Z+2}, 16, v{X[1]}')
        a(f'  v_and_b32 v{Z+3}, s53, v{X[1]}')
        for q in range(4):
            a(f'  v_mul_f32 v{Z+q}, v{Z+q}, v{HH+q}')
        a(f'  v_cvt_pk_bf16_f32 v{X[0]}, v{Z}, v{Z+1}')
        a(f'  v_cvt_pk_bf16_f32 v{X[1]}, v{Z+2}, v{Z+3}')
        a(f'  v_lshlrev_b32 v{Z}, 16, v{X[0]}')
        a(f'  v_and_b32 v{Z+1}, s53, v{X[0]}')
        a(f'  v_lshlrev_b32 v{Z+2}, 16, v{X[1]}')
        a(f'  v_and_b32 v{Z+3}, s53, v{X[1]}')
        a(f'  v_lshlrev_b32 v{X[2]}, 16, v{MM+2*u}')
        a(f'  v_and_b32 v{X[3]}, s53, v{MM+2*u}')
        a(f'  v_lshlrev_b32 v{X[4]}, 16, v{MM+2*u+1}')
        a(f'  v_and_b32 v{X[5]}, s53, v{MM+2*u+1}')
        for q in range(4):
            a(f'  v_add_f32 v{Z+q}, v{Z+q}, v{X[2+q]}')
        a(f'  v_cvt_pk_bf16_f32 v{Z}, v{Z}, v{Z+1}')
        a(f'  v_cvt_pk_bf16_f32 v{Z+1}, v{Z+2}, v{Z+3}')
        OTF = {0: '', 1: ' nt', 2: ' sc1', 3: ' sc0 sc1', 4: ' sc0'}[opt.get('out_st', 0)]
        a(f'  buffer_store_dwordx2 {vr(Z,2)}, v{OFF+u}, s[16:19], 0 offen{OTF}')
        a.label(f'p2_epi_skip{u}')
    if st.on:
        a('  s_waitcnt vmcnt(0)')
        st()
    st.flush('s24')
    a.label('p2_done')
    a('  s_endpgm')
    return maxv

def descriptor(a, name, vgpr, sgpr):
    a(f'.amdhsa_kernel {name}')
    a(f'  .amdhsa_next_free_vgpr {vgpr}')
    a(f'  .amdhsa_next_free_sgpr {sgpr}')
    a(f'  .amdhsa_accum_offset {(vgpr + 3) // 4 * 4}')
    a('  .amdhsa_group_segment_fixed_size 0')
    a('  .amdhsa_kernarg_size 112')
    a('  .amdhsa_user_sgpr_count 2')
    a('  .amdhsa_user_sgpr_kernarg_segment_ptr 1')
    a('  .amdhsa_system_sgpr_workgroup_id_x 1')
    a('  .amdhsa_float_denorm_mode_32 3')
    a('.end_amdhsa_kernel')

HEADER = '''; Kernarg layout (112 bytes, ptrs only, base s[0:1]):
; @launch kernel=p1_kernel grid=(256,1,1) block=(1024,1,1) lds=163840
; @launch kernel=p2_kernel grid=(256,1,1) block=(1024,1,1) lds=163840
.amdgcn_target "amdgcn-amd-amdhsa--gfx950"
.text
.globl p1_kernel
.globl p2_kernel
'''

def build(opt):
    cfg = Cfg(opt)
    a = Asm()
    a(HEADER.rstrip('\n'))
    gen_p1(a, opt, cfg)
    v2 = gen_p2(a, opt, cfg)
    a('.section .rodata,"a"')
    a('.p2align 6')
    ns = 102 if opt.get('stamp') else 80
    descriptor(a, 'p1_kernel', 128, ns)
    a('.p2align 6')
    descriptor(a, 'p2_kernel', v2, ns)
    return a.text()

if __name__ == '__main__':
    out = sys.argv[1] if len(sys.argv) > 1 else 'standalone__molecular_angular_gemnet__graph.s'
    opt = {}
    for kv in sys.argv[2:]:
        k, v = kv.split('=')
        opt[k] = int(v) if v.lstrip('-').isdigit() else v
    open(out, 'w').write(build(opt))
    print('wrote', out)
```

```python
import struct, sys, math

def f32bits(x):
    return struct.unpack('<I', struct.pack('<f', x))[0]
def bits2f(b):
    return struct.unpack('<f', struct.pack('<I', b))[0]

E = 320000
T = 10240000
NWG = 256
KSH = 14
NK = (E + (1 << KSH) - 1) >> KSH
HIST = 131072
TMP = HIST + NK * 1024
DUMMY_ROW = 1264

class Cfg:
    def __init__(self, opt):
        self.S = opt.get('S', 1)
        self.NTT = NWG * self.S
        self.SUB = 40000 // self.S
        self.RPS = 10 // self.S
        maxpad = self.SUB + 256 * 15
        self.TILE_LINES = ((maxpad + 15) // 16 + 15) // 16 * 16
        self.TILE_BYTES = self.TILE_LINES * 128
        self.TAB_BYTES = 256 * self.NTT * 4
        self.REC_OFF = self.TAB_BYTES
        self.REC_BYTES = self.NTT * self.TILE_BYTES
        self.NSL = (maxpad + 16383) // 16384
        self.LAST_ROUNDS = ((maxpad - (self.NSL - 1) * 16384) * 8 + 16383) // 16384
        assert self.SUB > (self.NSL - 1) * 16384

class Asm:
    def __init__(self):
        self.lines = []
    def __call__(self, s=''):
        for l in s.split('\n'):
            self.lines.append(l)
    def label(self, s):
        self.lines.append(s + ':')
    def text(self):
        return '\n'.join(self.lines) + '\n'

def vr(a, n=1):
    return f'v{a}' if n == 1 else f'v[{a}:{a+n-1}]'

def srd(a, d, ptr, size):
    a(f'  s_mov_b32 s{d}, s{ptr}')
    a(f'  s_and_b32 s{d+1}, s{ptr+1}, 0xffff')
    a(f'  s_mov_b32 s{d+2}, {size}')
    a(f'  s_mov_b32 s{d+3}, 0x20000')

class Stamps:
    def __init__(self, a, on, name, slot):
        self.a = a; self.on = on; self.n = 0; self.name = name; self.slot = slot; self.wave = 0
    def __call__(self):
        if not self.on: return
        a = self.a
        a('  s_memtime s[80:81]')
        a('  s_memrealtime s[82:83]')
        a('  s_waitcnt lgkmcnt(0)')
        a(f'  s_mov_b32 s{84+2*self.n}, s80')
        a(f'  s_mov_b32 s{85+2*self.n}, s82')
        self.n += 1
        assert self.n <= 9
    def flush(self, wavereg):
        if not self.on: return
        a = self.a
        a(f'  s_cmp_lg_u32 {wavereg}, {self.wave}')
        a(f'  s_cbranch_scc1 {self.name}_nostamp')
        a('  s_load_dwordx2 s[80:81], s[0:1], 104')
        a('  s_waitcnt lgkmcnt(0)')
        a(f'  s_add_u32 s80, s80, {200*1048576 + self.slot*65536}')
        a('  s_addc_u32 s81, s81, 0')
        a('  s_lshl_b32 s82, s2, 7')
        a('  v_mov_b32 v1, s82')
        for i in range(2*self.n):
            a(f'  v_mov_b32 v2, s{84+i}')
            a(f'  global_store_dword v1, v2, s[80:81] offset:{4*i}')
        a.label(f'{self.name}_nostamp')

def gen_p1(a, opt, cfg):
    st = Stamps(a, bool(opt.get('stamp')), 'p1', 0)
    NTF = ' nt' if opt.get('nt_in', 1) else ''
    STF = {0: '', 1: ' nt', 2: ' sc1', 3: ' sc0 sc1', 4: ' sc0'}[opt.get('nt_st', 2)]
    S = cfg.S
    W0, W1, AUX = 8, 48, 88
    CO = 32
    t = [108 + i for i in range(20)]
    inv2pi = 1.0 / (2.0 * math.pi)
    chi_bits = f32bits(inv2pi) & 0xffffff00
    clo_bits = f32bits(inv2pi - bits2f(chi_bits))
    a('.p2align 8')
    a('.type p1_kernel,@function')
    a.label('p1_kernel')
    a('  s_cmp_ge_u32 s2, 256')
    a('  s_cbranch_scc1 p1_done')
    a('  s_load_dwordx4 s[32:35], s[0:1], 8')
    a('  s_load_dwordx2 s[36:37], s[0:1], 32')
    a('  s_load_dwordx2 s[38:39], s[0:1], 48')
    a('  s_load_dwordx2 s[28:29], s[0:1], 104')
    a('  s_load_dwordx2 s[74:75], s[0:1], 0')
    a('  v_lshlrev_b32 v1, 4, v0')
    a(f'  v_add_u32 v2, {HIST}, v1')
    for r in range(4, 8):
        a(f'  v_mov_b32 v{r}, 0')
    a('  ds_write_b128 v2, v[4:7]')
    a('  ds_write_b128 v2, v[4:7] offset:16384')
    a('  s_mul_i32 s40, s2, 160000')
    a('  s_mul_i32 s41, s2, 80000')
    a('  v_add_u32 v1, s40, v1')
    a('  v_lshlrev_b32 v3, 3, v0')
    a('  v_add_u32 v3, s41, v3')
    a('  v_readfirstlane_b32 s24, v0')
    a('  v_cmp_gt_u32 vcc, 1000, v0')
    a('  s_lshr_b32 s24, s24, 6')
    a('  s_mov_b64 s[44:45], vcc')
    for i in range(1, 10):
        a(f'  s_mov_b32 s{45+i}, {i*16000}')
        a(f'  s_mov_b32 s{55+i}, {i*8000}')
    a('  s_waitcnt lgkmcnt(0)')
    a('  s_load_dword s26, s[38:39], 0')
    srd(a, 4, 32, T * 4)
    srd(a, 8, 34, T * 4)
    srd(a, 12, 36, T * 2)
    st()
    a('  s_mov_b64 exec, s[44:45]')
    def issue_round(i):
        so = '0' if i == 0 else f's{45+i}'
        sa = '0' if i == 0 else f's{55+i}'
        a(f'  buffer_load_dwordx4 {vr(W0+4*i,4)}, v1, s[4:7], {so} offen{NTF}')
        a(f'  buffer_load_dwordx4 {vr(W1+4*i,4)}, v1, s[8:11], {so} offen{NTF}')
        a(f'  buffer_load_dwordx2 {vr(AUX+2*i,2)}, v3, s[12:15], {sa} offen{NTF}')
    AHEAD = opt.get('ahead', 2)
    for i in range(AHEAD):
        issue_round(i)
    issued = AHEAD
    a('  s_mov_b32 s27, 0xffff0000')
    a(f'  s_mov_b32 s30, {chi_bits:#x}')
    a(f'  s_mov_b32 s31, {clo_bits:#x}')
    a(f'  s_mov_b32 s42, {HIST}')
    a('  s_mov_b32 s43, 0x3fc')
    a('  v_mov_b32 v2, 1')
    srd(a, 20, 28, cfg.TAB_BYTES)
    srd(a, 76, 74, E * 32)
    a(f'  s_mul_i32 s40, s2, {S * cfg.TILE_BYTES}')
    a('  s_add_u32 s28, s28, s40')
    a('  s_addc_u32 s29, s29, 0')
    a(f'  s_add_u32 s28, s28, {cfg.REC_OFF}')
    a('  s_addc_u32 s29, s29, 0')
    a('  s_waitcnt lgkmcnt(0)')
    a('  s_and_b32 s26, s26, 0xffff')
    a('  s_lshl_b32 s26, s26, 16')
    a('  s_barrier')
    for i in range(1, 8):
        a(f'  s_mov_b32 s{CO+i}, {i*16384}')
    stores_done = 0
    for h in range(S):
        sfx = f'_{h}'
        if h > 0:
            a('  v_mov_b32 v2, 1')
            a(f'  s_mov_b32 s42, {HIST}')
            a('  s_mov_b32 s43, 0x3fc')
            a('  s_mov_b64 exec, s[44:45]')
        for i in range(h * cfg.RPS, (h + 1) * cfg.RPS):
            A = [W0 + 4*i + e for e in range(4)]
            O = [W1 + 4*i + e for e in range(4)]
            G = [AUX + 2*i, AUX + 2*i + 1]
            a(f'  s_waitcnt vmcnt({3*(issued - 1 - i) + stores_done})')
            if issued < 10:
                issue_round(issued); issued += 1
            a(f'  v_lshlrev_b32 v{t[0]}, 16, v{G[0]}')
            a(f'  v_and_b32 v{t[1]}, s27, v{G[0]}')
            a(f'  v_lshlrev_b32 v{t[2]}, 16, v{G[1]}')
            a(f'  v_and_b32 v{t[3]}, s27, v{G[1]}')
            for e in range(4):
                a(f'  v_mul_f32 v{t[e]}, s26, v{t[e]}')
            a(f'  v_cvt_pk_bf16_f32 v{t[4]}, v{t[0]}, v{t[1]}')
            a(f'  v_cvt_pk_bf16_f32 v{t[5]}, v{t[2]}, v{t[3]}')
            for e in range(4):
                a(f'  v_lshrrev_b32 v{t[8+e]}, 8, v{O[e]}')
            a(f'  v_lshlrev_b32 v{t[0]}, 16, v{t[4]}')
            a(f'  v_and_b32 v{t[1]}, s27, v{t[4]}')
            a(f'  v_lshlrev_b32 v{t[2]}, 16, v{t[5]}')
            a(f'  v_and_b32 v{t[3]}, s27, v{t[5]}')
            for e in range(4):
                a(f'  v_bfi_b32 v{t[8+e]}, 15, v{O[e]}, v{t[8+e]}')
            for e in range(4):
                a(f'  v_mul_f32 v{t[4+e]}, s30, v{t[e]}')
            for e in range(4):
                a(f'  v_fract_f32 v{t[4+e]}, v{t[4+e]}')
            for e in range(4):
                a(f'  v_fma_f32 v{t[4+e]}, v{t[e]}, s31, v{t[4+e]}')
            for e in range(4):
                a(f'  v_cos_f32 v{t[4+e]}, v{t[4+e]}')
            for e in range(4):
                a(f'  v_lshrrev_b32 v{t[12+e]}, 2, v{O[e]}')
            for e in range(4):
                a(f'  v_lshrrev_b32 v{t[e]}, {KSH}, v{A[e]}')
            for e in range(4):
                a(f'  v_and_b32 v{t[12+e]}, s43, v{t[12+e]}')
            for e in range(4):
                a(f'  v_lshl_or_b32 v{t[12+e]}, v{t[e]}, 10, v{t[12+e]}')
            a(f'  v_cvt_pk_bf16_f32 v{t[16]}, v{t[4]}, v{t[5]}')
            a(f'  v_cvt_pk_bf16_f32 v{t[17]}, v{t[6]}, v{t[7]}')
            for e in range(4):
                a(f'  v_add_u32 v{t[e]}, s42, v{t[12+e]}')
            for e in range(4):
                a(f'  ds_add_u32 v{t[e]}, v2')
            for e in range(4):
                a(f'  v_lshlrev_b32 v{A[e]}, 5, v{A[e]}')
            a(f'  v_lshl_or_b32 v{O[0]}, v{t[16]}, 16, v{t[8]}')
            a(f'  v_and_or_b32 v{O[1]}, v{t[16]}, s27, v{t[9]}')
            a(f'  v_lshl_or_b32 v{O[2]}, v{t[17]}, 16, v{t[10]}')
            a(f'  v_and_or_b32 v{O[3]}, v{t[17]}, s27, v{t[11]}')
            a(f'  v_lshl_or_b32 v{G[0]}, v{t[13]}, 16, v{t[12]}')
            a(f'  v_lshl_or_b32 v{G[1]}, v{t[15]}, 16, v{t[14]}')
        a('  s_mov_b64 exec, -1')
        a('  s_waitcnt lgkmcnt(0)')
        a('  s_barrier')
        st()
        if h == S - 1 and opt.get('mpf1', 1):
            a('  s_sub_u32 s40, s24, 4')
            a('  s_cmp_ge_u32 s40, 5')
            a('  s_cbranch_scc1 p1_nopf')
            a('  s_mul_i32 s41, s2, 40000')
            a('  s_and_b32 s41, s41, 0xffffff80')
            a('  v_subrev_u32 v5, 256, v0')
            a('  v_lshlrev_b32 v5, 7, v5')
            a(f'  buffer_load_dword v{t[18]}, v5, s[76:79], s41 offen')
            a.label('p1_nopf')
        a('  v_lshlrev_b32 v4, 2, v0')
        a(f'  v_add_u32 v4, {HIST}, v4')
        a('  s_cmp_ge_u32 s24, 4')
        a(f'  s_cbranch_scc1 p1_skip1{sfx}')
        for k in range(NK):
            a(f'  ds_read_b32 v{t[k]}, v4 offset:{k*1024}')
        a('  v_mov_b32 v5, 0')
        a('  s_waitcnt lgkmcnt(0)')
        ra, rb = 5, 6
        for k in range(NK):
            a(f'  v_add_u32 v{rb}, v{ra}, v{t[k]}')
            a(f'  v_mov_b32 v{t[k]}, v{ra}')
            ra, rb = rb, ra
        assert ra == 5
        a('  v_add_u32 v6, 15, v5')
        a('  v_and_b32 v6, -16, v6')
        a('  v_mov_b32 v7, v6')
        for sh in (1, 2, 4, 8):
            a('  s_nop 1')
            a(f'  v_add_u32_dpp v7, v7, v7 row_shr:{sh} row_mask:0xf bank_mask:0xf bound_ctrl:0')
        a('  s_nop 1')
        a('  v_add_u32_dpp v7, v7, v7 row_bcast:15 row_mask:0xa bank_mask:0xf')
        a('  s_nop 1')
        a('  v_add_u32_dpp v7, v7, v7 row_bcast:31 row_mask:0xc bank_mask:0xf')
        a('  s_lshl_b32 s40, s24, 2')
        a(f'  s_add_u32 s40, s40, {TMP}')
        a('  v_mov_b32 v3, s40')
        a('  s_mov_b32 exec_lo, 0')
        a('  s_mov_b32 exec_hi, 0x80000000')
        a('  ds_write_b32 v3, v7')
        a('  s_mov_b64 exec, -1')
        a.label(f'p1_skip1{sfx}')
        a('  s_waitcnt lgkmcnt(0)')
        a('  s_barrier')
        a(f'  v_mov_b32 v1, {TMP}')
        a('  ds_read2_b32 v[2:3], v1 offset0:0 offset1:1')
        a('  s_waitcnt lgkmcnt(0)')
        a('  v_readfirstlane_b32 s66, v2')
        a('  v_readfirstlane_b32 s67, v3')
        a('  ds_read2_b32 v[2:3], v1 offset0:2 offset1:3')
        a('  s_waitcnt lgkmcnt(0)')
        a('  v_readfirstlane_b32 s68, v2')
        a('  v_readfirstlane_b32 s69, v3')
        a('  s_nop 3')
        a('  s_add_u32 s70, s66, s67')
        a('  s_add_u32 s71, s70, s68')
        a('  s_add_u32 s72, s71, s69')
        a('  s_cmp_ge_u32 s24, 4')
        a(f'  s_cbranch_scc1 p1_skip2{sfx}')
        a('  s_mov_b32 s73, 0')
        a('  s_cmp_eq_u32 s24, 1')
        a('  s_cselect_b32 s73, s66, s73')
        a('  s_cmp_eq_u32 s24, 2')
        a('  s_cselect_b32 s73, s70, s73')
        a('  s_cmp_eq_u32 s24, 3')
        a('  s_cselect_b32 s73, s71, s73')
        a('  v_sub_u32 v7, v7, v6')
        a('  v_add_u32 v7, s73, v7')
        for k in range(NK):
            a(f'  v_add_u32 v{t[k]}, v7, v{t[k]}')
            a(f'  ds_write_b32 v4, v{t[k]} offset:{k*1024}')
        a('  v_lshl_or_b32 v5, v7, 12, v5')
        a(f'  s_mul_i32 s40, s2, {S*4}')
        if h: a(f'  s_add_u32 s40, s40, {h*4}')
        a(f'  s_mov_b32 s41, {cfg.NTT*4}')
        a('  v_mul_lo_u32 v6, v0, s41')
        a('  buffer_store_dword v5, v6, s[20:23], s40 offen')
        a.label(f'p1_skip2{sfx}')
        a('  s_waitcnt lgkmcnt(0)')
        a('  s_barrier')
        st()
        a('  v_mov_b32 v2, 1')
        a(f'  v_mov_b32 v1, {HIST}')
        a('  s_mov_b64 exec, s[44:45]')
        r0 = h * cfg.RPS * 4
        nrec = cfg.RPS * 4
        batches = [(b, min(8, nrec - b)) for b in range(0, nrec, 8)]
        def rank_issue(bi):
            b, n = batches[bi]
            base = (bi & 1) * 8
            for x in range(n):
                rec = r0 + b + x
                j, hh = rec >> 1, rec & 1
                ad = 4 + (x & 3)
                a(f'  v_add_u32_sdwa v{ad}, v1, v{AUX+j} dst_sel:DWORD dst_unused:UNUSED_PAD src0_sel:DWORD src1_sel:WORD_{hh}')
                a(f'  ds_add_rtn_u32 v{t[base+x]}, v{ad}, v2')
        def rank_pack(bi):
            b, n = batches[bi]
            base = (bi & 1) * 8
            for x in range(0, n, 2):
                j = (r0 + b + x) >> 1
                a(f'  v_lshl_or_b32 v{AUX+j}, v{t[base+x+1]}, 16, v{t[base+x]}')
        rank_issue(0)
        for bi in range(len(batches)):
            if bi + 1 < len(batches):
                rank_issue(bi + 1)
                a(f'  s_waitcnt lgkmcnt({batches[bi+1][1]})')
            else:
                a('  s_waitcnt lgkmcnt(0)')
            rank_pack(bi)
        a('  s_mov_b32 s43, 0x20000')
        for s in range(cfg.NSL):
            a('  s_mov_b64 exec, s[44:45]')
            if s > 0:
                a(f'  s_mov_b32 s42, {s*131072}')
            for x in range(r0, r0 + nrec):
                j, hh = x >> 1, x & 1
                ad = 4 + (x & 3)
                a(f'  v_lshlrev_b32_sdwa v{ad}, 3, v{AUX+j} dst_sel:DWORD dst_unused:UNUSED_PAD src0_sel:DWORD src1_sel:WORD_{hh}')
                if s > 0:
                    a(f'  v_subrev_u32 v{ad}, s42, v{ad}')
                a(f'  v_cmpx_gt_u32 vcc, s43, v{ad}')
                a(f'  ds_write2_b32 v{ad}, v{W0+x}, v{W1+x} offset0:0 offset1:1')
                a('  s_mov_b64 exec, s[44:45]')
            a('  s_mov_b64 exec, -1')
            a(f'  s_add_u32 s16, s28, {h*cfg.TILE_BYTES + s*131072}')
            a('  s_addc_u32 s17, s29, 0')
            a('  s_and_b32 s17, s17, 0xffff')
            last = (s == cfg.NSL - 1)
            if not last:
                a('  s_mov_b32 s18, 131072')
            else:
                a(f'  s_sub_u32 s18, s72, {s*16384}')
                a('  s_lshl_b32 s18, s18, 3')
            a('  s_mov_b32 s19, 0x20000')
            a('  v_lshlrev_b32 v1, 4, v0')
            a('  v_add_u32 v3, 0x10000, v1')
            a('  s_waitcnt lgkmcnt(0)')
            a('  s_barrier')
            if s == 0 and h + 1 < S:
                a(f'  v_add_u32 v2, {HIST}, v1')
                for r in range(4, 8):
                    a(f'  v_mov_b32 v{r}, 0')
                a('  ds_write_b128 v2, v[4:7]')
                a('  ds_write_b128 v2, v[4:7] offset:16384')
            rounds = 8 if not last else cfg.LAST_ROUNDS
            rnd = 0
            while rnd < rounds:
                nr = min(4, rounds - rnd)
                for u in range(nr):
                    a(f'  ds_read_b128 {vr(t[4*u],4)}, v{1 if rnd < 4 else 3} offset:{u*16384}')
                for u in range(nr):
                    a(f'  s_waitcnt lgkmcnt({nr-1-u})')
                    so = '0' if rnd + u == 0 else f's{CO+rnd+u}'
                    a(f'  buffer_store_dwordx4 {vr(t[4*u],4)}, v1, s[16:19], {so} offen{STF}')
                    stores_done += 1
                a('  s_nop 1')
                rnd += nr
            if not (last and h == S - 1):
                a('  s_barrier')
        st()
    if st.on:
        a('  s_waitcnt vmcnt(0)')
        st()
    st.flush('s24')
    a.label('p1_done')
    a('  s_endpgm')

class RegAlloc:
    def __init__(self, start):
        self.n = start
    def get(self, k=1, align=1):
        self.n = (self.n + align - 1) // align * align
        r = self.n; self.n += k
        return r

def gen_p2(a, opt, cfg):
    st = Stamps(a, bool(opt.get('stamp')), 'p2', 1); st.wave = opt.get('swave', 0)
    b_lag = opt.get('lag', 1)
    R = b_lag + 1
    NG = 8
    RNT = {0: '', 1: ' nt', 2: ' sc1', 3: ' sc0 sc1', 4: ' sc0 sc1 nt', 5: ' sc1 nt'}[opt.get('nt_rec', 1)]
    OTF = {0: '', 1: ' nt', 2: ' sc1', 3: ' sc0 sc1', 4: ' sc0'}[opt.get('out_st', 2)]
    se = opt.get('sync', 2)
    NSEG = 16 * cfg.S
    JPC = 32 // NSEG
    ra = RegAlloc(1)
    J4 = ra.get(); J8 = ra.get(); P = ra.get(); P7 = ra.get(); J8H = ra.get()
    VN = ra.get(); VB = ra.get(); VOFF8 = ra.get(); EE = ra.get()
    SELA = ra.get(); SELB = ra.get(); VDUM = ra.get(); COL = ra.get()
    D = [ra.get(2, 2), ra.get(2, 2)]
    PT = [ra.get(), ra.get()]; LA = [ra.get(), ra.get()]; GAD = [ra.get(), ra.get()]
    YR = [ra.get(), ra.get()]; AB = [ra.get(), ra.get()]
    X = [ra.get() for _ in range(6)]
    VROW4 = ra.get(); VLANE = ra.get()
    WD = ra.get(4, 2); WU = ra.get(4, 2)
    OFF = ra.get(5); MM = ra.get(10, 2)
    GG = ra.get(20, 2)
    HH = ra.get(10, 2)
    main0 = ra.n
    REC = [ra.get(2, 2) for _ in range(R)]
    VV = [ra.get() for _ in range(R)]
    CC = [ra.get() for _ in range(R)]
    ROW = [ra.get() for _ in range(R)]
    G = [ra.get(NG) for _ in range(R)]
    maxv = ra.n
    rp = RegAlloc(G[0])
    WSt = rp.get(2, 2); WRt = rp.get(2, 2); CEN = rp.get(2); DI = rp.get(5); RBp = rp.get(2, 2)
    assert rp.n <= G[0] + NG * R, (rp.n, G[0] + NG*R)
    HT = D[0]
    ra2 = RegAlloc(main0)
    Sg = ra2.get(8, 2); SF = ra2.get(4, 2); BT = ra2.get(4, 2); Y = ra2.get(4, 2); Z = ra2.get(4, 2)
    maxv = max(maxv, ra2.n)
    assert maxv <= 128, maxv
    a('.p2align 8')
    a('.type p2_kernel,@function')
    a.label('p2_kernel')
    a('  s_cmp_ge_u32 s2, 256')
    a('  s_cbranch_scc1 p2_done')
    a('  s_load_dwordx2 s[28:29], s[0:1], 104')
    a('  s_load_dwordx2 s[32:33], s[0:1], 0')
    a('  s_load_dwordx2 s[34:35], s[0:1], 24')
    a('  s_load_dwordx2 s[36:37], s[0:1], 40')
    a('  s_load_dwordx4 s[40:43], s[0:1], 56')
    a('  s_load_dwordx4 s[44:47], s[0:1], 72')
    a('  s_load_dwordx2 s[48:49], s[0:1], 88')
    a('  v_readfirstlane_b32 s24, v0')
    a(f'  v_and_b32 v{VLANE}, 63, v0')
    a(f'  v_and_b32 v{P}, 15, v0')
    a('  s_lshr_b32 s24, s24, 6')
    a(f'  v_lshrrev_b32 v{X[0]}, 1, v{VLANE}')
    a(f'  v_and_b32 v{X[1]}, {NSEG-1}, v{X[0]}')
    a(f'  s_mul_i32 s25, s2, {cfg.NTT}')
    a(f'  s_mul_i32 s26, s24, {NSEG}')
    a('  s_add_u32 s25, s25, s26')
    a('  s_lshl_b32 s25, s25, 2')
    a(f'  v_lshlrev_b32 v{X[2]}, 2, v{X[1]}')
    a(f'  v_lshrrev_b32 v{VROW4}, 4, v{VLANE}')
    a('  s_waitcnt lgkmcnt(0)')
    srd(a, 12, 28, cfg.TAB_BYTES)
    a(f'  buffer_load_dword v{VN}, v{X[2]}, s[12:15], s25 offen')
    st()
    srd(a, 4, 32, E * 32)
    srd(a, 20, 34, E * 2)
    npf = 0
    a(f'  v_lshlrev_b32 v{X[3]}, 1, v{P}')
    a(f'  v_lshl_add_u32 v{X[4]}, v{VROW4}, 7, v{X[3]}')
    WTMP = [YR[0], YR[1], AB[0], AB[1], PT[0], PT[1], LA[0], LA[1]]
    for q in range(4):
        a(f'  global_load_ushort v{WTMP[q]}, v{X[4]}, s[44:45] offset:{q*32}'); npf += 1
    for q in range(4):
        a(f'  global_load_ushort v{WTMP[4+q]}, v{X[4]}, s[46:47] offset:{q*32}'); npf += 1
    a(f'  v_lshl_add_u32 v{X[4]}, v{VROW4}, 5, v{X[3]}')
    WT2 = [GAD[0], GAD[1], COL, EE]
    for q in range(2):
        a(f'  global_load_ushort v{WT2[q]}, v{X[4]}, s[42:43] offset:{q*128}'); npf += 1
    for q in range(2):
        a(f'  global_load_ushort v{WT2[2+q]}, v{X[4]}, s[40:41] offset:{q*128}'); npf += 1
    a(f'  v_lshlrev_b32 v{X[4]}, 1, v{VROW4}')
    for q in range(2):
        a(f'  global_load_ushort v{CEN+q}, v{X[4]}, s[36:37] offset:{q*8}'); npf += 1
    a(f'  s_lshl_b32 s27, s2, 4')
    for u in range(5):
        a(f'  s_add_u32 s26, s24, {16*u}')
        a('  s_lshl_b32 s26, s26, 12')
        a('  s_add_u32 s26, s26, s27')
        a(f'  s_mov_b32 s{70+u}, s26')
        a(f'  v_add_u32 v{X[3]}, s26, v{P}')
        a(f'  v_lshlrev_b32 v{X[4]}, 1, v{X[3]}')
        a(f'  buffer_load_ushort v{DI+u}, v{X[4]}, s[20:23], 0 offen'); npf += 1
    for u in range(5):
        a(f'  v_add_u32 v{X[3]}, s{70+u}, v{P}')
        a(f'  v_lshlrev_b32 v{X[4]}, 5, v{X[3]}')
        a(f'  v_lshl_add_u32 v{OFF+u}, v{VROW4}, 3, v{X[4]}')
        a(f'  buffer_load_dwordx2 {vr(MM+2*u,2)}, v{OFF+u}, s[4:7], 0 offen'); npf += 1
    nm = 5
    if opt.get('warm', 0):
        a('  s_cmp_ge_u32 s24, 8')
        a('  s_cbranch_scc1 p2_nowarm')
        a('  s_lshr_b32 s26, s2, 3')
        a('  s_lshl_b32 s26, s26, 3')
        a('  s_add_u32 s26, s26, s24')
        a('  s_lshl_b32 s26, s26, 13')
        a(f'  v_lshlrev_b32 v{X[4]}, 7, v{VLANE}')
        a(f'  buffer_load_dword v{VDUM}, v{X[4]}, s[4:7], s26 offen')
        a.label('p2_nowarm')
    a(f'  s_add_u32 s8, s28, {cfg.REC_OFF}')
    a('  s_addc_u32 s9, s29, 0')
    a('  s_and_b32 s9, s9, 0xffff')
    a(f'  s_mov_b32 s10, {cfg.REC_BYTES}')
    a('  s_mov_b32 s11, 0x20000')
    srd(a, 16, 48, E * 32)
    a(f'  v_lshlrev_b32 v{X[3]}, 4, v0')
    for r in (D[0], D[0]+1, D[1], D[1]+1):
        a(f'  v_mov_b32 v{r}, 0')
    assert D[1] == D[0] + 2
    a(f'  v_add_u32 v{X[4]}, 0x10000, v{X[3]}')
    a(f'  v_add_u32 v{X[5]}, 0x20000, v{X[3]}')
    for i in range(4):
        a(f'  ds_write_b128 v{X[3]}, {vr(D[0],4)} offset:{i*16384}')
    for i in range(4):
        a(f'  ds_write_b128 v{X[4]}, {vr(D[0],4)} offset:{i*16384}')
    for i in range(2):
        a(f'  ds_write_b128 v{X[5]}, {vr(D[0],4)} offset:{i*16384}')
    a(f'  v_and_b32 v{P7}, 7, v0')
    a(f'  v_lshlrev_b32 v{J4}, 2, v{P7}')
    a(f'  v_lshlrev_b32 v{J8}, 3, v{P}')
    a(f'  v_lshlrev_b32 v{J8H}, 3, v{P7}')
    a(f'  v_cmp_gt_u32 vcc, 8, v{P}')
    a(f'  v_mov_b32 v{X[3]}, 0x03020c0c')
    a(f'  v_mov_b32 v{X[4]}, 0x05040c0c')
    a(f'  v_cndmask_b32 v{SELA}, v{X[3]}, v{X[4]}, vcc')
    a(f'  v_mov_b32 v{X[3]}, 0x07060c0c')
    a(f'  v_mov_b32 v{X[4]}, 0x01000c0c')
    a(f'  v_cndmask_b32 v{SELB}, v{X[3]}, v{X[4]}, vcc')
    a(f'  v_and_b32 v{VOFF8}, 1, v{VLANE}')
    a(f'  v_lshlrev_b32 v{VOFF8}, 3, v{VOFF8}')
    if JPC > 1:
        a(f'  v_lshrrev_b32 v{X[3]}, {1 + int(math.log2(NSEG))}, v{VLANE}')
        a(f'  v_lshl_add_u32 v{VOFF8}, v{X[3]}, 4, v{VOFF8}')
    a(f'  s_mul_i32 s26, s24, {NSEG}')
    a(f'  v_add_u32 v{X[0]}, s26, v{X[1]}')
    a(f'  s_mov_b32 s27, {cfg.TILE_LINES}')
    a(f'  v_mul_lo_u32 v{X[0]}, v{X[0]}, s27')
    a('  s_mov_b32 s52, 0xffffffc0')
    a('  s_mov_b32 s53, 0xffff0000')
    a('  s_mov_b32 s54, 0x3ff80')
    a(f'  s_waitcnt vmcnt({npf})')
    if opt.get('pstamp'): st()
    a(f'  v_lshrrev_b32 v{VB}, 16, v{VN}')
    a(f'  v_and_b32 v{VN}, 0xffff, v{VN}')
    a(f'  v_add_u32 v{VB}, v{VB}, v{X[0]}')
    a(f'  v_lshlrev_b32 v{VB}, 7, v{VB}')
    a(f'  v_mov_b32 v{X[0]}, v{VN}')
    for sh in (1, 2, 4, 8):
        a('  s_nop 1')
        a(f'  v_max_u32_dpp v{X[0]}, v{X[0]}, v{X[0]} row_ror:{sh} row_mask:0xf bank_mask:0xf')
    a('  s_nop 1')
    for i, ln in enumerate((0, 16, 32, 48)):
        a(f'  v_readlane_b32 s{56+i}, v{X[0]}, {ln}')
    a('  s_nop 3')
    a('  s_max_u32 s56, s56, s57')
    a('  s_max_u32 s58, s58, s59')
    a('  s_max_u32 s50, s56, s58')
    a('  s_mov_b32 s51, 0')
    a('  s_mov_b32 s56, 0')
    a('  s_mov_b32 s64, 0')
    if se:
        a(f'  s_mov_b32 s69, {opt.get("nsync", 38 // se)}')
    a(f'  s_waitcnt vmcnt({nm})')
    if opt.get('pstamp'): st()
    a(f'  v_lshl_or_b32 v{WD}, v{WTMP[1]}, 16, v{WTMP[0]}')
    a(f'  v_lshl_or_b32 v{WD+1}, v{WTMP[3]}, 16, v{WTMP[2]}')
    a(f'  v_lshl_or_b32 v{WU}, v{WTMP[5]}, 16, v{WTMP[4]}')
    a(f'  v_lshl_or_b32 v{WU+1}, v{WTMP[7]}, 16, v{WTMP[6]}')
    a(f'  v_lshl_or_b32 v{WSt}, v{WT2[1]}, 16, v{WT2[0]}')
    a(f'  v_lshl_or_b32 v{WRt}, v{WT2[3]}, 16, v{WT2[2]}')
    a(f'  v_mov_b32 v{WD+2}, v{WD}')
    a(f'  v_mov_b32 v{WD+3}, v{WD+1}')
    a(f'  v_mov_b32 v{WU+2}, v{WU}')
    a(f'  v_mov_b32 v{WU+3}, v{WU+1}')
    a(f'  v_mov_b32 v{WSt+1}, 0')
    a(f'  v_mov_b32 v{WRt+1}, 0')
    a(f'  v_mov_b32 v{RBp+1}, 0')
    a(f'  v_lshlrev_b32 v{CEN}, 16, v{CEN}')
    a(f'  v_lshlrev_b32 v{CEN+1}, 16, v{CEN+1}')
    uid = [0]
    def stageA(b):
        u = uid[0]; uid[0] += 1
        a.label(f'p2_chk{u}')
        a('  s_cmp_lg_u32 s56, 0')
        a(f'  s_cbranch_scc1 p2_go{u}')
        a('  s_cmp_ge_u32 s51, s50')
        a(f'  s_cbranch_scc1 p2_exh{u}')
        a(f'  v_add_u32 v{X[0]}, s51, v{VOFF8}')
        a(f'  v_cmp_gt_u32 vcc, v{VN}, v{X[0]}')
        a(f'  v_sub_u32 v{X[1]}, v{VN}, v{X[0]}')
        a(f'  v_min_u32 v{X[1]}, 8, v{X[1]}')
        a(f'  v_lshl_add_u32 v{X[2]}, v{X[0]}, 3, v{VB}')
        a(f'  v_or_b32 v{X[2]}, v{X[2]}, v{X[1]}')
        a(f'  s_bcnt1_i32_b64 s67, vcc')
        a(f'  v_mbcnt_lo_u32_b32 v{X[3]}, vcc_lo, 0')
        a(f'  v_mbcnt_hi_u32_b32 v{X[3]}, vcc_hi, v{X[3]}')
        a(f'  v_sub_u32 v{X[4]}, v{VLANE}, v{X[3]}')
        a(f'  v_add_u32 v{X[4]}, s67, v{X[4]}')
        a(f'  v_cndmask_b32 v{X[4]}, v{X[4]}, v{X[3]}, vcc')
        a(f'  v_cndmask_b32 v{X[2]}, 0, v{X[2]}, vcc')
        a(f'  v_and_b32 v{X[5]}, 6, v{X[4]}')
        a(f'  v_lshlrev_b32 v{X[5]}, 5, v{X[5]}')
        a(f'  v_and_or_b32 v{X[5]}, v{X[4]}, -8, v{X[5]}')
        a(f'  v_and_b32 v{X[4]}, 1, v{X[4]}')
        a(f'  v_lshl_or_b32 v{X[5]}, v{X[4]}, 2, v{X[5]}')
        a(f'  ds_permute_b32 v{EE}, v{X[5]}, v{X[2]}')
        a('  s_add_u32 s56, s67, 7')
        a('  s_lshr_b32 s56, s56, 3')
        a('  s_add_u32 s64, s64, s56')
        a(f'  s_add_u32 s51, s51, {16*JPC}')
        a('  s_waitcnt lgkmcnt(0)')
        a(f'  s_branch p2_go{u}')
        a.label(f'p2_exh{u}')
        a(f'  v_mov_b32 v{EE}, 0')
        a('  s_mov_b32 s56, 1')
        a('  s_nop 0')
        a.label(f'p2_go{u}')
        a('  s_sub_u32 s56, s56, 1')
        a(f'  v_mov_b32_dpp v{X[0]}, v{EE} row_newbcast:0 row_mask:0xf bank_mask:0x3')
        a(f'  v_mov_b32_dpp v{X[0]}, v{EE} row_newbcast:1 row_mask:0xf bank_mask:0xc')
        a(f'  v_mov_b32_dpp v{EE}, v{EE} row_shl:2 row_mask:0xf bank_mask:0xf bound_ctrl:0')
        a(f'  v_and_or_b32 v{X[1]}, v{X[0]}, s52, v{J8H}')
        a(f'  v_and_b32 v{VV[b]}, 15, v{X[0]}')
        a(f'  buffer_load_dwordx2 {vr(REC[b],2)}, v{X[1]}, s[8:11], 0 offen{RNT}')
    def decode(b):
        a(f'  v_cmp_gt_u32 vcc, v{VV[b]}, v{P7}')
        a(f'  v_lshlrev_b32 v{X[2]}, 7, v{REC[b]+1}')
        a(f'  v_and_b32 v{CC[b]}, s53, v{REC[b]+1}')
        a(f'  v_and_b32 v{X[2]}, s54, v{X[2]}')
        a(f'  v_cndmask_b32 v{COL}, 0, v{REC[b]}, vcc')
        if opt.get('colmask'):
            a(f'  v_and_b32 v{COL}, {opt["colmask"]}, v{COL}')
        a(f'  v_cndmask_b32 v{ROW[b]}, v{VDUM}, v{X[2]}, vcc')
        a('  s_nop 0')
    def gather(b, g):
        ad = GAD[g & 1]
        a(f'  v_add_u32_dpp v{ad}, v{COL}, v{J4} row_newbcast:{2*g} row_mask:0xf bank_mask:0x3')
        a(f'  v_add_u32_dpp v{ad}, v{COL}, v{J4} row_newbcast:{2*g+1} row_mask:0xf bank_mask:0xc')
        a(f'  buffer_load_dword v{G[b]+g}, v{ad}, s[4:7], 0 offen')
    def consume(b, g):
        x = G[b] + g; y = YR[g & 1]
        a(f'  v_mov_b32_dpp v{y}, v{x} row_ror:8 row_mask:0xf bank_mask:0xf')
        a(f'  v_add_u32_dpp v{LA[0]}, v{ROW[b]}, v{J8} row_newbcast:{2*g} row_mask:0xf bank_mask:0xf')
        a(f'  v_add_u32_dpp v{LA[1]}, v{ROW[b]}, v{J8} row_newbcast:{2*g+1} row_mask:0xf bank_mask:0xf')
        a(f'  v_perm_b32 v{AB[0]}, v{x}, v{y}, v{SELA}')
        a(f'  v_perm_b32 v{AB[1]}, v{x}, v{y}, v{SELB}')
        a(f'  v_mul_f32_dpp v{PT[0]}, v{CC[b]}, v{AB[0]} row_newbcast:{2*g} row_mask:0xf bank_mask:0xf')
        a(f'  v_mul_f32_dpp v{PT[1]}, v{CC[b]}, v{AB[1]} row_newbcast:{2*g+1} row_mask:0xf bank_mask:0xf')
        a(f'  v_cvt_f64_f32 {vr(D[0],2)}, v{PT[0]}')
        a(f'  v_cvt_f64_f32 {vr(D[1],2)}, v{PT[1]}')
        if not opt.get('no_ds'):
            a(f'  ds_add_f64 v{LA[0]}, {vr(D[0],2)}')
            a(f'  ds_add_f64 v{LA[1]}, {vr(D[1],2)}')
    for t in range(-2*b_lag, -b_lag):
        stageA((t + 2*b_lag) % R)
    first = True
    for t in range(-b_lag, 0):
        stageA((t + 2*b_lag) % R)
        if first:
            first = False
            a('  s_mov_b32 s76, 0xc1200000')
            a('  s_mov_b32 s77, 0x3fb8aa3b')
            for u in range(5):
                a(f'  v_lshlrev_b32 v{X[1]}, 16, v{DI+u}')
                a(f'  v_sub_f32 v{X[2]}, v{X[1]}, v{CEN}')
                a(f'  v_sub_f32 v{X[3]}, v{X[1]}, v{CEN+1}')
                def rnd2():
                    a(f'  v_cvt_pk_bf16_f32 v{X[4]}, v{X[2]}, v{X[3]}')
                    a(f'  v_lshlrev_b32 v{X[2]}, 16, v{X[4]}')
                    a(f'  v_and_b32 v{X[3]}, s53, v{X[4]}')
                rnd2()
                a(f'  v_mul_f32 v{X[2]}, v{X[2]}, v{X[2]}')
                a(f'  v_mul_f32 v{X[3]}, v{X[3]}, v{X[3]}')
                rnd2()
                a(f'  v_mul_f32 v{X[2]}, s76, v{X[2]}')
                a(f'  v_mul_f32 v{X[3]}, s76, v{X[3]}')
                rnd2()
                a(f'  v_mul_f32 v{X[2]}, s77, v{X[2]}')
                a(f'  v_mul_f32 v{X[3]}, s77, v{X[3]}')
                a(f'  v_exp_f32 v{X[2]}, v{X[2]}')
                a(f'  v_exp_f32 v{X[3]}, v{X[3]}')
                a('  s_nop 0')
                a(f'  v_cvt_pk_bf16_f32 v{RBp}, v{X[2]}, v{X[3]}')
                a('  s_nop 1')
                a(f'  v_mfma_f32_16x16x16_bf16 {vr(GG+4*u,4)}, {vr(WSt,2)}, {vr(RBp,2)}, 0')
                a(f'  v_mfma_f32_16x16x16_bf16 {vr(HT,4)}, {vr(WRt,2)}, {vr(RBp,2)}, 0')
                a('  s_nop 7')
                a('  s_nop 1')
                a(f'  v_cvt_pk_bf16_f32 v{HH+2*u}, v{HT}, v{HT+1}')
                a(f'  v_cvt_pk_bf16_f32 v{HH+2*u+1}, v{HT+2}, v{HT+3}')
        if opt.get('pstamp') and t == -b_lag: st()
        a(f'  s_waitcnt vmcnt({b_lag + NG*(t + b_lag)})')
        if opt.get('pstamp') and t == -b_lag: st()
        if t == -b_lag:
            a(f'  v_mov_b32 v{VDUM}, {DUMMY_ROW*128}')
        decode((t + b_lag) % R)
        for g in range(NG):
            gather((t + b_lag) % R, g)
    a('  s_waitcnt lgkmcnt(0)')
    a('  s_barrier')
    st()
    a('  s_cmp_eq_u32 s64, 0')
    a('  s_cbranch_scc1 p2_loop_exit')
    a.label('p2_loop')
    U = R
    if se and se > R and se % R == 0:
        U = se
    for t in range(U):
        tb = t % R
        stageA((tb + 2*b_lag) % R)
        a(f'  s_waitcnt vmcnt({(NG+1)*b_lag})')
        decode((tb + b_lag) % R)
        for g in range(NG):
            gather((tb + b_lag) % R, g)
            a(f'  s_waitcnt vmcnt({(NG+1)*b_lag})')
            consume(tb, g)
        if se and (t % se) == se - 1:
            a('  s_cmp_eq_u32 s69, 0')
            a(f'  s_cbranch_scc1 p2_nosync{t}')
            a('  s_barrier')
            a('  s_sub_u32 s69, s69, 1')
            a.label(f'p2_nosync{t}')
        a('  s_sub_u32 s64, s64, 1')
        a('  s_cmp_eq_u32 s64, 0')
        if t < U - 1:
            a('  s_cbranch_scc1 p2_loop_exit')
        else:
            a('  s_cbranch_scc0 p2_loop')
    a.label('p2_loop_exit')
    if se:
        a.label('p2_owed')
        a('  s_cmp_eq_u32 s69, 0')
        a('  s_cbranch_scc1 p2_owed_done')
        a('  s_barrier')
        a('  s_sub_u32 s69, s69, 1')
        a('  s_branch p2_owed')
        a.label('p2_owed_done')
    st()
    a('  s_waitcnt vmcnt(0) lgkmcnt(0)')
    a('  s_barrier')
    st()
    def split4(src):
        a(f'  v_cvt_pk_bf16_f32 v{BT}, v{src}, v{src+1}')
        a(f'  v_cvt_pk_bf16_f32 v{BT+1}, v{src+2}, v{src+3}')
        a(f'  v_lshlrev_b32 v{X[0]}, 16, v{BT}')
        a(f'  v_and_b32 v{X[1]}, s53, v{BT}')
        a(f'  v_lshlrev_b32 v{X[2]}, 16, v{BT+1}')
        a(f'  v_and_b32 v{X[3]}, s53, v{BT+1}')
        for q in range(4):
            a(f'  v_sub_f32 v{X[q]}, v{src+q}, v{X[q]}')
        a(f'  v_cvt_pk_bf16_f32 v{BT+2}, v{X[0]}, v{X[1]}')
        a(f'  v_cvt_pk_bf16_f32 v{BT+3}, v{X[2]}, v{X[3]}')
        a('  s_nop 1')
    for u in range(5):
        a(f'  s_cmp_ge_u32 s{70+u}, {E}')
        a(f'  s_cbranch_scc1 p2_epi_skip{u}')
        a(f'  s_add_u32 s26, s24, {16*u}')
        a('  s_lshl_b32 s26, s26, 11')
        a(f'  v_lshlrev_b32 v{X[0]}, 7, v{P}')
        a(f'  v_lshl_add_u32 v{X[0]}, v{VROW4}, 4, v{X[0]}')
        a(f'  v_add_u32 v{X[0]}, s26, v{X[0]}')
        a(f'  ds_read_b128 {vr(Sg,4)}, v{X[0]}')
        a(f'  ds_read_b128 {vr(Sg+4,4)}, v{X[0]} offset:64')
        a('  s_waitcnt lgkmcnt(0)')
        order = [0, 2, 1, 3]
        for i in range(4):
            a(f'  v_cvt_f32_f64 v{SF+order[i]}, {vr(Sg+2*i,2)}')
        split4(SF)
        a(f'  v_mfma_f32_16x16x32_bf16 {vr(Y,4)}, {vr(WD,4)}, {vr(BT,4)}, 0')
        a('  s_nop 7')
        a('  s_nop 1')
        for q in range(4):
            a(f'  v_mul_f32 v{Y+q}, v{Y+q}, v{GG+4*u+q}')
        split4(Y)
        a(f'  v_mfma_f32_16x16x32_bf16 {vr(Z,4)}, {vr(WU,4)}, {vr(BT,4)}, 0')
        a(f'  v_lshlrev_b32 v{SF}, 16, v{HH+2*u}')
        a(f'  v_and_b32 v{SF+1}, s53, v{HH+2*u}')
        a(f'  v_lshlrev_b32 v{SF+2}, 16, v{HH+2*u+1}')
        a(f'  v_and_b32 v{SF+3}, s53, v{HH+2*u+1}')
        a(f'  v_lshlrev_b32 v{Y}, 16, v{MM+2*u}')
        a(f'  v_and_b32 v{Y+1}, s53, v{MM+2*u}')
        a(f'  v_lshlrev_b32 v{Y+2}, 16, v{MM+2*u+1}')
        a(f'  v_and_b32 v{Y+3}, s53, v{MM+2*u+1}')
        a('  s_nop 1')
        a(f'  v_cvt_pk_bf16_f32 v{X[0]}, v{Z}, v{Z+1}')
        a(f'  v_cvt_pk_bf16_f32 v{X[1]}, v{Z+2}, v{Z+3}')
        a(f'  v_lshlrev_b32 v{Z}, 16, v{X[0]}')
        a(f'  v_and_b32 v{Z+1}, s53, v{X[0]}')
        a(f'  v_lshlrev_b32 v{Z+2}, 16, v{X[1]}')
        a(f'  v_and_b32 v{Z+3}, s53, v{X[1]}')
        for q in range(4):
            a(f'  v_mul_f32 v{Z+q}, v{Z+q}, v{SF+q}')
        a(f'  v_cvt_pk_bf16_f32 v{X[0]}, v{Z}, v{Z+1}')
        a(f'  v_cvt_pk_bf16_f32 v{X[1]}, v{Z+2}, v{Z+3}')
        a(f'  v_lshlrev_b32 v{Z}, 16, v{X[0]}')
        a(f'  v_and_b32 v{Z+1}, s53, v{X[0]}')
        a(f'  v_lshlrev_b32 v{Z+2}, 16, v{X[1]}')
        a(f'  v_and_b32 v{Z+3}, s53, v{X[1]}')
        for q in range(4):
            a(f'  v_add_f32 v{Z+q}, v{Z+q}, v{Y+q}')
        a(f'  v_cvt_pk_bf16_f32 v{Z}, v{Z}, v{Z+1}')
        a(f'  v_cvt_pk_bf16_f32 v{Z+1}, v{Z+2}, v{Z+3}')
        a(f'  buffer_store_dwordx2 {vr(Z,2)}, v{OFF+u}, s[16:19], 0 offen{OTF}')
        a.label(f'p2_epi_skip{u}')
    if st.on:
        a('  s_waitcnt vmcnt(0)')
        st()
    st.flush('s24')
    a.label('p2_done')
    a('  s_endpgm')
    return maxv

def descriptor(a, name, vgpr, sgpr):
    a(f'.amdhsa_kernel {name}')
    a(f'  .amdhsa_next_free_vgpr {vgpr}')
    a(f'  .amdhsa_next_free_sgpr {sgpr}')
    a(f'  .amdhsa_accum_offset {(vgpr + 3) // 4 * 4}')
    a('  .amdhsa_group_segment_fixed_size 0')
    a('  .amdhsa_kernarg_size 112')
    a('  .amdhsa_user_sgpr_count 2')
    a('  .amdhsa_user_sgpr_kernarg_segment_ptr 1')
    a('  .amdhsa_system_sgpr_workgroup_id_x 1')
    a('  .amdhsa_float_denorm_mode_32 3')
    a('.end_amdhsa_kernel')

HEADER = '''; Kernarg layout (112 bytes, ptrs only, base s[0:1]):
; @launch kernel=p1_kernel grid=(256,1,1) block=(1024,1,1) lds=163840
; @launch kernel=p2_kernel grid=(256,1,1) block=(1024,1,1) lds=163840
.amdgcn_target "amdgcn-amd-amdhsa--gfx950"
.text
.globl p1_kernel
.globl p2_kernel
'''

def build(opt):
    cfg = Cfg(opt)
    a = Asm()
    a(HEADER.rstrip('\n'))
    gen_p1(a, opt, cfg)
    v2 = gen_p2(a, opt, cfg)
    a('.section .rodata,"a"')
    a('.p2align 6')
    ns = 102 if opt.get('stamp') else 80
    descriptor(a, 'p1_kernel', 128, ns)
    a('.p2align 6')
    descriptor(a, 'p2_kernel', v2, ns)
    return a.text()

if __name__ == '__main__':
    out = sys.argv[1] if len(sys.argv) > 1 else 'standalone__molecular_angular_gemnet__graph.s'
    opt = {}
    for kv in sys.argv[2:]:
        k, v = kv.split('=')
        opt[k] = int(v) if v.lstrip('-').isdigit() else v
    open(out, 'w').write(build(opt))
    print('wrote', out)
```

```python
import struct, sys, math

def f32bits(x):
    return struct.unpack('<I', struct.pack('<f', x))[0]
def bits2f(b):
    return struct.unpack('<f', struct.pack('<I', b))[0]

E = 320000
T = 10240000
NWG = 256
import os
KSH = int(os.environ.get('KSH', 14))
NK = (E + (1 << KSH) - 1) >> KSH
HIST = 131072
TMP = HIST + NK * 1024
DUMMY_ROW = 1264

class Cfg:
    def __init__(self, opt):
        self.S = 1
        self.NTT = NWG
        self.SUB = 40000
        self.RPS = 10
        self.SLICE = 21504
        self.CBASE = self.SLICE * 4
        self.SLICE_BYTES = self.SLICE * 6
        maxpad = self.SUB + 256 * 7
        assert maxpad <= 2 * self.SLICE and self.SUB > self.SLICE
        self.TILE_BYTES = (maxpad * 6 + 127) // 128 * 128
        self.TAB_BYTES = 256 * self.NTT * 4
        self.REC_OFF = self.TAB_BYTES
        self.REC_BYTES = self.NTT * self.TILE_BYTES
        self.NSL = 2

class Asm:
    def __init__(self):
        self.lines = []
    def __call__(self, s=''):
        for l in s.split('\n'):
            self.lines.append(l)
    def label(self, s):
        self.lines.append(s + ':')
    def text(self):
        return '\n'.join(self.lines) + '\n'

def vr(a, n=1):
    return f'v{a}' if n == 1 else f'v[{a}:{a+n-1}]'

def srd(a, d, ptr, size):
    a(f'  s_mov_b32 s{d}, s{ptr}')
    a(f'  s_and_b32 s{d+1}, s{ptr+1}, 0xffff')
    a(f'  s_mov_b32 s{d+2}, {size}')
    a(f'  s_mov_b32 s{d+3}, 0x20000')

class Stamps:
    def __init__(self, a, on, name, slot):
        self.a = a; self.on = on; self.n = 0; self.name = name; self.slot = slot; self.wave = 0
    def __call__(self):
        if not self.on: return
        a = self.a
        a('  s_memtime s[80:81]')
        a('  s_memrealtime s[82:83]')
        a('  s_waitcnt lgkmcnt(0)')
        a(f'  s_mov_b32 s{84+2*self.n}, s80')
        a(f'  s_mov_b32 s{85+2*self.n}, s82')
        self.n += 1
        assert self.n <= 9
    def flush(self, wavereg):
        if not self.on: return
        a = self.a
        a(f'  s_cmp_lg_u32 {wavereg}, {self.wave}')
        a(f'  s_cbranch_scc1 {self.name}_nostamp')
        a('  s_load_dwordx2 s[80:81], s[0:1], 104')
        a('  s_waitcnt lgkmcnt(0)')
        a(f'  s_add_u32 s80, s80, {200*1048576 + self.slot*65536}')
        a('  s_addc_u32 s81, s81, 0')
        a('  s_lshl_b32 s82, s2, 7')
        a('  v_mov_b32 v1, s82')
        for i in range(2*self.n):
            a(f'  v_mov_b32 v2, s{84+i}')
            a(f'  global_store_dword v1, v2, s[80:81] offset:{4*i}')
        a.label(f'{self.name}_nostamp')

def gen_p1(a, opt, cfg):
    st = Stamps(a, bool(opt.get('stamp')), 'p1', 0)
    NTF = ' nt' if opt.get('nt_in', 1) else ''
    STF = {0: '', 1: ' nt', 2: ' sc1', 3: ' sc0 sc1', 4: ' sc0'}[opt.get('nt_st', 2)]
    S = cfg.S
    W0, W1, AUX = 8, 48, 88
    CO = 32
    t = [108 + i for i in range(20)]
    inv2pi = 1.0 / (2.0 * math.pi)
    chi_bits = f32bits(inv2pi) & 0xffffff00
    clo_bits = f32bits(inv2pi - bits2f(chi_bits))
    a('.p2align 8')
    a('.type p1_kernel,@function')
    a.label('p1_kernel')
    a('  s_cmp_ge_u32 s2, 256')
    a('  s_cbranch_scc1 p1_done')
    a('  s_load_dwordx4 s[32:35], s[0:1], 8')
    a('  s_load_dwordx2 s[36:37], s[0:1], 32')
    a('  s_load_dwordx2 s[38:39], s[0:1], 48')
    a('  s_load_dwordx2 s[28:29], s[0:1], 104')
    a('  s_load_dwordx2 s[74:75], s[0:1], 0')
    a('  v_lshlrev_b32 v1, 4, v0')
    a(f'  v_add_u32 v2, {HIST}, v1')
    for r in range(4, 8):
        a(f'  v_mov_b32 v{r}, 0')
    a('  ds_write_b128 v2, v[4:7]')
    a('  ds_write_b128 v2, v[4:7] offset:16384')
    a('  s_mul_i32 s40, s2, 160000')
    a('  s_mul_i32 s41, s2, 80000')
    a('  v_add_u32 v1, s40, v1')
    a('  v_lshlrev_b32 v3, 3, v0')
    a('  v_add_u32 v3, s41, v3')
    a('  v_readfirstlane_b32 s24, v0')
    a('  v_cmp_gt_u32 vcc, 1000, v0')
    a('  s_lshr_b32 s24, s24, 6')
    a('  s_mov_b64 s[44:45], vcc')
    for i in range(1, 10):
        a(f'  s_mov_b32 s{45+i}, {i*16000}')
        a(f'  s_mov_b32 s{55+i}, {i*8000}')
    a('  s_waitcnt lgkmcnt(0)')
    a('  s_load_dword s26, s[38:39], 0')
    srd(a, 4, 32, T * 4)
    srd(a, 8, 34, T * 4)
    srd(a, 12, 36, T * 2)
    st()
    a('  s_mov_b64 exec, s[44:45]')
    def issue_round(i):
        so = '0' if i == 0 else f's{45+i}'
        sa = '0' if i == 0 else f's{55+i}'
        a(f'  buffer_load_dwordx4 {vr(W0+4*i,4)}, v1, s[4:7], {so} offen{NTF}')
        a(f'  buffer_load_dwordx4 {vr(W1+4*i,4)}, v1, s[8:11], {so} offen{NTF}')
        a(f'  buffer_load_dwordx2 {vr(AUX+2*i,2)}, v3, s[12:15], {sa} offen{NTF}')
    AHEAD = opt.get('ahead', 2)
    for i in range(AHEAD):
        issue_round(i)
    issued = AHEAD
    a('  s_mov_b32 s27, 0xffff0000')
    a(f'  s_mov_b32 s30, {chi_bits:#x}')
    a(f'  s_mov_b32 s31, {clo_bits:#x}')
    a(f'  s_mov_b32 s42, {HIST}')
    a('  s_mov_b32 s43, 0x3fc')
    a('  v_mov_b32 v2, 1')
    srd(a, 20, 28, cfg.TAB_BYTES)
    srd(a, 76, 74, E * 32)
    a(f'  s_mul_i32 s40, s2, {S * cfg.TILE_BYTES}')
    a('  s_add_u32 s28, s28, s40')
    a('  s_addc_u32 s29, s29, 0')
    a(f'  s_add_u32 s28, s28, {cfg.REC_OFF}')
    a('  s_addc_u32 s29, s29, 0')
    a('  s_waitcnt lgkmcnt(0)')
    a('  s_and_b32 s26, s26, 0xffff')
    a('  s_lshl_b32 s26, s26, 16')
    a('  s_barrier')
    for i in range(1, 8):
        a(f'  s_mov_b32 s{CO+i}, {i*16128}')
    stores_done = 0
    for h in range(S):
        sfx = f'_{h}'
        if h > 0:
            a('  v_mov_b32 v2, 1')
            a(f'  s_mov_b32 s42, {HIST}')
            a('  s_mov_b32 s43, 0x3fc')
            a('  s_mov_b64 exec, s[44:45]')
        for i in range(h * cfg.RPS, (h + 1) * cfg.RPS):
            A = [W0 + 4*i + e for e in range(4)]
            O = [W1 + 4*i + e for e in range(4)]
            G = [AUX + 2*i, AUX + 2*i + 1]
            a(f'  s_waitcnt vmcnt({3*(issued - 1 - i) + stores_done})')
            if issued < 10:
                issue_round(issued); issued += 1
            a(f'  v_lshlrev_b32 v{t[0]}, 16, v{G[0]}')
            a(f'  v_and_b32 v{t[1]}, s27, v{G[0]}')
            a(f'  v_lshlrev_b32 v{t[2]}, 16, v{G[1]}')
            a(f'  v_and_b32 v{t[3]}, s27, v{G[1]}')
            for e in range(4):
                a(f'  v_mul_f32 v{t[e]}, s26, v{t[e]}')
            a(f'  v_cvt_pk_bf16_f32 v{t[4]}, v{t[0]}, v{t[1]}')
            a(f'  v_cvt_pk_bf16_f32 v{t[5]}, v{t[2]}, v{t[3]}')
            for e in range(4):
                a(f'  v_lshrrev_b32 v{t[8+e]}, 8, v{O[e]}')
            a(f'  v_lshlrev_b32 v{t[0]}, 16, v{t[4]}')
            a(f'  v_and_b32 v{t[1]}, s27, v{t[4]}')
            a(f'  v_lshlrev_b32 v{t[2]}, 16, v{t[5]}')
            a(f'  v_and_b32 v{t[3]}, s27, v{t[5]}')
            for e in range(4):
                a(f'  v_bfi_b32 v{t[8+e]}, 15, v{O[e]}, v{t[8+e]}')
            for e in range(4):
                a(f'  v_mul_f32 v{t[4+e]}, s30, v{t[e]}')
            for e in range(4):
                a(f'  v_fract_f32 v{t[4+e]}, v{t[4+e]}')
            for e in range(4):
                a(f'  v_fma_f32 v{t[4+e]}, v{t[e]}, s31, v{t[4+e]}')
            for e in range(4):
                a(f'  v_cos_f32 v{t[4+e]}, v{t[4+e]}')
            for e in range(4):
                a(f'  v_lshrrev_b32 v{t[12+e]}, 2, v{O[e]}')
            for e in range(4):
                a(f'  v_lshrrev_b32 v{t[e]}, {KSH}, v{A[e]}')
            for e in range(4):
                a(f'  v_and_b32 v{t[12+e]}, s43, v{t[12+e]}')
            for e in range(4):
                a(f'  v_lshl_or_b32 v{t[12+e]}, v{t[e]}, 10, v{t[12+e]}')
            a(f'  v_cvt_pk_bf16_f32 v{t[16]}, v{t[4]}, v{t[5]}')
            a(f'  v_cvt_pk_bf16_f32 v{t[17]}, v{t[6]}, v{t[7]}')
            for e in range(4):
                a(f'  v_add_u32 v{t[e]}, s42, v{t[12+e]}')
            for e in range(4):
                a(f'  ds_add_u32 v{t[e]}, v2')
            for e in range(4):
                a(f'  v_lshl_or_b32 v{A[e]}, v{t[8+e]}, 19, v{A[e]}')
            a(f'  v_mov_b32 v{O[0]}, v{t[16]}')
            a(f'  v_mov_b32 v{O[2]}, v{t[17]}')
            a(f'  v_lshl_or_b32 v{G[0]}, v{t[13]}, 16, v{t[12]}')
            a(f'  v_lshl_or_b32 v{G[1]}, v{t[15]}, 16, v{t[14]}')
        a('  s_mov_b64 exec, -1')
        a('  s_waitcnt lgkmcnt(0)')
        a('  s_barrier')
        st()
        if h == S - 1 and opt.get('mpf1', 1):
            a('  s_sub_u32 s40, s24, 4')
            a('  s_cmp_ge_u32 s40, 5')
            a('  s_cbranch_scc1 p1_nopf')
            a('  s_mul_i32 s41, s2, 40000')
            a('  s_and_b32 s41, s41, 0xffffff80')
            a('  v_subrev_u32 v5, 256, v0')
            a('  v_lshlrev_b32 v5, 7, v5')
            a(f'  buffer_load_dword v{W1+1}, v5, s[76:79], s41 offen')
            a.label('p1_nopf')
        a('  v_lshlrev_b32 v4, 2, v0')
        a(f'  v_add_u32 v4, {HIST}, v4')
        a('  s_cmp_ge_u32 s24, 4')
        a(f'  s_cbranch_scc1 p1_skip1{sfx}')
        for k in range(NK):
            a(f'  ds_read_b32 v{t[k]}, v4 offset:{k*1024}')
        a('  v_mov_b32 v5, 0')
        a('  s_waitcnt lgkmcnt(0)')
        ra, rb = 5, 6
        for k in range(NK):
            a(f'  v_add_u32 v{rb}, v{ra}, v{t[k]}')
            a(f'  v_mov_b32 v{t[k]}, v{ra}')
            ra, rb = rb, ra
        assert ra == 5
        a('  v_add_u32 v6, 7, v5')
        a('  v_and_b32 v6, -8, v6')
        a('  v_mov_b32 v7, v6')
        for sh in (1, 2, 4, 8):
            a('  s_nop 1')
            a(f'  v_add_u32_dpp v7, v7, v7 row_shr:{sh} row_mask:0xf bank_mask:0xf bound_ctrl:0')
        a('  s_nop 1')
        a('  v_add_u32_dpp v7, v7, v7 row_bcast:15 row_mask:0xa bank_mask:0xf')
        a('  s_nop 1')
        a('  v_add_u32_dpp v7, v7, v7 row_bcast:31 row_mask:0xc bank_mask:0xf')
        a('  s_lshl_b32 s40, s24, 2')
        a(f'  s_add_u32 s40, s40, {TMP}')
        a('  v_mov_b32 v3, s40')
        a('  s_mov_b32 exec_lo, 0')
        a('  s_mov_b32 exec_hi, 0x80000000')
        a('  ds_write_b32 v3, v7')
        a('  s_mov_b64 exec, -1')
        a.label(f'p1_skip1{sfx}')
        a('  s_waitcnt lgkmcnt(0)')
        a('  s_barrier')
        a(f'  v_mov_b32 v1, {TMP}')
        a('  ds_read2_b32 v[2:3], v1 offset0:0 offset1:1')
        a('  s_waitcnt lgkmcnt(0)')
        a('  v_readfirstlane_b32 s66, v2')
        a('  v_readfirstlane_b32 s67, v3')
        a('  ds_read2_b32 v[2:3], v1 offset0:2 offset1:3')
        a('  s_waitcnt lgkmcnt(0)')
        a('  v_readfirstlane_b32 s68, v2')
        a('  v_readfirstlane_b32 s69, v3')
        a('  s_nop 3')
        a('  s_add_u32 s70, s66, s67')
        a('  s_add_u32 s71, s70, s68')
        a('  s_add_u32 s72, s71, s69')
        a('  s_cmp_ge_u32 s24, 4')
        a(f'  s_cbranch_scc1 p1_skip2{sfx}')
        a('  s_mov_b32 s73, 0')
        a('  s_cmp_eq_u32 s24, 1')
        a('  s_cselect_b32 s73, s66, s73')
        a('  s_cmp_eq_u32 s24, 2')
        a('  s_cselect_b32 s73, s70, s73')
        a('  s_cmp_eq_u32 s24, 3')
        a('  s_cselect_b32 s73, s71, s73')
        a('  v_sub_u32 v7, v7, v6')
        a('  v_add_u32 v7, s73, v7')
        for k in range(NK):
            a(f'  v_add_u32 v{t[k]}, v7, v{t[k]}')
            a(f'  ds_write_b32 v4, v{t[k]} offset:{k*1024}')
        a('  v_lshl_or_b32 v5, v7, 13, v5')
        a(f'  s_mul_i32 s40, s2, {S*4}')
        if h: a(f'  s_add_u32 s40, s40, {h*4}')
        a(f'  s_mov_b32 s41, {cfg.NTT*4}')
        a('  v_mul_lo_u32 v6, v0, s41')
        a('  buffer_store_dword v5, v6, s[20:23], s40 offen')
        a.label(f'p1_skip2{sfx}')
        a('  s_waitcnt lgkmcnt(0)')
        a('  s_barrier')
        st()
        a('  v_mov_b32 v2, 1')
        a(f'  v_mov_b32 v1, {HIST}')
        a('  s_mov_b64 exec, s[44:45]')
        r0 = h * cfg.RPS * 4
        nrec = cfg.RPS * 4
        batches = [(b, min(8, nrec - b)) for b in range(0, nrec, 8)]
        def rank_issue(bi):
            b, n = batches[bi]
            base = (bi & 1) * 8
            for x in range(n):
                rec = r0 + b + x
                j, hh = rec >> 1, rec & 1
                ad = 4 + (x & 3)
                a(f'  v_add_u32_sdwa v{ad}, v1, v{AUX+j} dst_sel:DWORD dst_unused:UNUSED_PAD src0_sel:DWORD src1_sel:WORD_{hh}')
                a(f'  ds_add_rtn_u32 v{t[base+x]}, v{ad}, v2')
        def rank_pack(bi):
            b, n = batches[bi]
            base = (bi & 1) * 8
            for x in range(0, n, 2):
                j = (r0 + b + x) >> 1
                a(f'  v_lshl_or_b32 v{AUX+j}, v{t[base+x+1]}, 16, v{t[base+x]}')
        rank_issue(0)
        for bi in range(len(batches)):
            if bi + 1 < len(batches):
                rank_issue(bi + 1)
                a(f'  s_waitcnt lgkmcnt({batches[bi+1][1]})')
            else:
                a('  s_waitcnt lgkmcnt(0)')
            rank_pack(bi)
        a('  s_mov_b64 exec, -1')
        a(f'  s_mov_b32 s43, {cfg.SLICE}')
        a(f'  s_mov_b32 s41, {cfg.CBASE}')
        a('  s_mov_b32 s40, 0xaaab')
        a('  v_mul_u32_u24 v1, s40, v0')
        a('  v_lshrrev_b32 v1, 17, v1')
        a('  v_mul_u32_u24 v3, 3, v1')
        a('  v_sub_u32 v3, v0, v3')
        a(f'  v_lshlrev_b32 v{t[16]}, 5, v1')
        a(f'  v_lshl_add_u32 v{t[16]}, v3, 4, v{t[16]}')
        a(f'  v_lshlrev_b32 v{t[17]}, 4, v1')
        a(f'  v_add_u32 v{t[17]}, s41, v{t[17]}')
        a('  v_cmp_eq_u32 vcc, 2, v3')
        a(f'  v_mov_b32 v{t[19]}, {336*32}')
        a(f'  v_mov_b32 v1, {336*16}')
        a(f'  v_cndmask_b32 v{t[16]}, v{t[16]}, v{t[17]}, vcc')
        a(f'  v_cndmask_b32 v{t[17]}, v{t[19]}, v1, vcc')
        for s in range(cfg.NSL):
            a('  s_mov_b64 exec, s[44:45]')
            a(f'  s_mov_b32 s42, {s*cfg.SLICE}')
            for x in range(r0, r0 + nrec):
                j, hh = x >> 1, x & 1
                q = 4 + 2 * (x & 1); a0 = q + 1
                creg = W1 + 4 * (x >> 2) + 2 * ((x >> 1) & 1)
                a(f'  v_subrev_u32_sdwa v{q}, s42, v{AUX+j} dst_sel:DWORD dst_unused:UNUSED_PAD src0_sel:DWORD src1_sel:WORD_{hh}')
                a(f'  v_cmpx_gt_u32 vcc, s43, v{q}')
                a(f'  v_lshlrev_b32 v{a0}, 2, v{q}')
                a(f'  v_lshl_add_u32 v{q}, v{q}, 1, s41')
                a(f'  ds_write_b32 v{a0}, v{W0+x}')
                a(f'  ds_write_b16{"_d16_hi" if (x & 1) else ""} v{q}, v{creg}')
                a('  s_mov_b64 exec, s[44:45]')
            a('  s_mov_b64 exec, -1')
            a(f'  s_add_u32 s16, s28, {s*cfg.SLICE_BYTES}')
            a('  s_addc_u32 s17, s29, 0')
            a('  s_and_b32 s17, s17, 0xffff')
            last = (s == cfg.NSL - 1)
            if not last:
                a(f'  s_mov_b32 s18, {cfg.SLICE_BYTES}')
            else:
                a(f'  s_sub_u32 s18, s72, {s*cfg.SLICE}')
                a('  s_mul_i32 s18, s18, 6')
            a('  s_mov_b32 s19, 0x20000')
            a('  v_lshlrev_b32 v1, 4, v0')
            a(f'  v_mov_b32 v3, v{t[16]}')
            a('  s_waitcnt lgkmcnt(0)')
            a('  s_barrier')
            for half in range(2):
                for u in range(4):
                    a(f'  ds_read_b128 {vr(t[4*u],4)}, v3')
                    a(f'  v_add_u32 v3, v3, v{t[17]}')
                for u in range(4):
                    a(f'  s_waitcnt lgkmcnt({3-u})')
                    rnd = half * 4 + u
                    so = '0' if rnd == 0 else f's{CO+rnd}'
                    a(f'  buffer_store_dwordx4 {vr(t[4*u],4)}, v1, s[16:19], {so} offen{STF}')
                a('  s_nop 1')
            if not last:
                a('  s_barrier')
        st()
    if st.on:
        a('  s_waitcnt vmcnt(0)')
        st()
    st.flush('s24')
    a.label('p1_done')
    a('  s_endpgm')

class RegAlloc:
    def __init__(self, start):
        self.n = start
    def get(self, k=1, align=1):
        self.n = (self.n + align - 1) // align * align
        r = self.n; self.n += k
        return r

def gen_p2(a, opt, cfg):
    st = Stamps(a, bool(opt.get('stamp')), 'p2', 1); st.wave = opt.get('swave', 0)
    b_lag = opt.get('lag', 1)
    R = b_lag + 1
    NG = 8
    RNT = {0: '', 1: ' nt', 2: ' sc1', 3: ' sc0 sc1', 4: ' sc0 sc1 nt', 5: ' sc1 nt'}[opt.get('nt_rec', 0)]
    OTF = {0: '', 1: ' nt', 2: ' sc1', 3: ' sc0 sc1', 4: ' sc0'}[opt.get('out_st', 2)]
    se = opt.get('sync', 2)
    NSEG = 16 * cfg.S
    JPC = 32 // NSEG
    ra = RegAlloc(1)
    J4 = ra.get(); J8 = ra.get(); P = ra.get(); P7 = ra.get(); J2H = ra.get()
    VN = ra.get(); VB = ra.get(); VOFF8 = ra.get(); EE = ra.get()
    SELA = ra.get(); SELB = ra.get(); VDUM = ra.get(); COL = ra.get()
    D = [ra.get(2, 2), ra.get(2, 2)]
    PT = [ra.get(), ra.get()]; LA = [ra.get(), ra.get()]; GAD = [ra.get(), ra.get()]
    YR = [ra.get(), ra.get()]; AB = [ra.get(), ra.get()]
    X = [ra.get() for _ in range(6)]
    VROW4 = ra.get(); VLANE = ra.get()
    WD = ra.get(4, 2); WU = ra.get(4, 2)
    OFF = ra.get(5); MM = ra.get(10, 2)
    GG = ra.get(20, 2)
    HH = ra.get(10, 2)
    main0 = ra.n
    RW = [ra.get() for _ in range(R)]; RC = [ra.get() for _ in range(R)]
    VV = [ra.get() for _ in range(R)]
    CC = [ra.get() for _ in range(R)]
    ROW = [ra.get() for _ in range(R)]
    G = [ra.get(NG) for _ in range(R)]
    maxv = ra.n
    rp = RegAlloc(G[0])
    WSt = rp.get(2, 2); WRt = rp.get(2, 2); CEN = rp.get(2); DI = rp.get(5); RBp = rp.get(2, 2)
    assert rp.n <= G[0] + NG * R, (rp.n, G[0] + NG*R)
    HT = D[0]
    ra2 = RegAlloc(main0)
    Sg = ra2.get(8, 2); SF = ra2.get(4, 2); BT = ra2.get(4, 2); Y = ra2.get(4, 2); Z = ra2.get(4, 2)
    maxv = max(maxv, ra2.n)
    assert maxv <= 128, maxv
    a('.p2align 8')
    a('.type p2_kernel,@function')
    a.label('p2_kernel')
    a('  s_cmp_ge_u32 s2, 256')
    a('  s_cbranch_scc1 p2_done')
    a('  s_load_dwordx2 s[28:29], s[0:1], 104')
    a('  s_load_dwordx2 s[32:33], s[0:1], 0')
    a('  s_load_dwordx2 s[34:35], s[0:1], 24')
    a('  s_load_dwordx2 s[36:37], s[0:1], 40')
    a('  s_load_dwordx4 s[40:43], s[0:1], 56')
    a('  s_load_dwordx4 s[44:47], s[0:1], 72')
    a('  s_load_dwordx2 s[48:49], s[0:1], 88')
    a('  v_readfirstlane_b32 s24, v0')
    a(f'  v_and_b32 v{VLANE}, 63, v0')
    a(f'  v_and_b32 v{P}, 15, v0')
    a('  s_lshr_b32 s24, s24, 6')
    a(f'  v_lshrrev_b32 v{X[0]}, 1, v{VLANE}')
    a(f'  v_and_b32 v{X[1]}, {NSEG-1}, v{X[0]}')
    a(f'  s_mul_i32 s25, s2, {cfg.NTT}')
    a(f'  s_mul_i32 s26, s24, {NSEG}')
    a('  s_add_u32 s25, s25, s26')
    a('  s_lshl_b32 s25, s25, 2')
    a(f'  v_lshlrev_b32 v{X[2]}, 2, v{X[1]}')
    a(f'  v_lshrrev_b32 v{VROW4}, 4, v{VLANE}')
    a('  s_waitcnt lgkmcnt(0)')
    srd(a, 12, 28, cfg.TAB_BYTES)
    a(f'  buffer_load_dword v{VN}, v{X[2]}, s[12:15], s25 offen')
    st()
    srd(a, 4, 32, E * 32)
    srd(a, 20, 34, E * 2)
    npf = 0
    a(f'  v_lshlrev_b32 v{X[3]}, 1, v{P}')
    a(f'  v_lshl_add_u32 v{X[4]}, v{VROW4}, 7, v{X[3]}')
    WTMP = [YR[0], YR[1], AB[0], AB[1], PT[0], PT[1], LA[0], LA[1]]
    for q in range(4):
        a(f'  global_load_ushort v{WTMP[q]}, v{X[4]}, s[44:45] offset:{q*32}'); npf += 1
    for q in range(4):
        a(f'  global_load_ushort v{WTMP[4+q]}, v{X[4]}, s[46:47] offset:{q*32}'); npf += 1
    a(f'  v_lshl_add_u32 v{X[4]}, v{VROW4}, 5, v{X[3]}')
    WT2 = [GAD[0], GAD[1], COL, EE]
    for q in range(2):
        a(f'  global_load_ushort v{WT2[q]}, v{X[4]}, s[42:43] offset:{q*128}'); npf += 1
    for q in range(2):
        a(f'  global_load_ushort v{WT2[2+q]}, v{X[4]}, s[40:41] offset:{q*128}'); npf += 1
    a(f'  v_lshlrev_b32 v{X[4]}, 1, v{VROW4}')
    for q in range(2):
        a(f'  global_load_ushort v{CEN+q}, v{X[4]}, s[36:37] offset:{q*8}'); npf += 1
    a(f'  s_lshl_b32 s27, s2, 4')
    for u in range(5):
        a(f'  s_add_u32 s26, s24, {16*u}')
        a('  s_lshl_b32 s26, s26, 12')
        a('  s_add_u32 s26, s26, s27')
        a(f'  s_mov_b32 s{70+u}, s26')
        a(f'  v_add_u32 v{X[3]}, s26, v{P}')
        a(f'  v_lshlrev_b32 v{X[4]}, 1, v{X[3]}')
        a(f'  buffer_load_ushort v{DI+u}, v{X[4]}, s[20:23], 0 offen'); npf += 1
    for u in range(5):
        a(f'  v_add_u32 v{X[3]}, s{70+u}, v{P}')
        a(f'  v_lshlrev_b32 v{X[4]}, 5, v{X[3]}')
        a(f'  v_lshl_add_u32 v{OFF+u}, v{VROW4}, 3, v{X[4]}')
        a(f'  buffer_load_dwordx2 {vr(MM+2*u,2)}, v{OFF+u}, s[4:7], 0 offen'); npf += 1
    nm = 5
    if opt.get('warm', 0):
        a('  s_cmp_ge_u32 s24, 8')
        a('  s_cbranch_scc1 p2_nowarm')
        a('  s_lshr_b32 s26, s2, 3')
        a('  s_lshl_b32 s26, s26, 3')
        a('  s_add_u32 s26, s26, s24')
        a('  s_lshl_b32 s26, s26, 13')
        a(f'  v_lshlrev_b32 v{X[4]}, 7, v{VLANE}')
        a(f'  buffer_load_dword v{VDUM}, v{X[4]}, s[4:7], s26 offen')
        a.label('p2_nowarm')
    a(f'  s_add_u32 s8, s28, {cfg.REC_OFF}')
    a('  s_addc_u32 s9, s29, 0')
    a('  s_and_b32 s9, s9, 0xffff')
    a(f'  s_mov_b32 s10, {cfg.REC_BYTES}')
    a('  s_mov_b32 s11, 0x20000')
    srd(a, 16, 48, E * 32)
    a(f'  v_lshlrev_b32 v{X[3]}, 4, v0')
    for r in (D[0], D[0]+1, D[1], D[1]+1):
        a(f'  v_mov_b32 v{r}, 0')
    assert D[1] == D[0] + 2
    a(f'  v_add_u32 v{X[4]}, 0x10000, v{X[3]}')
    a(f'  v_add_u32 v{X[5]}, 0x20000, v{X[3]}')
    for i in range(4):
        a(f'  ds_write_b128 v{X[3]}, {vr(D[0],4)} offset:{i*16384}')
    for i in range(4):
        a(f'  ds_write_b128 v{X[4]}, {vr(D[0],4)} offset:{i*16384}')
    for i in range(2):
        a(f'  ds_write_b128 v{X[5]}, {vr(D[0],4)} offset:{i*16384}')
    a(f'  v_and_b32 v{P7}, 7, v0')
    a(f'  v_lshlrev_b32 v{J4}, 2, v{P7}')
    a(f'  v_lshlrev_b32 v{J8}, 3, v{P}')
    a(f'  v_lshlrev_b32 v{J2H}, 1, v{P7}')
    a(f'  v_cmp_gt_u32 vcc, 8, v{P}')
    a(f'  v_mov_b32 v{X[3]}, 0x03020c0c')
    a(f'  v_mov_b32 v{X[4]}, 0x05040c0c')
    a(f'  v_cndmask_b32 v{SELA}, v{X[3]}, v{X[4]}, vcc')
    a(f'  v_mov_b32 v{X[3]}, 0x07060c0c')
    a(f'  v_mov_b32 v{X[4]}, 0x01000c0c')
    a(f'  v_cndmask_b32 v{SELB}, v{X[3]}, v{X[4]}, vcc')
    a(f'  v_and_b32 v{VOFF8}, 1, v{VLANE}')
    a(f'  v_lshlrev_b32 v{VOFF8}, 3, v{VOFF8}')
    if JPC > 1:
        a(f'  v_lshrrev_b32 v{X[3]}, {1 + int(math.log2(NSEG))}, v{VLANE}')
        a(f'  v_lshl_add_u32 v{VOFF8}, v{X[3]}, 4, v{VOFF8}')
    a(f'  s_mul_i32 s26, s24, {NSEG}')
    a(f'  v_add_u32 v{X[0]}, s26, v{X[1]}')
    a(f'  s_mov_b32 s27, {cfg.TILE_BYTES}')
    a(f'  v_mul_lo_u32 v{X[0]}, v{X[0]}, s27')
    a('  s_mov_b32 s52, 0xfffffff0')
    a('  s_mov_b32 s53, 0xffff0000')
    a('  s_mov_b32 s54, 0x3ff80')
    a('  s_mov_b32 s55, 0xffffe0')
    a(f'  s_waitcnt vmcnt({npf})')
    if opt.get('pstamp'): st()
    a(f'  v_lshrrev_b32 v{VB}, 16, v{VN}')
    a(f'  v_and_b32 v{VN}, 0xffff, v{VN}')
    a(f'  v_mad_u32_u24 v{VB}, v{VB}, 48, v{X[0]}')
    a(f'  v_mov_b32 v{X[0]}, v{VN}')
    for sh in (1, 2, 4, 8):
        a('  s_nop 1')
        a(f'  v_max_u32_dpp v{X[0]}, v{X[0]}, v{X[0]} row_ror:{sh} row_mask:0xf bank_mask:0xf')
    a('  s_nop 1')
    for i, ln in enumerate((0, 16, 32, 48)):
        a(f'  v_readlane_b32 s{56+i}, v{X[0]}, {ln}')
    a('  s_nop 3')
    a('  s_max_u32 s56, s56, s57')
    a('  s_max_u32 s58, s58, s59')
    a('  s_max_u32 s50, s56, s58')
    a('  s_mov_b32 s51, 0')
    a('  s_mov_b32 s56, 0')
    a('  s_mov_b32 s64, 0')
    if se:
        a(f'  s_mov_b32 s69, {opt.get("nsync", 38 // se)}')
    a(f'  s_waitcnt vmcnt({nm})')
    if opt.get('pstamp'): st()
    a(f'  v_lshl_or_b32 v{WD}, v{WTMP[1]}, 16, v{WTMP[0]}')
    a(f'  v_lshl_or_b32 v{WD+1}, v{WTMP[3]}, 16, v{WTMP[2]}')
    a(f'  v_lshl_or_b32 v{WU}, v{WTMP[5]}, 16, v{WTMP[4]}')
    a(f'  v_lshl_or_b32 v{WU+1}, v{WTMP[7]}, 16, v{WTMP[6]}')
    a(f'  v_lshl_or_b32 v{WSt}, v{WT2[1]}, 16, v{WT2[0]}')
    a(f'  v_lshl_or_b32 v{WRt}, v{WT2[3]}, 16, v{WT2[2]}')
    a(f'  v_mov_b32 v{WD+2}, v{WD}')
    a(f'  v_mov_b32 v{WD+3}, v{WD+1}')
    a(f'  v_mov_b32 v{WU+2}, v{WU}')
    a(f'  v_mov_b32 v{WU+3}, v{WU+1}')
    a(f'  v_mov_b32 v{WSt+1}, 0')
    a(f'  v_mov_b32 v{WRt+1}, 0')
    a(f'  v_mov_b32 v{RBp+1}, 0')
    a(f'  v_lshlrev_b32 v{CEN}, 16, v{CEN}')
    a(f'  v_lshlrev_b32 v{CEN+1}, 16, v{CEN+1}')
    uid = [0]
    def stageA(b):
        u = uid[0]; uid[0] += 1
        a.label(f'p2_chk{u}')
        a('  s_cmp_lg_u32 s56, 0')
        a(f'  s_cbranch_scc1 p2_go{u}')
        a('  s_cmp_ge_u32 s51, s50')
        a(f'  s_cbranch_scc1 p2_exh{u}')
        a(f'  v_add_u32 v{X[0]}, s51, v{VOFF8}')
        a(f'  v_cmp_gt_u32 vcc, v{VN}, v{X[0]}')
        a(f'  v_sub_u32 v{X[1]}, v{VN}, v{X[0]}')
        a(f'  v_min_u32 v{X[1]}, 8, v{X[1]}')
        a(f'  v_mad_u32_u24 v{X[2]}, v{X[0]}, 6, v{VB}')
        a(f'  v_or_b32 v{X[2]}, v{X[2]}, v{X[1]}')
        a(f'  s_bcnt1_i32_b64 s67, vcc')
        a(f'  v_mbcnt_lo_u32_b32 v{X[3]}, vcc_lo, 0')
        a(f'  v_mbcnt_hi_u32_b32 v{X[3]}, vcc_hi, v{X[3]}')
        a(f'  v_sub_u32 v{X[4]}, v{VLANE}, v{X[3]}')
        a(f'  v_add_u32 v{X[4]}, s67, v{X[4]}')
        a(f'  v_cndmask_b32 v{X[4]}, v{X[4]}, v{X[3]}, vcc')
        a(f'  v_cndmask_b32 v{X[2]}, 0, v{X[2]}, vcc')
        a(f'  v_and_b32 v{X[5]}, 6, v{X[4]}')
        a(f'  v_lshlrev_b32 v{X[5]}, 5, v{X[5]}')
        a(f'  v_and_or_b32 v{X[5]}, v{X[4]}, -8, v{X[5]}')
        a(f'  v_and_b32 v{X[4]}, 1, v{X[4]}')
        a(f'  v_lshl_or_b32 v{X[5]}, v{X[4]}, 2, v{X[5]}')
        a(f'  ds_permute_b32 v{EE}, v{X[5]}, v{X[2]}')
        a('  s_add_u32 s56, s67, 7')
        a('  s_lshr_b32 s56, s56, 3')
        a('  s_add_u32 s64, s64, s56')
        a(f'  s_add_u32 s51, s51, {16*JPC}')
        a('  s_waitcnt lgkmcnt(0)')
        a(f'  s_branch p2_go{u}')
        a.label(f'p2_exh{u}')
        a(f'  v_mov_b32 v{EE}, 0')
        a('  s_mov_b32 s56, 1')
        a('  s_nop 0')
        a.label(f'p2_go{u}')
        a('  s_sub_u32 s56, s56, 1')
        a(f'  v_mov_b32_dpp v{X[0]}, v{EE} row_newbcast:0 row_mask:0xf bank_mask:0x3')
        a(f'  v_mov_b32_dpp v{X[0]}, v{EE} row_newbcast:1 row_mask:0xf bank_mask:0xc')
        a(f'  v_mov_b32_dpp v{EE}, v{EE} row_shl:2 row_mask:0xf bank_mask:0xf bound_ctrl:0')
        a(f'  v_and_b32 v{X[1]}, s52, v{X[0]}')
        a(f'  v_and_b32 v{VV[b]}, 15, v{X[0]}')
        a(f'  v_add_u32 v{X[0]}, v{X[1]}, v{J4}')
        a(f'  v_add_u32 v{X[1]}, v{X[1]}, v{J2H}')
        a(f'  buffer_load_dword v{RW[b]}, v{X[0]}, s[8:11], 0 offen{RNT}')
        a(f'  buffer_load_short_d16_hi v{RC[b]}, v{X[1]}, s[8:11], 0 offen offset:32{RNT}')
    def decode(b):
        a(f'  v_cmp_gt_u32 vcc, v{VV[b]}, v{P7}')
        a(f'  v_lshlrev_b32 v{X[2]}, 5, v{RW[b]}')
        a(f'  v_lshrrev_b32 v{X[3]}, 12, v{RW[b]}')
        a(f'  v_and_b32 v{CC[b]}, s53, v{RC[b]}')
        a(f'  v_and_b32 v{X[2]}, s55, v{X[2]}')
        a(f'  v_and_b32 v{X[3]}, s54, v{X[3]}')
        a(f'  v_cndmask_b32 v{COL}, 0, v{X[2]}, vcc')
        if opt.get('colmask'):
            a(f'  v_and_b32 v{COL}, {opt["colmask"]}, v{COL}')
        a(f'  v_cndmask_b32 v{ROW[b]}, v{VDUM}, v{X[3]}, vcc')
        a('  s_nop 0')
    def gather(b, g):
        ad = GAD[g & 1]
        a(f'  v_add_u32_dpp v{ad}, v{COL}, v{J4} row_newbcast:{2*g} row_mask:0xf bank_mask:0x3')
        a(f'  v_add_u32_dpp v{ad}, v{COL}, v{J4} row_newbcast:{2*g+1} row_mask:0xf bank_mask:0xc')
        a(f'  buffer_load_dword v{G[b]+g}, v{ad}, s[4:7], 0 offen')
    def consume(b, g):
        x = G[b] + g; y = YR[g & 1]
        a(f'  v_mov_b32_dpp v{y}, v{x} row_ror:8 row_mask:0xf bank_mask:0xf')
        a(f'  v_add_u32_dpp v{LA[0]}, v{ROW[b]}, v{J8} row_newbcast:{2*g} row_mask:0xf bank_mask:0xf')
        a(f'  v_add_u32_dpp v{LA[1]}, v{ROW[b]}, v{J8} row_newbcast:{2*g+1} row_mask:0xf bank_mask:0xf')
        a(f'  v_perm_b32 v{AB[0]}, v{x}, v{y}, v{SELA}')
        a(f'  v_perm_b32 v{AB[1]}, v{x}, v{y}, v{SELB}')
        a(f'  v_mul_f32_dpp v{PT[0]}, v{CC[b]}, v{AB[0]} row_newbcast:{2*g} row_mask:0xf bank_mask:0xf')
        a(f'  v_mul_f32_dpp v{PT[1]}, v{CC[b]}, v{AB[1]} row_newbcast:{2*g+1} row_mask:0xf bank_mask:0xf')
        a(f'  v_cvt_f64_f32 {vr(D[0],2)}, v{PT[0]}')
        a(f'  v_cvt_f64_f32 {vr(D[1],2)}, v{PT[1]}')
        if not opt.get('no_ds'):
            a(f'  ds_add_f64 v{LA[0]}, {vr(D[0],2)}')
            a(f'  ds_add_f64 v{LA[1]}, {vr(D[1],2)}')
    for t in range(-2*b_lag, -b_lag):
        stageA((t + 2*b_lag) % R)
    first = True
    for t in range(-b_lag, 0):
        stageA((t + 2*b_lag) % R)
        if first:
            first = False
            a('  s_mov_b32 s76, 0xc1200000')
            a('  s_mov_b32 s77, 0x3fb8aa3b')
            for u in range(5):
                a(f'  v_lshlrev_b32 v{X[1]}, 16, v{DI+u}')
                a(f'  v_sub_f32 v{X[2]}, v{X[1]}, v{CEN}')
                a(f'  v_sub_f32 v{X[3]}, v{X[1]}, v{CEN+1}')
                def rnd2():
                    a(f'  v_cvt_pk_bf16_f32 v{X[4]}, v{X[2]}, v{X[3]}')
                    a(f'  v_lshlrev_b32 v{X[2]}, 16, v{X[4]}')
                    a(f'  v_and_b32 v{X[3]}, s53, v{X[4]}')
                rnd2()
                a(f'  v_mul_f32 v{X[2]}, v{X[2]}, v{X[2]}')
                a(f'  v_mul_f32 v{X[3]}, v{X[3]}, v{X[3]}')
                rnd2()
                a(f'  v_mul_f32 v{X[2]}, s76, v{X[2]}')
                a(f'  v_mul_f32 v{X[3]}, s76, v{X[3]}')
                rnd2()
                a(f'  v_mul_f32 v{X[2]}, s77, v{X[2]}')
                a(f'  v_mul_f32 v{X[3]}, s77, v{X[3]}')
                a(f'  v_exp_f32 v{X[2]}, v{X[2]}')
                a(f'  v_exp_f32 v{X[3]}, v{X[3]}')
                a('  s_nop 0')
                a(f'  v_cvt_pk_bf16_f32 v{RBp}, v{X[2]}, v{X[3]}')
                a('  s_nop 1')
                a(f'  v_mfma_f32_16x16x16_bf16 {vr(GG+4*u,4)}, {vr(WSt,2)}, {vr(RBp,2)}, 0')
                a(f'  v_mfma_f32_16x16x16_bf16 {vr(HT,4)}, {vr(WRt,2)}, {vr(RBp,2)}, 0')
                a('  s_nop 7')
                a('  s_nop 1')
                a(f'  v_cvt_pk_bf16_f32 v{HH+2*u}, v{HT}, v{HT+1}')
                a(f'  v_cvt_pk_bf16_f32 v{HH+2*u+1}, v{HT+2}, v{HT+3}')
        if opt.get('pstamp') and t == -b_lag: st()
        a(f'  s_waitcnt vmcnt({2*b_lag + NG*(t + b_lag)})')
        if opt.get('pstamp') and t == -b_lag: st()
        if t == -b_lag:
            a(f'  v_mov_b32 v{VDUM}, {DUMMY_ROW*128}')
        decode((t + b_lag) % R)
        for g in range(NG):
            gather((t + b_lag) % R, g)
    a('  s_waitcnt lgkmcnt(0)')
    a('  s_barrier')
    st()
    a('  s_cmp_eq_u32 s64, 0')
    a('  s_cbranch_scc1 p2_loop_exit')
    a.label('p2_loop')
    U = R
    if se and se > R and se % R == 0:
        U = se
    for t in range(U):
        tb = t % R
        stageA((tb + 2*b_lag) % R)
        a(f'  s_waitcnt vmcnt({(NG+2)*b_lag})')
        decode((tb + b_lag) % R)
        for g in range(NG):
            gather((tb + b_lag) % R, g)
            a(f'  s_waitcnt vmcnt({(NG+2)*b_lag})')
            consume(tb, g)
        if se and (t % se) == se - 1:
            a('  s_cmp_eq_u32 s69, 0')
            a(f'  s_cbranch_scc1 p2_nosync{t}')
            a('  s_barrier')
            a('  s_sub_u32 s69, s69, 1')
            a.label(f'p2_nosync{t}')
        a('  s_sub_u32 s64, s64, 1')
        a('  s_cmp_eq_u32 s64, 0')
        if t < U - 1:
            a('  s_cbranch_scc1 p2_loop_exit')
        else:
            a('  s_cbranch_scc0 p2_loop')
    a.label('p2_loop_exit')
    if se:
        a.label('p2_owed')
        a('  s_cmp_eq_u32 s69, 0')
        a('  s_cbranch_scc1 p2_owed_done')
        a('  s_barrier')
        a('  s_sub_u32 s69, s69, 1')
        a('  s_branch p2_owed')
        a.label('p2_owed_done')
    st()
    a('  s_waitcnt vmcnt(0) lgkmcnt(0)')
    a('  s_barrier')
    st()
    def split4(src):
        a(f'  v_cvt_pk_bf16_f32 v{BT}, v{src}, v{src+1}')
        a(f'  v_cvt_pk_bf16_f32 v{BT+1}, v{src+2}, v{src+3}')
        a(f'  v_lshlrev_b32 v{X[0]}, 16, v{BT}')
        a(f'  v_and_b32 v{X[1]}, s53, v{BT}')
        a(f'  v_lshlrev_b32 v{X[2]}, 16, v{BT+1}')
        a(f'  v_and_b32 v{X[3]}, s53, v{BT+1}')
        for q in range(4):
            a(f'  v_sub_f32 v{X[q]}, v{src+q}, v{X[q]}')
        a(f'  v_cvt_pk_bf16_f32 v{BT+2}, v{X[0]}, v{X[1]}')
        a(f'  v_cvt_pk_bf16_f32 v{BT+3}, v{X[2]}, v{X[3]}')
        a('  s_nop 1')
    for u in range(5):
        a(f'  s_cmp_ge_u32 s{70+u}, {E}')
        a(f'  s_cbranch_scc1 p2_epi_skip{u}')
        a(f'  s_add_u32 s26, s24, {16*u}')
        a('  s_lshl_b32 s26, s26, 11')
        a(f'  v_lshlrev_b32 v{X[0]}, 7, v{P}')
        a(f'  v_lshl_add_u32 v{X[0]}, v{VROW4}, 4, v{X[0]}')
        a(f'  v_add_u32 v{X[0]}, s26, v{X[0]}')
        a(f'  ds_read_b128 {vr(Sg,4)}, v{X[0]}')
        a(f'  ds_read_b128 {vr(Sg+4,4)}, v{X[0]} offset:64')
        a('  s_waitcnt lgkmcnt(0)')
        order = [0, 2, 1, 3]
        for i in range(4):
            a(f'  v_cvt_f32_f64 v{SF+order[i]}, {vr(Sg+2*i,2)}')
        split4(SF)
        a(f'  v_mfma_f32_16x16x32_bf16 {vr(Y,4)}, {vr(WD,4)}, {vr(BT,4)}, 0')
        a('  s_nop 7')
        a('  s_nop 1')
        for q in range(4):
            a(f'  v_mul_f32 v{Y+q}, v{Y+q}, v{GG+4*u+q}')
        split4(Y)
        a(f'  v_mfma_f32_16x16x32_bf16 {vr(Z,4)}, {vr(WU,4)}, {vr(BT,4)}, 0')
        a(f'  v_lshlrev_b32 v{SF}, 16, v{HH+2*u}')
        a(f'  v_and_b32 v{SF+1}, s53, v{HH+2*u}')
        a(f'  v_lshlrev_b32 v{SF+2}, 16, v{HH+2*u+1}')
        a(f'  v_and_b32 v{SF+3}, s53, v{HH+2*u+1}')
        a(f'  v_lshlrev_b32 v{Y}, 16, v{MM+2*u}')
        a(f'  v_and_b32 v{Y+1}, s53, v{MM+2*u}')
        a(f'  v_lshlrev_b32 v{Y+2}, 16, v{MM+2*u+1}')
        a(f'  v_and_b32 v{Y+3}, s53, v{MM+2*u+1}')
        a('  s_nop 1')
        a(f'  v_cvt_pk_bf16_f32 v{X[0]}, v{Z}, v{Z+1}')
        a(f'  v_cvt_pk_bf16_f32 v{X[1]}, v{Z+2}, v{Z+3}')
        a(f'  v_lshlrev_b32 v{Z}, 16, v{X[0]}')
        a(f'  v_and_b32 v{Z+1}, s53, v{X[0]}')
        a(f'  v_lshlrev_b32 v{Z+2}, 16, v{X[1]}')
        a(f'  v_and_b32 v{Z+3}, s53, v{X[1]}')
        for q in range(4):
            a(f'  v_mul_f32 v{Z+q}, v{Z+q}, v{SF+q}')
        a(f'  v_cvt_pk_bf16_f32 v{X[0]}, v{Z}, v{Z+1}')
        a(f'  v_cvt_pk_bf16_f32 v{X[1]}, v{Z+2}, v{Z+3}')
        a(f'  v_lshlrev_b32 v{Z}, 16, v{X[0]}')
        a(f'  v_and_b32 v{Z+1}, s53, v{X[0]}')
        a(f'  v_lshlrev_b32 v{Z+2}, 16, v{X[1]}')
        a(f'  v_and_b32 v{Z+3}, s53, v{X[1]}')
        for q in range(4):
            a(f'  v_add_f32 v{Z+q}, v{Z+q}, v{Y+q}')
        a(f'  v_cvt_pk_bf16_f32 v{Z}, v{Z}, v{Z+1}')
        a(f'  v_cvt_pk_bf16_f32 v{Z+1}, v{Z+2}, v{Z+3}')
        a(f'  buffer_store_dwordx2 {vr(Z,2)}, v{OFF+u}, s[16:19], 0 offen{OTF}')
        a.label(f'p2_epi_skip{u}')
    if st.on:
        a('  s_waitcnt vmcnt(0)')
        st()
    st.flush('s24')
    a.label('p2_done')
    a('  s_endpgm')
    return maxv

def descriptor(a, name, vgpr, sgpr):
    a(f'.amdhsa_kernel {name}')
    a(f'  .amdhsa_next_free_vgpr {vgpr}')
    a(f'  .amdhsa_next_free_sgpr {sgpr}')
    a(f'  .amdhsa_accum_offset {(vgpr + 3) // 4 * 4}')
    a('  .amdhsa_group_segment_fixed_size 0')
    a('  .amdhsa_kernarg_size 112')
    a('  .amdhsa_user_sgpr_count 2')
    a('  .amdhsa_user_sgpr_kernarg_segment_ptr 1')
    a('  .amdhsa_system_sgpr_workgroup_id_x 1')
    a('  .amdhsa_float_denorm_mode_32 3')
    a('.end_amdhsa_kernel')

HEADER = '''; Kernarg layout (112 bytes, ptrs only, base s[0:1]):
; @launch kernel=p1_kernel grid=(256,1,1) block=(1024,1,1) lds=163840
; @launch kernel=p2_kernel grid=(256,1,1) block=(1024,1,1) lds=163840
.amdgcn_target "amdgcn-amd-amdhsa--gfx950"
.text
.globl p1_kernel
.globl p2_kernel
'''

def build(opt):
    cfg = Cfg(opt)
    a = Asm()
    a(HEADER.rstrip('\n'))
    gen_p1(a, opt, cfg)
    v2 = gen_p2(a, opt, cfg)
    a('.section .rodata,"a"')
    a('.p2align 6')
    ns = 102 if opt.get('stamp') else 80
    descriptor(a, 'p1_kernel', 128, ns)
    a('.p2align 6')
    descriptor(a, 'p2_kernel', v2, ns)
    return a.text()

if __name__ == '__main__':
    out = sys.argv[1] if len(sys.argv) > 1 else 'standalone__molecular_angular_gemnet__graph.s'
    opt = {}
    for kv in sys.argv[2:]:
        k, v = kv.split('=')
        opt[k] = int(v) if v.lstrip('-').isdigit() else v
    open(out, 'w').write(build(opt))
    print('wrote', out)
```

```python
import struct, sys, math

def f32bits(x):
    return struct.unpack('<I', struct.pack('<f', x))[0]
def bits2f(b):
    return struct.unpack('<f', struct.pack('<I', b))[0]

E = 320000
T = 10240000
NWG = 256
import os
KSH = int(os.environ.get('KSH', 14))
NK = (E + (1 << KSH) - 1) >> KSH
HIST = 131072
TMP = HIST + NK * 1024
DUMMY_ROW = 1264

class Cfg:
    def __init__(self, opt):
        self.S = 1
        self.NTT = NWG
        self.SUB = 40000
        self.RPS = 10
        self.SLICE = 21504
        self.CBASE = self.SLICE * 4
        self.SLICE_BYTES = self.SLICE * 6
        maxpad = self.SUB + 256 * 7
        assert maxpad <= 2 * self.SLICE and self.SUB > self.SLICE
        self.TILE_BYTES = (maxpad * 6 + 127) // 128 * 128
        self.TAB_BYTES = 256 * self.NTT * 4
        self.REC_OFF = self.TAB_BYTES
        self.REC_BYTES = self.NTT * self.TILE_BYTES
        self.NSL = 2

class Asm:
    def __init__(self):
        self.lines = []
    def __call__(self, s=''):
        for l in s.split('\n'):
            self.lines.append(l)
    def label(self, s):
        self.lines.append(s + ':')
    def text(self):
        return '\n'.join(self.lines) + '\n'

def vr(a, n=1):
    return f'v{a}' if n == 1 else f'v[{a}:{a+n-1}]'

def srd(a, d, ptr, size):
    a(f'  s_mov_b32 s{d}, s{ptr}')
    a(f'  s_and_b32 s{d+1}, s{ptr+1}, 0xffff')
    a(f'  s_mov_b32 s{d+2}, {size}')
    a(f'  s_mov_b32 s{d+3}, 0x20000')

class Stamps:
    def __init__(self, a, on, name, slot):
        self.a = a; self.on = on; self.n = 0; self.name = name; self.slot = slot; self.wave = 0
    def __call__(self):
        if not self.on: return
        a = self.a
        a('  s_memtime s[80:81]')
        a('  s_memrealtime s[82:83]')
        a('  s_waitcnt lgkmcnt(0)')
        a(f'  s_mov_b32 s{84+2*self.n}, s80')
        a(f'  s_mov_b32 s{85+2*self.n}, s82')
        self.n += 1
        assert self.n <= 9
    def flush(self, wavereg):
        if not self.on: return
        a = self.a
        a(f'  s_cmp_lg_u32 {wavereg}, {self.wave}')
        a(f'  s_cbranch_scc1 {self.name}_nostamp')
        a('  s_load_dwordx2 s[80:81], s[0:1], 104')
        a('  s_waitcnt lgkmcnt(0)')
        a(f'  s_add_u32 s80, s80, {200*1048576 + self.slot*65536}')
        a('  s_addc_u32 s81, s81, 0')
        a('  s_lshl_b32 s82, s2, 7')
        a('  v_mov_b32 v1, s82')
        for i in range(2*self.n):
            a(f'  v_mov_b32 v2, s{84+i}')
            a(f'  global_store_dword v1, v2, s[80:81] offset:{4*i}')
        a.label(f'{self.name}_nostamp')

def gen_p1(a, opt, cfg):
    st = Stamps(a, bool(opt.get('stamp')), 'p1', 0)
    NTF = ' nt' if opt.get('nt_in', 1) else ''
    STF = {0: '', 1: ' nt', 2: ' sc1', 3: ' sc0 sc1', 4: ' sc0'}[opt.get('nt_st', 2)]
    S = cfg.S
    W0, W1, AUX = 8, 48, 88
    CO = 32
    t = [108 + i for i in range(20)]
    inv2pi = 1.0 / (2.0 * math.pi)
    chi_bits = f32bits(inv2pi) & 0xffffff00
    clo_bits = f32bits(inv2pi - bits2f(chi_bits))
    a('.p2align 8')
    a('.type p1_kernel,@function')
    a.label('p1_kernel')
    a('  s_cmp_ge_u32 s2, 256')
    a('  s_cbranch_scc1 p1_done')
    a('  s_load_dwordx4 s[32:35], s[0:1], 8')
    a('  s_load_dwordx2 s[36:37], s[0:1], 32')
    a('  s_load_dwordx2 s[38:39], s[0:1], 48')
    a('  s_load_dwordx2 s[28:29], s[0:1], 104')
    a('  s_load_dwordx2 s[74:75], s[0:1], 0')
    a('  v_lshlrev_b32 v1, 4, v0')
    a(f'  v_add_u32 v2, {HIST}, v1')
    for r in range(4, 8):
        a(f'  v_mov_b32 v{r}, 0')
    a('  ds_write_b128 v2, v[4:7]')
    a('  ds_write_b128 v2, v[4:7] offset:16384')
    a('  s_mul_i32 s40, s2, 160000')
    a('  s_mul_i32 s41, s2, 80000')
    a('  v_add_u32 v1, s40, v1')
    a('  v_lshlrev_b32 v3, 3, v0')
    a('  v_add_u32 v3, s41, v3')
    a('  v_readfirstlane_b32 s24, v0')
    a('  v_cmp_gt_u32 vcc, 1000, v0')
    a('  s_lshr_b32 s24, s24, 6')
    a('  s_mov_b64 s[44:45], vcc')
    for i in range(1, 10):
        a(f'  s_mov_b32 s{45+i}, {i*16000}')
        a(f'  s_mov_b32 s{55+i}, {i*8000}')
    a('  s_waitcnt lgkmcnt(0)')
    a('  s_load_dword s26, s[38:39], 0')
    srd(a, 4, 32, T * 4)
    srd(a, 8, 34, T * 4)
    srd(a, 12, 36, T * 2)
    st()
    a('  s_mov_b64 exec, s[44:45]')
    def issue_round(i):
        so = '0' if i == 0 else f's{45+i}'
        sa = '0' if i == 0 else f's{55+i}'
        a(f'  buffer_load_dwordx4 {vr(W0+4*i,4)}, v1, s[4:7], {so} offen{NTF}')
        a(f'  buffer_load_dwordx4 {vr(W1+4*i,4)}, v1, s[8:11], {so} offen{NTF}')
        a(f'  buffer_load_dwordx2 {vr(AUX+2*i,2)}, v3, s[12:15], {sa} offen{NTF}')
    AHEAD = opt.get('ahead', 2)
    for i in range(AHEAD):
        issue_round(i)
    issued = AHEAD
    a('  s_mov_b32 s27, 0xffff0000')
    a(f'  s_mov_b32 s30, {chi_bits:#x}')
    a(f'  s_mov_b32 s31, {clo_bits:#x}')
    a(f'  s_mov_b32 s42, {HIST}')
    a('  s_mov_b32 s43, 0x3fc')
    a('  v_mov_b32 v2, 1')
    srd(a, 20, 28, cfg.TAB_BYTES)
    srd(a, 76, 74, E * 32)
    a(f'  s_mul_i32 s40, s2, {S * cfg.TILE_BYTES}')
    a('  s_add_u32 s28, s28, s40')
    a('  s_addc_u32 s29, s29, 0')
    a(f'  s_add_u32 s28, s28, {cfg.REC_OFF}')
    a('  s_addc_u32 s29, s29, 0')
    a('  s_waitcnt lgkmcnt(0)')
    a('  s_and_b32 s26, s26, 0xffff')
    a('  s_lshl_b32 s26, s26, 16')
    a('  s_barrier')
    for i in range(1, 8):
        a(f'  s_mov_b32 s{CO+i}, {i*16128}')
    stores_done = 0
    for h in range(S):
        sfx = f'_{h}'
        if h > 0:
            a('  v_mov_b32 v2, 1')
            a(f'  s_mov_b32 s42, {HIST}')
            a('  s_mov_b32 s43, 0x3fc')
            a('  s_mov_b64 exec, s[44:45]')
        for i in range(h * cfg.RPS, (h + 1) * cfg.RPS):
            A = [W0 + 4*i + e for e in range(4)]
            O = [W1 + 4*i + e for e in range(4)]
            G = [AUX + 2*i, AUX + 2*i + 1]
            a(f'  s_waitcnt vmcnt({3*(issued - 1 - i) + stores_done})')
            if issued < 10:
                issue_round(issued); issued += 1
            a(f'  v_lshlrev_b32 v{t[0]}, 16, v{G[0]}')
            a(f'  v_and_b32 v{t[1]}, s27, v{G[0]}')
            a(f'  v_lshlrev_b32 v{t[2]}, 16, v{G[1]}')
            a(f'  v_and_b32 v{t[3]}, s27, v{G[1]}')
            for e in range(4):
                a(f'  v_mul_f32 v{t[e]}, s26, v{t[e]}')
            a(f'  v_cvt_pk_bf16_f32 v{t[4]}, v{t[0]}, v{t[1]}')
            a(f'  v_cvt_pk_bf16_f32 v{t[5]}, v{t[2]}, v{t[3]}')
            for e in range(4):
                a(f'  v_lshrrev_b32 v{t[8+e]}, 8, v{O[e]}')
            a(f'  v_lshlrev_b32 v{t[0]}, 16, v{t[4]}')
            a(f'  v_and_b32 v{t[1]}, s27, v{t[4]}')
            a(f'  v_lshlrev_b32 v{t[2]}, 16, v{t[5]}')
            a(f'  v_and_b32 v{t[3]}, s27, v{t[5]}')
            for e in range(4):
                a(f'  v_bfi_b32 v{t[8+e]}, 15, v{O[e]}, v{t[8+e]}')
            for e in range(4):
                a(f'  v_mul_f32 v{t[4+e]}, s30, v{t[e]}')
            for e in range(4):
                a(f'  v_fract_f32 v{t[4+e]}, v{t[4+e]}')
            for e in range(4):
                a(f'  v_fma_f32 v{t[4+e]}, v{t[e]}, s31, v{t[4+e]}')
            for e in range(4):
                a(f'  v_cos_f32 v{t[4+e]}, v{t[4+e]}')
            for e in range(4):
                a(f'  v_lshrrev_b32 v{t[12+e]}, 2, v{O[e]}')
            for e in range(4):
                a(f'  v_lshrrev_b32 v{t[e]}, {KSH}, v{A[e]}')
            for e in range(4):
                a(f'  v_and_b32 v{t[12+e]}, s43, v{t[12+e]}')
            for e in range(4):
                a(f'  v_lshl_or_b32 v{t[12+e]}, v{t[e]}, 10, v{t[12+e]}')
            a(f'  v_cvt_pk_bf16_f32 v{t[16]}, v{t[4]}, v{t[5]}')
            a(f'  v_cvt_pk_bf16_f32 v{t[17]}, v{t[6]}, v{t[7]}')
            for e in range(4):
                a(f'  v_add_u32 v{t[e]}, s42, v{t[12+e]}')
            for e in range(4):
                a(f'  ds_add_u32 v{t[e]}, v2')
            for e in range(4):
                a(f'  v_lshl_or_b32 v{A[e]}, v{t[8+e]}, 19, v{A[e]}')
            a(f'  v_mov_b32 v{O[0]}, v{t[16]}')
            a(f'  v_mov_b32 v{O[2]}, v{t[17]}')
            a(f'  v_lshl_or_b32 v{G[0]}, v{t[13]}, 16, v{t[12]}')
            a(f'  v_lshl_or_b32 v{G[1]}, v{t[15]}, 16, v{t[14]}')
        a('  s_mov_b64 exec, -1')
        a('  s_waitcnt lgkmcnt(0)')
        a('  s_barrier')
        st()
        if h == S - 1 and opt.get('mpf1', 1):
            a('  s_sub_u32 s40, s24, 4')
            a('  s_cmp_ge_u32 s40, 5')
            a('  s_cbranch_scc1 p1_nopf')
            a('  s_mul_i32 s41, s2, 40000')
            a('  s_and_b32 s41, s41, 0xffffff80')
            a('  v_subrev_u32 v5, 256, v0')
            a('  v_lshlrev_b32 v5, 7, v5')
            a(f'  buffer_load_dword v{W1+1}, v5, s[76:79], s41 offen')
            a.label('p1_nopf')
        a('  v_lshlrev_b32 v4, 2, v0')
        a(f'  v_add_u32 v4, {HIST}, v4')
        a('  s_cmp_ge_u32 s24, 4')
        a(f'  s_cbranch_scc1 p1_skip1{sfx}')
        for k in range(NK):
            a(f'  ds_read_b32 v{t[k]}, v4 offset:{k*1024}')
        a('  v_mov_b32 v5, 0')
        a('  s_waitcnt lgkmcnt(0)')
        ra, rb = 5, 6
        for k in range(NK):
            a(f'  v_add_u32 v{rb}, v{ra}, v{t[k]}')
            a(f'  v_mov_b32 v{t[k]}, v{ra}')
            ra, rb = rb, ra
        assert ra == 5
        a('  v_add_u32 v6, 7, v5')
        a('  v_and_b32 v6, -8, v6')
        a('  v_mov_b32 v7, v6')
        for sh in (1, 2, 4, 8):
            a('  s_nop 1')
            a(f'  v_add_u32_dpp v7, v7, v7 row_shr:{sh} row_mask:0xf bank_mask:0xf bound_ctrl:0')
        a('  s_nop 1')
        a('  v_add_u32_dpp v7, v7, v7 row_bcast:15 row_mask:0xa bank_mask:0xf')
        a('  s_nop 1')
        a('  v_add_u32_dpp v7, v7, v7 row_bcast:31 row_mask:0xc bank_mask:0xf')
        a('  s_lshl_b32 s40, s24, 2')
        a(f'  s_add_u32 s40, s40, {TMP}')
        a('  v_mov_b32 v3, s40')
        a('  s_mov_b32 exec_lo, 0')
        a('  s_mov_b32 exec_hi, 0x80000000')
        a('  ds_write_b32 v3, v7')
        a('  s_mov_b64 exec, -1')
        a.label(f'p1_skip1{sfx}')
        a('  s_waitcnt lgkmcnt(0)')
        a('  s_barrier')
        a(f'  v_mov_b32 v1, {TMP}')
        a('  ds_read2_b32 v[2:3], v1 offset0:0 offset1:1')
        a('  s_waitcnt lgkmcnt(0)')
        a('  v_readfirstlane_b32 s66, v2')
        a('  v_readfirstlane_b32 s67, v3')
        a('  ds_read2_b32 v[2:3], v1 offset0:2 offset1:3')
        a('  s_waitcnt lgkmcnt(0)')
        a('  v_readfirstlane_b32 s68, v2')
        a('  v_readfirstlane_b32 s69, v3')
        a('  s_nop 3')
        a('  s_add_u32 s70, s66, s67')
        a('  s_add_u32 s71, s70, s68')
        a('  s_add_u32 s72, s71, s69')
        a('  s_cmp_ge_u32 s24, 4')
        a(f'  s_cbranch_scc1 p1_skip2{sfx}')
        a('  s_mov_b32 s73, 0')
        a('  s_cmp_eq_u32 s24, 1')
        a('  s_cselect_b32 s73, s66, s73')
        a('  s_cmp_eq_u32 s24, 2')
        a('  s_cselect_b32 s73, s70, s73')
        a('  s_cmp_eq_u32 s24, 3')
        a('  s_cselect_b32 s73, s71, s73')
        a('  v_sub_u32 v7, v7, v6')
        a('  v_add_u32 v7, s73, v7')
        for k in range(NK):
            a(f'  v_add_u32 v{t[k]}, v7, v{t[k]}')
            a(f'  ds_write_b32 v4, v{t[k]} offset:{k*1024}')
        a('  v_lshl_or_b32 v5, v7, 13, v5')
        a(f'  s_mul_i32 s40, s2, {S*4}')
        if h: a(f'  s_add_u32 s40, s40, {h*4}')
        a(f'  s_mov_b32 s41, {cfg.NTT*4}')
        a('  v_mul_lo_u32 v6, v0, s41')
        a('  buffer_store_dword v5, v6, s[20:23], s40 offen')
        a.label(f'p1_skip2{sfx}')
        a('  s_waitcnt lgkmcnt(0)')
        a('  s_barrier')
        st()
        a('  v_mov_b32 v2, 1')
        a(f'  v_mov_b32 v1, {HIST}')
        a('  s_mov_b64 exec, s[44:45]')
        r0 = h * cfg.RPS * 4
        nrec = cfg.RPS * 4
        batches = [(b, min(8, nrec - b)) for b in range(0, nrec, 8)]
        def rank_issue(bi):
            b, n = batches[bi]
            base = (bi & 1) * 8
            for x in range(n):
                rec = r0 + b + x
                j, hh = rec >> 1, rec & 1
                ad = 4 + (x & 3)
                a(f'  v_add_u32_sdwa v{ad}, v1, v{AUX+j} dst_sel:DWORD dst_unused:UNUSED_PAD src0_sel:DWORD src1_sel:WORD_{hh}')
                a(f'  ds_add_rtn_u32 v{t[base+x]}, v{ad}, v2')
        def rank_pack(bi):
            b, n = batches[bi]
            base = (bi & 1) * 8
            for x in range(0, n, 2):
                j = (r0 + b + x) >> 1
                a(f'  v_lshl_or_b32 v{AUX+j}, v{t[base+x+1]}, 16, v{t[base+x]}')
        rank_issue(0)
        for bi in range(len(batches)):
            if bi + 1 < len(batches):
                rank_issue(bi + 1)
                a(f'  s_waitcnt lgkmcnt({batches[bi+1][1]})')
            else:
                a('  s_waitcnt lgkmcnt(0)')
            rank_pack(bi)
        if opt.get('p1stamp'): st()
        a('  s_mov_b64 exec, -1')
        a(f'  s_mov_b32 s43, {cfg.SLICE}')
        a(f'  s_mov_b32 s41, {cfg.CBASE}')
        a('  s_mov_b32 s40, 0xaaab')
        a('  v_mul_u32_u24 v1, s40, v0')
        a('  v_lshrrev_b32 v1, 17, v1')
        a('  v_mul_u32_u24 v3, 3, v1')
        a('  v_sub_u32 v3, v0, v3')
        a(f'  v_lshlrev_b32 v{t[16]}, 5, v1')
        a(f'  v_lshl_add_u32 v{t[16]}, v3, 4, v{t[16]}')
        a(f'  v_lshlrev_b32 v{t[17]}, 4, v1')
        a(f'  v_add_u32 v{t[17]}, s41, v{t[17]}')
        a('  v_cmp_eq_u32 vcc, 2, v3')
        a(f'  v_mov_b32 v{t[19]}, {336*32}')
        a(f'  v_mov_b32 v1, {336*16}')
        a(f'  v_cndmask_b32 v{t[16]}, v{t[16]}, v{t[17]}, vcc')
        a(f'  v_cndmask_b32 v{t[17]}, v{t[19]}, v1, vcc')
        for s in range(cfg.NSL):
            a('  s_mov_b64 exec, s[44:45]')
            a(f'  s_mov_b32 s42, {s*cfg.SLICE}')
            for x in range(r0, r0 + nrec):
                j, hh = x >> 1, x & 1
                q = 4 + 2 * (x & 1); a0 = q + 1
                creg = W1 + 4 * (x >> 2) + 2 * ((x >> 1) & 1)
                a(f'  v_subrev_u32_sdwa v{q}, s42, v{AUX+j} dst_sel:DWORD dst_unused:UNUSED_PAD src0_sel:DWORD src1_sel:WORD_{hh}')
                a(f'  v_cmpx_gt_u32 vcc, s43, v{q}')
                a(f'  v_lshlrev_b32 v{a0}, 2, v{q}')
                a(f'  v_lshl_add_u32 v{q}, v{q}, 1, s41')
                a(f'  ds_write_b32 v{a0}, v{W0+x}')
                a(f'  ds_write_b16{"_d16_hi" if (x & 1) else ""} v{q}, v{creg}')
                a('  s_mov_b64 exec, s[44:45]')
            a('  s_mov_b64 exec, -1')
            a(f'  s_add_u32 s16, s28, {s*cfg.SLICE_BYTES}')
            a('  s_addc_u32 s17, s29, 0')
            a('  s_and_b32 s17, s17, 0xffff')
            last = (s == cfg.NSL - 1)
            if not last:
                a(f'  s_mov_b32 s18, {cfg.SLICE_BYTES}')
            else:
                a(f'  s_sub_u32 s18, s72, {s*cfg.SLICE}')
                a('  s_mul_i32 s18, s18, 6')
            a('  s_mov_b32 s19, 0x20000')
            a('  v_lshlrev_b32 v1, 4, v0')
            a(f'  v_mov_b32 v3, v{t[16]}')
            a('  s_waitcnt lgkmcnt(0)')
            if opt.get('p1stamp'): st()
            a('  s_barrier')
            for half in range(2):
                for u in range(4):
                    a(f'  ds_read_b128 {vr(t[4*u],4)}, v3')
                    a(f'  v_add_u32 v3, v3, v{t[17]}')
                for u in range(4):
                    a(f'  s_waitcnt lgkmcnt({3-u})')
                    rnd = half * 4 + u
                    so = '0' if rnd == 0 else f's{CO+rnd}'
                    a(f'  buffer_store_dwordx4 {vr(t[4*u],4)}, v1, s[16:19], {so} offen{STF}')
                a('  s_nop 1')
            if not last:
                a('  s_barrier')
                if opt.get('p1stamp'): st()
        st()
    if st.on:
        a('  s_waitcnt vmcnt(0)')
        st()
    st.flush('s24')
    a.label('p1_done')
    a('  s_endpgm')

class RegAlloc:
    def __init__(self, start):
        self.n = start
    def get(self, k=1, align=1):
        self.n = (self.n + align - 1) // align * align
        r = self.n; self.n += k
        return r

def gen_p2(a, opt, cfg):
    st = Stamps(a, bool(opt.get('stamp')), 'p2', 1); st.wave = opt.get('swave', 0)
    b_lag = opt.get('lag', 1)
    R = b_lag + 1
    NG = 8
    RNT = {0: '', 1: ' nt', 2: ' sc1', 3: ' sc0 sc1', 4: ' sc0 sc1 nt', 5: ' sc1 nt'}[opt.get('nt_rec', 0)]
    OTF = {0: '', 1: ' nt', 2: ' sc1', 3: ' sc0 sc1', 4: ' sc0'}[opt.get('out_st', 2)]
    se = opt.get('sync', 2)
    NSEG = 16 * cfg.S
    JPC = 32 // NSEG
    ra = RegAlloc(1)
    J4 = ra.get(); J8 = ra.get(); P = ra.get(); P7 = ra.get(); J2H = ra.get()
    VN = ra.get(); VB = ra.get(); VOFF8 = ra.get(); EE = ra.get()
    SELA = ra.get(); SELB = ra.get(); VDUM = ra.get(); COL = ra.get()
    D = [ra.get(2, 2), ra.get(2, 2)]
    PT = [ra.get(), ra.get()]; LA = [ra.get(), ra.get()]; GAD = [ra.get(), ra.get()]
    YR = [ra.get(), ra.get()]; AB = [ra.get(), ra.get()]
    X = [ra.get() for _ in range(6)]
    VROW4 = ra.get(); VLANE = ra.get()
    WD = ra.get(4, 2); WU = ra.get(4, 2)
    OFF = ra.get(5); MM = ra.get(10, 2)
    GG = ra.get(20, 2)
    HH = ra.get(10, 2)
    main0 = ra.n
    RW = [ra.get() for _ in range(R)]; RC = [ra.get() for _ in range(R)]
    VV = [ra.get() for _ in range(R)]
    CC = [ra.get() for _ in range(R)]
    ROW = [ra.get() for _ in range(R)]
    G = [ra.get(NG) for _ in range(R)]
    maxv = ra.n
    rp = RegAlloc(G[0])
    WSt = rp.get(2, 2); WRt = rp.get(2, 2); CEN = rp.get(2); DI = rp.get(5); RBp = rp.get(2, 2)
    assert rp.n <= G[0] + NG * R, (rp.n, G[0] + NG*R)
    HT = D[0]
    ra2 = RegAlloc(main0)
    Sg = ra2.get(8, 2); SF = ra2.get(4, 2); BT = ra2.get(4, 2); Y = ra2.get(4, 2); Z = ra2.get(4, 2)
    maxv = max(maxv, ra2.n)
    assert maxv <= 128, maxv
    a('.p2align 8')
    a('.type p2_kernel,@function')
    a.label('p2_kernel')
    a('  s_cmp_ge_u32 s2, 256')
    a('  s_cbranch_scc1 p2_done')
    a('  s_load_dwordx2 s[28:29], s[0:1], 104')
    a('  s_load_dwordx2 s[32:33], s[0:1], 0')
    a('  s_load_dwordx2 s[34:35], s[0:1], 24')
    a('  s_load_dwordx2 s[36:37], s[0:1], 40')
    a('  s_load_dwordx4 s[40:43], s[0:1], 56')
    a('  s_load_dwordx4 s[44:47], s[0:1], 72')
    a('  s_load_dwordx2 s[48:49], s[0:1], 88')
    a('  v_readfirstlane_b32 s24, v0')
    a(f'  v_and_b32 v{VLANE}, 63, v0')
    a(f'  v_and_b32 v{P}, 15, v0')
    a('  s_lshr_b32 s24, s24, 6')
    a(f'  v_lshrrev_b32 v{X[0]}, 1, v{VLANE}')
    a(f'  v_and_b32 v{X[1]}, {NSEG-1}, v{X[0]}')
    a(f'  s_mul_i32 s25, s2, {cfg.NTT}')
    a(f'  s_mul_i32 s26, s24, {NSEG}')
    a('  s_add_u32 s25, s25, s26')
    a('  s_lshl_b32 s25, s25, 2')
    a(f'  v_lshlrev_b32 v{X[2]}, 2, v{X[1]}')
    a(f'  v_lshrrev_b32 v{VROW4}, 4, v{VLANE}')
    a('  s_waitcnt lgkmcnt(0)')
    srd(a, 12, 28, cfg.TAB_BYTES)
    a(f'  buffer_load_dword v{VN}, v{X[2]}, s[12:15], s25 offen')
    st()
    srd(a, 4, 32, E * 32)
    srd(a, 20, 34, E * 2)
    npf = 0
    a(f'  v_lshlrev_b32 v{X[3]}, 1, v{P}')
    a(f'  v_lshl_add_u32 v{X[4]}, v{VROW4}, 7, v{X[3]}')
    WTMP = [YR[0], YR[1], AB[0], AB[1], PT[0], PT[1], LA[0], LA[1]]
    for q in range(4):
        a(f'  global_load_ushort v{WTMP[q]}, v{X[4]}, s[44:45] offset:{q*32}'); npf += 1
    for q in range(4):
        a(f'  global_load_ushort v{WTMP[4+q]}, v{X[4]}, s[46:47] offset:{q*32}'); npf += 1
    a(f'  v_lshl_add_u32 v{X[4]}, v{VROW4}, 5, v{X[3]}')
    WT2 = [GAD[0], GAD[1], COL, EE]
    for q in range(2):
        a(f'  global_load_ushort v{WT2[q]}, v{X[4]}, s[42:43] offset:{q*128}'); npf += 1
    for q in range(2):
        a(f'  global_load_ushort v{WT2[2+q]}, v{X[4]}, s[40:41] offset:{q*128}'); npf += 1
    a(f'  v_lshlrev_b32 v{X[4]}, 1, v{VROW4}')
    for q in range(2):
        a(f'  global_load_ushort v{CEN+q}, v{X[4]}, s[36:37] offset:{q*8}'); npf += 1
    a(f'  s_lshl_b32 s27, s2, 4')
    for u in range(5):
        a(f'  s_add_u32 s26, s24, {16*u}')
        a('  s_lshl_b32 s26, s26, 12')
        a('  s_add_u32 s26, s26, s27')
        a(f'  s_mov_b32 s{70+u}, s26')
        a(f'  v_add_u32 v{X[3]}, s26, v{P}')
        a(f'  v_lshlrev_b32 v{X[4]}, 1, v{X[3]}')
        a(f'  buffer_load_ushort v{DI+u}, v{X[4]}, s[20:23], 0 offen'); npf += 1
    for u in range(5):
        a(f'  v_add_u32 v{X[3]}, s{70+u}, v{P}')
        a(f'  v_lshlrev_b32 v{X[4]}, 5, v{X[3]}')
        a(f'  v_lshl_add_u32 v{OFF+u}, v{VROW4}, 3, v{X[4]}')
        a(f'  buffer_load_dwordx2 {vr(MM+2*u,2)}, v{OFF+u}, s[4:7], 0 offen'); npf += 1
    nm = 5
    if opt.get('warm', 0):
        a('  s_cmp_ge_u32 s24, 8')
        a('  s_cbranch_scc1 p2_nowarm')
        a('  s_lshr_b32 s26, s2, 3')
        a('  s_lshl_b32 s26, s26, 3')
        a('  s_add_u32 s26, s26, s24')
        a('  s_lshl_b32 s26, s26, 13')
        a(f'  v_lshlrev_b32 v{X[4]}, 7, v{VLANE}')
        a(f'  buffer_load_dword v{VDUM}, v{X[4]}, s[4:7], s26 offen')
        a.label('p2_nowarm')
    a(f'  s_add_u32 s8, s28, {cfg.REC_OFF}')
    a('  s_addc_u32 s9, s29, 0')
    a('  s_and_b32 s9, s9, 0xffff')
    a(f'  s_mov_b32 s10, {cfg.REC_BYTES}')
    a('  s_mov_b32 s11, 0x20000')
    srd(a, 16, 48, E * 32)
    a(f'  v_lshlrev_b32 v{X[3]}, 4, v0')
    for r in (D[0], D[0]+1, D[1], D[1]+1):
        a(f'  v_mov_b32 v{r}, 0')
    assert D[1] == D[0] + 2
    a(f'  v_add_u32 v{X[4]}, 0x10000, v{X[3]}')
    a(f'  v_add_u32 v{X[5]}, 0x20000, v{X[3]}')
    for i in range(4):
        a(f'  ds_write_b128 v{X[3]}, {vr(D[0],4)} offset:{i*16384}')
    for i in range(4):
        a(f'  ds_write_b128 v{X[4]}, {vr(D[0],4)} offset:{i*16384}')
    for i in range(2):
        a(f'  ds_write_b128 v{X[5]}, {vr(D[0],4)} offset:{i*16384}')
    a(f'  v_and_b32 v{P7}, 7, v0')
    a(f'  v_lshlrev_b32 v{J4}, 2, v{P7}')
    a(f'  v_lshlrev_b32 v{J8}, 3, v{P}')
    a(f'  v_lshlrev_b32 v{J2H}, 1, v{P7}')
    a(f'  v_cmp_gt_u32 vcc, 8, v{P}')
    a(f'  v_mov_b32 v{X[3]}, 0x03020c0c')
    a(f'  v_mov_b32 v{X[4]}, 0x05040c0c')
    a(f'  v_cndmask_b32 v{SELA}, v{X[3]}, v{X[4]}, vcc')
    a(f'  v_mov_b32 v{X[3]}, 0x07060c0c')
    a(f'  v_mov_b32 v{X[4]}, 0x01000c0c')
    a(f'  v_cndmask_b32 v{SELB}, v{X[3]}, v{X[4]}, vcc')
    a(f'  v_and_b32 v{VOFF8}, 1, v{VLANE}')
    a(f'  v_lshlrev_b32 v{VOFF8}, 3, v{VOFF8}')
    if JPC > 1:
        a(f'  v_lshrrev_b32 v{X[3]}, {1 + int(math.log2(NSEG))}, v{VLANE}')
        a(f'  v_lshl_add_u32 v{VOFF8}, v{X[3]}, 4, v{VOFF8}')
    a(f'  s_mul_i32 s26, s24, {NSEG}')
    a(f'  v_add_u32 v{X[0]}, s26, v{X[1]}')
    a(f'  s_mov_b32 s27, {cfg.TILE_BYTES}')
    a(f'  v_mul_lo_u32 v{X[0]}, v{X[0]}, s27')
    a('  s_mov_b32 s52, 0xfffffff0')
    a('  s_mov_b32 s53, 0xffff0000')
    a('  s_mov_b32 s54, 0x3ff80')
    a('  s_mov_b32 s55, 0xffffe0')
    a(f'  s_waitcnt vmcnt({npf})')
    if opt.get('pstamp'): st()
    a(f'  v_lshrrev_b32 v{VB}, 16, v{VN}')
    a(f'  v_and_b32 v{VN}, 0xffff, v{VN}')
    a(f'  v_mad_u32_u24 v{VB}, v{VB}, 48, v{X[0]}')
    a(f'  v_mov_b32 v{X[0]}, v{VN}')
    for sh in (1, 2, 4, 8):
        a('  s_nop 1')
        a(f'  v_max_u32_dpp v{X[0]}, v{X[0]}, v{X[0]} row_ror:{sh} row_mask:0xf bank_mask:0xf')
    a('  s_nop 1')
    for i, ln in enumerate((0, 16, 32, 48)):
        a(f'  v_readlane_b32 s{56+i}, v{X[0]}, {ln}')
    a('  s_nop 3')
    a('  s_max_u32 s56, s56, s57')
    a('  s_max_u32 s58, s58, s59')
    a('  s_max_u32 s50, s56, s58')
    a('  s_mov_b32 s51, 0')
    a('  s_mov_b32 s56, 0')
    a('  s_mov_b32 s64, 0')
    if se:
        a(f'  s_mov_b32 s69, {opt.get("nsync", 38 // se)}')
    a(f'  s_waitcnt vmcnt({nm})')
    if opt.get('pstamp'): st()
    a(f'  v_lshl_or_b32 v{WD}, v{WTMP[1]}, 16, v{WTMP[0]}')
    a(f'  v_lshl_or_b32 v{WD+1}, v{WTMP[3]}, 16, v{WTMP[2]}')
    a(f'  v_lshl_or_b32 v{WU}, v{WTMP[5]}, 16, v{WTMP[4]}')
    a(f'  v_lshl_or_b32 v{WU+1}, v{WTMP[7]}, 16, v{WTMP[6]}')
    a(f'  v_lshl_or_b32 v{WSt}, v{WT2[1]}, 16, v{WT2[0]}')
    a(f'  v_lshl_or_b32 v{WRt}, v{WT2[3]}, 16, v{WT2[2]}')
    a(f'  v_mov_b32 v{WD+2}, v{WD}')
    a(f'  v_mov_b32 v{WD+3}, v{WD+1}')
    a(f'  v_mov_b32 v{WU+2}, v{WU}')
    a(f'  v_mov_b32 v{WU+3}, v{WU+1}')
    a(f'  v_mov_b32 v{WSt+1}, 0')
    a(f'  v_mov_b32 v{WRt+1}, 0')
    a(f'  v_mov_b32 v{RBp+1}, 0')
    a(f'  v_lshlrev_b32 v{CEN}, 16, v{CEN}')
    a(f'  v_lshlrev_b32 v{CEN+1}, 16, v{CEN+1}')
    uid = [0]
    def stageA(b):
        u = uid[0]; uid[0] += 1
        a.label(f'p2_chk{u}')
        a('  s_cmp_lg_u32 s56, 0')
        a(f'  s_cbranch_scc1 p2_go{u}')
        a('  s_cmp_ge_u32 s51, s50')
        a(f'  s_cbranch_scc1 p2_exh{u}')
        a(f'  v_add_u32 v{X[0]}, s51, v{VOFF8}')
        a(f'  v_cmp_gt_u32 vcc, v{VN}, v{X[0]}')
        a(f'  v_sub_u32 v{X[1]}, v{VN}, v{X[0]}')
        a(f'  v_min_u32 v{X[1]}, 8, v{X[1]}')
        a(f'  v_mad_u32_u24 v{X[2]}, v{X[0]}, 6, v{VB}')
        a(f'  v_or_b32 v{X[2]}, v{X[2]}, v{X[1]}')
        a(f'  s_bcnt1_i32_b64 s67, vcc')
        a(f'  v_mbcnt_lo_u32_b32 v{X[3]}, vcc_lo, 0')
        a(f'  v_mbcnt_hi_u32_b32 v{X[3]}, vcc_hi, v{X[3]}')
        a(f'  v_sub_u32 v{X[4]}, v{VLANE}, v{X[3]}')
        a(f'  v_add_u32 v{X[4]}, s67, v{X[4]}')
        a(f'  v_cndmask_b32 v{X[4]}, v{X[4]}, v{X[3]}, vcc')
        a(f'  v_cndmask_b32 v{X[2]}, 0, v{X[2]}, vcc')
        a(f'  v_and_b32 v{X[5]}, 6, v{X[4]}')
        a(f'  v_lshlrev_b32 v{X[5]}, 5, v{X[5]}')
        a(f'  v_and_or_b32 v{X[5]}, v{X[4]}, -8, v{X[5]}')
        a(f'  v_and_b32 v{X[4]}, 1, v{X[4]}')
        a(f'  v_lshl_or_b32 v{X[5]}, v{X[4]}, 2, v{X[5]}')
        a(f'  ds_permute_b32 v{EE}, v{X[5]}, v{X[2]}')
        a('  s_add_u32 s56, s67, 7')
        a('  s_lshr_b32 s56, s56, 3')
        a('  s_add_u32 s64, s64, s56')
        a(f'  s_add_u32 s51, s51, {16*JPC}')
        a('  s_waitcnt lgkmcnt(0)')
        a(f'  s_branch p2_go{u}')
        a.label(f'p2_exh{u}')
        a(f'  v_mov_b32 v{EE}, 0')
        a('  s_mov_b32 s56, 1')
        a('  s_nop 0')
        a.label(f'p2_go{u}')
        a('  s_sub_u32 s56, s56, 1')
        a(f'  v_mov_b32_dpp v{X[0]}, v{EE} row_newbcast:0 row_mask:0xf bank_mask:0x3')
        a(f'  v_mov_b32_dpp v{X[0]}, v{EE} row_newbcast:1 row_mask:0xf bank_mask:0xc')
        a(f'  v_mov_b32_dpp v{EE}, v{EE} row_shl:2 row_mask:0xf bank_mask:0xf bound_ctrl:0')
        a(f'  v_and_b32 v{X[1]}, s52, v{X[0]}')
        a(f'  v_and_b32 v{VV[b]}, 15, v{X[0]}')
        a(f'  v_add_u32 v{X[0]}, v{X[1]}, v{J4}')
        a(f'  v_add_u32 v{X[1]}, v{X[1]}, v{J2H}')
        a(f'  buffer_load_dword v{RW[b]}, v{X[0]}, s[8:11], 0 offen{RNT}')
        a(f'  buffer_load_short_d16_hi v{RC[b]}, v{X[1]}, s[8:11], 0 offen offset:32{RNT}')
    def decode(b):
        a(f'  v_cmp_gt_u32 vcc, v{VV[b]}, v{P7}')
        a(f'  v_lshlrev_b32 v{X[2]}, 5, v{RW[b]}')
        a(f'  v_lshrrev_b32 v{X[3]}, 12, v{RW[b]}')
        a(f'  v_and_b32 v{CC[b]}, s53, v{RC[b]}')
        a(f'  v_and_b32 v{X[2]}, s55, v{X[2]}')
        a(f'  v_and_b32 v{X[3]}, s54, v{X[3]}')
        a(f'  v_cndmask_b32 v{COL}, 0, v{X[2]}, vcc')
        if opt.get('colmask'):
            a(f'  v_and_b32 v{COL}, {opt["colmask"]}, v{COL}')
        a(f'  v_cndmask_b32 v{ROW[b]}, v{VDUM}, v{X[3]}, vcc')
        a('  s_nop 0')
    def gather(b, g):
        ad = GAD[g & 1]
        a(f'  v_add_u32_dpp v{ad}, v{COL}, v{J4} row_newbcast:{2*g} row_mask:0xf bank_mask:0x3')
        a(f'  v_add_u32_dpp v{ad}, v{COL}, v{J4} row_newbcast:{2*g+1} row_mask:0xf bank_mask:0xc')
        GF = {0: '', 1: ' sc0', 2: ' sc1', 3: ' nt'}[opt.get('gflag', 0)]
        a(f'  buffer_load_dword v{G[b]+g}, v{ad}, s[4:7], 0 offen{GF}')
    def consume(b, g):
        x = G[b] + g; y = YR[g & 1]
        a(f'  v_mov_b32_dpp v{y}, v{x} row_ror:8 row_mask:0xf bank_mask:0xf')
        a(f'  v_add_u32_dpp v{LA[0]}, v{ROW[b]}, v{J8} row_newbcast:{2*g} row_mask:0xf bank_mask:0xf')
        a(f'  v_add_u32_dpp v{LA[1]}, v{ROW[b]}, v{J8} row_newbcast:{2*g+1} row_mask:0xf bank_mask:0xf')
        a(f'  v_perm_b32 v{AB[0]}, v{x}, v{y}, v{SELA}')
        a(f'  v_perm_b32 v{AB[1]}, v{x}, v{y}, v{SELB}')
        a(f'  v_mul_f32_dpp v{PT[0]}, v{CC[b]}, v{AB[0]} row_newbcast:{2*g} row_mask:0xf bank_mask:0xf')
        a(f'  v_mul_f32_dpp v{PT[1]}, v{CC[b]}, v{AB[1]} row_newbcast:{2*g+1} row_mask:0xf bank_mask:0xf')
        a(f'  v_cvt_f64_f32 {vr(D[0],2)}, v{PT[0]}')
        a(f'  v_cvt_f64_f32 {vr(D[1],2)}, v{PT[1]}')
        if not opt.get('no_ds'):
            a(f'  ds_add_f64 v{LA[0]}, {vr(D[0],2)}')
            a(f'  ds_add_f64 v{LA[1]}, {vr(D[1],2)}')
    for t in range(-2*b_lag, -b_lag):
        stageA((t + 2*b_lag) % R)
    first = True
    for t in range(-b_lag, 0):
        stageA((t + 2*b_lag) % R)
        if first:
            first = False
            a('  s_mov_b32 s76, 0xc1200000')
            a('  s_mov_b32 s77, 0x3fb8aa3b')
            for u in range(5):
                a(f'  v_lshlrev_b32 v{X[1]}, 16, v{DI+u}')
                a(f'  v_sub_f32 v{X[2]}, v{X[1]}, v{CEN}')
                a(f'  v_sub_f32 v{X[3]}, v{X[1]}, v{CEN+1}')
                def rnd2():
                    a(f'  v_cvt_pk_bf16_f32 v{X[4]}, v{X[2]}, v{X[3]}')
                    a(f'  v_lshlrev_b32 v{X[2]}, 16, v{X[4]}')
                    a(f'  v_and_b32 v{X[3]}, s53, v{X[4]}')
                rnd2()
                a(f'  v_mul_f32 v{X[2]}, v{X[2]}, v{X[2]}')
                a(f'  v_mul_f32 v{X[3]}, v{X[3]}, v{X[3]}')
                rnd2()
                a(f'  v_mul_f32 v{X[2]}, s76, v{X[2]}')
                a(f'  v_mul_f32 v{X[3]}, s76, v{X[3]}')
                rnd2()
                a(f'  v_mul_f32 v{X[2]}, s77, v{X[2]}')
                a(f'  v_mul_f32 v{X[3]}, s77, v{X[3]}')
                a(f'  v_exp_f32 v{X[2]}, v{X[2]}')
                a(f'  v_exp_f32 v{X[3]}, v{X[3]}')
                a('  s_nop 0')
                a(f'  v_cvt_pk_bf16_f32 v{RBp}, v{X[2]}, v{X[3]}')
                a('  s_nop 1')
                a(f'  v_mfma_f32_16x16x16_bf16 {vr(GG+4*u,4)}, {vr(WSt,2)}, {vr(RBp,2)}, 0')
                a(f'  v_mfma_f32_16x16x16_bf16 {vr(HT,4)}, {vr(WRt,2)}, {vr(RBp,2)}, 0')
                a('  s_nop 7')
                a('  s_nop 1')
                a(f'  v_cvt_pk_bf16_f32 v{HH+2*u}, v{HT}, v{HT+1}')
                a(f'  v_cvt_pk_bf16_f32 v{HH+2*u+1}, v{HT+2}, v{HT+3}')
        if opt.get('pstamp') and t == -b_lag: st()
        a(f'  s_waitcnt vmcnt({2*b_lag + NG*(t + b_lag)})')
        if opt.get('pstamp') and t == -b_lag: st()
        if t == -b_lag:
            a(f'  v_mov_b32 v{VDUM}, {DUMMY_ROW*128}')
        decode((t + b_lag) % R)
        for g in range(NG):
            gather((t + b_lag) % R, g)
    a('  s_waitcnt lgkmcnt(0)')
    a('  s_barrier')
    st()
    if opt.get('prio'):
        pr = opt['prio']
        if pr == 1:
            a('  s_cmp_lt_u32 s24, 8')
            a('  s_cbranch_scc1 p2_noprio')
            a('  s_setprio 1')
            a.label('p2_noprio')
        if pr == 2:
            a('  s_cmp_lt_u32 s24, 4')
            a('  s_cbranch_scc1 p2_noprio')
            a('  s_setprio 1')
            a('  s_cmp_lt_u32 s24, 8')
            a('  s_cbranch_scc1 p2_noprio')
            a('  s_setprio 2')
            a('  s_cmp_lt_u32 s24, 12')
            a('  s_cbranch_scc1 p2_noprio')
            a('  s_setprio 3')
            a.label('p2_noprio')
    a('  s_cmp_eq_u32 s64, 0')
    a('  s_cbranch_scc1 p2_loop_exit')
    a.label('p2_loop')
    U = R
    if se and se > R and se % R == 0:
        U = se
    for t in range(U):
        tb = t % R
        stageA((tb + 2*b_lag) % R)
        a(f'  s_waitcnt vmcnt({(NG+2)*b_lag})')
        decode((tb + b_lag) % R)
        for g in range(NG):
            gather((tb + b_lag) % R, g)
            a(f'  s_waitcnt vmcnt({(NG+2)*b_lag})')
            consume(tb, g)
        if se and (t % se) == se - 1:
            a('  s_cmp_eq_u32 s69, 0')
            a(f'  s_cbranch_scc1 p2_nosync{t}')
            a('  s_barrier')
            a('  s_sub_u32 s69, s69, 1')
            a.label(f'p2_nosync{t}')
        a('  s_sub_u32 s64, s64, 1')
        a('  s_cmp_eq_u32 s64, 0')
        if t < U - 1:
            a('  s_cbranch_scc1 p2_loop_exit')
        else:
            a('  s_cbranch_scc0 p2_loop')
    a.label('p2_loop_exit')
    if se:
        a.label('p2_owed')
        a('  s_cmp_eq_u32 s69, 0')
        a('  s_cbranch_scc1 p2_owed_done')
        a('  s_barrier')
        a('  s_sub_u32 s69, s69, 1')
        a('  s_branch p2_owed')
        a.label('p2_owed_done')
    st()
    a('  s_waitcnt vmcnt(0) lgkmcnt(0)')
    a('  s_barrier')
    st()
    def split4(src):
        a(f'  v_cvt_pk_bf16_f32 v{BT}, v{src}, v{src+1}')
        a(f'  v_cvt_pk_bf16_f32 v{BT+1}, v{src+2}, v{src+3}')
        a(f'  v_lshlrev_b32 v{X[0]}, 16, v{BT}')
        a(f'  v_and_b32 v{X[1]}, s53, v{BT}')
        a(f'  v_lshlrev_b32 v{X[2]}, 16, v{BT+1}')
        a(f'  v_and_b32 v{X[3]}, s53, v{BT+1}')
        for q in range(4):
            a(f'  v_sub_f32 v{X[q]}, v{src+q}, v{X[q]}')
        a(f'  v_cvt_pk_bf16_f32 v{BT+2}, v{X[0]}, v{X[1]}')
        a(f'  v_cvt_pk_bf16_f32 v{BT+3}, v{X[2]}, v{X[3]}')
        a('  s_nop 1')
    for u in range(5):
        a(f'  s_cmp_ge_u32 s{70+u}, {E}')
        a(f'  s_cbranch_scc1 p2_epi_skip{u}')
        a(f'  s_add_u32 s26, s24, {16*u}')
        a('  s_lshl_b32 s26, s26, 11')
        a(f'  v_lshlrev_b32 v{X[0]}, 7, v{P}')
        a(f'  v_lshl_add_u32 v{X[0]}, v{VROW4}, 4, v{X[0]}')
        a(f'  v_add_u32 v{X[0]}, s26, v{X[0]}')
        a(f'  ds_read_b128 {vr(Sg,4)}, v{X[0]}')
        a(f'  ds_read_b128 {vr(Sg+4,4)}, v{X[0]} offset:64')
        a('  s_waitcnt lgkmcnt(0)')
        order = [0, 2, 1, 3]
        for i in range(4):
            a(f'  v_cvt_f32_f64 v{SF+order[i]}, {vr(Sg+2*i,2)}')
        split4(SF)
        a(f'  v_mfma_f32_16x16x32_bf16 {vr(Y,4)}, {vr(WD,4)}, {vr(BT,4)}, 0')
        a('  s_nop 7')
        a('  s_nop 1')
        for q in range(4):
            a(f'  v_mul_f32 v{Y+q}, v{Y+q}, v{GG+4*u+q}')
        split4(Y)
        a(f'  v_mfma_f32_16x16x32_bf16 {vr(Z,4)}, {vr(WU,4)}, {vr(BT,4)}, 0')
        a(f'  v_lshlrev_b32 v{SF}, 16, v{HH+2*u}')
        a(f'  v_and_b32 v{SF+1}, s53, v{HH+2*u}')
        a(f'  v_lshlrev_b32 v{SF+2}, 16, v{HH+2*u+1}')
        a(f'  v_and_b32 v{SF+3}, s53, v{HH+2*u+1}')
        a(f'  v_lshlrev_b32 v{Y}, 16, v{MM+2*u}')
        a(f'  v_and_b32 v{Y+1}, s53, v{MM+2*u}')
        a(f'  v_lshlrev_b32 v{Y+2}, 16, v{MM+2*u+1}')
        a(f'  v_and_b32 v{Y+3}, s53, v{MM+2*u+1}')
        a('  s_nop 1')
        a(f'  v_cvt_pk_bf16_f32 v{X[0]}, v{Z}, v{Z+1}')
        a(f'  v_cvt_pk_bf16_f32 v{X[1]}, v{Z+2}, v{Z+3}')
        a(f'  v_lshlrev_b32 v{Z}, 16, v{X[0]}')
        a(f'  v_and_b32 v{Z+1}, s53, v{X[0]}')
        a(f'  v_lshlrev_b32 v{Z+2}, 16, v{X[1]}')
        a(f'  v_and_b32 v{Z+3}, s53, v{X[1]}')
        for q in range(4):
            a(f'  v_mul_f32 v{Z+q}, v{Z+q}, v{SF+q}')
        a(f'  v_cvt_pk_bf16_f32 v{X[0]}, v{Z}, v{Z+1}')
        a(f'  v_cvt_pk_bf16_f32 v{X[1]}, v{Z+2}, v{Z+3}')
        a(f'  v_lshlrev_b32 v{Z}, 16, v{X[0]}')
        a(f'  v_and_b32 v{Z+1}, s53, v{X[0]}')
        a(f'  v_lshlrev_b32 v{Z+2}, 16, v{X[1]}')
        a(f'  v_and_b32 v{Z+3}, s53, v{X[1]}')
        for q in range(4):
            a(f'  v_add_f32 v{Z+q}, v{Z+q}, v{Y+q}')
        a(f'  v_cvt_pk_bf16_f32 v{Z}, v{Z}, v{Z+1}')
        a(f'  v_cvt_pk_bf16_f32 v{Z+1}, v{Z+2}, v{Z+3}')
        a(f'  buffer_store_dwordx2 {vr(Z,2)}, v{OFF+u}, s[16:19], 0 offen{OTF}')
        a.label(f'p2_epi_skip{u}')
    if st.on:
        a('  s_waitcnt vmcnt(0)')
        st()
    st.flush('s24')
    a.label('p2_done')
    a('  s_endpgm')
    return maxv

def descriptor(a, name, vgpr, sgpr):
    a(f'.amdhsa_kernel {name}')
    a(f'  .amdhsa_next_free_vgpr {vgpr}')
    a(f'  .amdhsa_next_free_sgpr {sgpr}')
    a(f'  .amdhsa_accum_offset {(vgpr + 3) // 4 * 4}')
    a('  .amdhsa_group_segment_fixed_size 0')
    a('  .amdhsa_kernarg_size 112')
    a('  .amdhsa_user_sgpr_count 2')
    a('  .amdhsa_user_sgpr_kernarg_segment_ptr 1')
    a('  .amdhsa_system_sgpr_workgroup_id_x 1')
    a('  .amdhsa_float_denorm_mode_32 3')
    a('.end_amdhsa_kernel')

HEADER = '''; Kernarg layout (112 bytes, ptrs only, base s[0:1]):
; @launch kernel=p1_kernel grid=(256,1,1) block=(1024,1,1) lds=163840
; @launch kernel=p2_kernel grid=(256,1,1) block=(1024,1,1) lds=163840
.amdgcn_target "amdgcn-amd-amdhsa--gfx950"
.text
.globl p1_kernel
.globl p2_kernel
'''

def build(opt):
    cfg = Cfg(opt)
    a = Asm()
    a(HEADER.rstrip('\n'))
    gen_p1(a, opt, cfg)
    v2 = gen_p2(a, opt, cfg)
    a('.section .rodata,"a"')
    a('.p2align 6')
    ns = 102 if opt.get('stamp') else 80
    descriptor(a, 'p1_kernel', 128, ns)
    a('.p2align 6')
    descriptor(a, 'p2_kernel', v2, ns)
    return a.text()

if __name__ == '__main__':
    out = sys.argv[1] if len(sys.argv) > 1 else 'standalone__molecular_angular_gemnet__graph.s'
    opt = {}
    for kv in sys.argv[2:]:
        k, v = kv.split('=')
        opt[k] = int(v) if v.lstrip('-').isdigit() else v
    open(out, 'w').write(build(opt))
    print('wrote', out)
```

```python
import struct, sys, math

def f32bits(x):
    return struct.unpack('<I', struct.pack('<f', x))[0]
def bits2f(b):
    return struct.unpack('<f', struct.pack('<I', b))[0]

E = 320000
T = 10240000
NWG = 256
import os
KSH = int(os.environ.get('KSH', 14))
NK = (E + (1 << KSH) - 1) >> KSH
HIST = 131072
TMP = HIST + NK * 1024
DUMMY_ROW = 1264

class Cfg:
    def __init__(self, opt):
        self.S = 1
        self.NTT = NWG
        self.SUB = 40000
        self.RPS = 10
        self.SLICE = 21504
        self.CBASE = self.SLICE * 4
        self.SLICE_BYTES = self.SLICE * 6
        maxpad = self.SUB + 256 * 7
        assert maxpad <= 2 * self.SLICE and self.SUB > self.SLICE
        self.TILE_BYTES = (maxpad * 6 + 127) // 128 * 128
        self.TAB_BYTES = 256 * self.NTT * 4
        self.REC_OFF = self.TAB_BYTES
        self.REC_BYTES = self.NTT * self.TILE_BYTES
        self.NSL = 2

class Asm:
    def __init__(self):
        self.lines = []
    def __call__(self, s=''):
        for l in s.split('\n'):
            self.lines.append(l)
    def label(self, s):
        self.lines.append(s + ':')
    def text(self):
        return '\n'.join(self.lines) + '\n'

def vr(a, n=1):
    return f'v{a}' if n == 1 else f'v[{a}:{a+n-1}]'

def srd(a, d, ptr, size):
    a(f'  s_mov_b32 s{d}, s{ptr}')
    a(f'  s_and_b32 s{d+1}, s{ptr+1}, 0xffff')
    a(f'  s_mov_b32 s{d+2}, {size}')
    a(f'  s_mov_b32 s{d+3}, 0x20000')

class Stamps:
    def __init__(self, a, on, name, slot):
        self.a = a; self.on = on; self.n = 0; self.name = name; self.slot = slot; self.wave = 0
    def __call__(self):
        if not self.on: return
        a = self.a
        a('  s_memtime s[80:81]')
        a('  s_memrealtime s[82:83]')
        a('  s_waitcnt lgkmcnt(0)')
        a(f'  s_mov_b32 s{84+2*self.n}, s80')
        a(f'  s_mov_b32 s{85+2*self.n}, s82')
        self.n += 1
        assert self.n <= 9
    def flush(self, wavereg):
        if not self.on: return
        a = self.a
        a(f'  s_cmp_lg_u32 {wavereg}, {self.wave}')
        a(f'  s_cbranch_scc1 {self.name}_nostamp')
        a('  s_load_dwordx2 s[80:81], s[0:1], 104')
        a('  s_waitcnt lgkmcnt(0)')
        a(f'  s_add_u32 s80, s80, {200*1048576 + self.slot*65536}')
        a('  s_addc_u32 s81, s81, 0')
        a('  s_lshl_b32 s82, s2, 7')
        a('  v_mov_b32 v1, s82')
        for i in range(2*self.n):
            a(f'  v_mov_b32 v2, s{84+i}')
            a(f'  global_store_dword v1, v2, s[80:81] offset:{4*i}')
        a.label(f'{self.name}_nostamp')

def gen_p1(a, opt, cfg):
    st = Stamps(a, bool(opt.get('stamp')), 'p1', 0)
    NTF = ' nt' if opt.get('nt_in', 1) else ''
    STF = {0: '', 1: ' nt', 2: ' sc1', 3: ' sc0 sc1', 4: ' sc0'}[opt.get('nt_st', 2)]
    S = cfg.S
    W0, W1, AUX = 8, 48, 88
    CO = 32
    t = [108 + i for i in range(20)]
    inv2pi = 1.0 / (2.0 * math.pi)
    chi_bits = f32bits(inv2pi) & 0xffffff00
    clo_bits = f32bits(inv2pi - bits2f(chi_bits))
    a('.p2align 8')
    a('.type p1_kernel,@function')
    a.label('p1_kernel')
    a('  s_cmp_ge_u32 s2, 256')
    a('  s_cbranch_scc1 p1_done')
    a('  s_load_dwordx4 s[32:35], s[0:1], 8')
    a('  s_load_dwordx2 s[36:37], s[0:1], 32')
    a('  s_load_dwordx2 s[38:39], s[0:1], 48')
    a('  s_load_dwordx2 s[28:29], s[0:1], 104')
    a('  s_load_dwordx2 s[74:75], s[0:1], 0')
    a('  v_lshlrev_b32 v1, 4, v0')
    a(f'  v_add_u32 v2, {HIST}, v1')
    for r in range(4, 8):
        a(f'  v_mov_b32 v{r}, 0')
    a('  ds_write_b128 v2, v[4:7]')
    a('  ds_write_b128 v2, v[4:7] offset:16384')
    a('  s_mul_i32 s40, s2, 160000')
    a('  s_mul_i32 s41, s2, 80000')
    a('  v_add_u32 v1, s40, v1')
    a('  v_lshlrev_b32 v3, 3, v0')
    a('  v_add_u32 v3, s41, v3')
    a('  v_readfirstlane_b32 s24, v0')
    a('  v_cmp_gt_u32 vcc, 1000, v0')
    a('  s_lshr_b32 s24, s24, 6')
    a('  s_mov_b64 s[44:45], vcc')
    for i in range(1, 10):
        a(f'  s_mov_b32 s{45+i}, {i*16000}')
        a(f'  s_mov_b32 s{55+i}, {i*8000}')
    a('  s_waitcnt lgkmcnt(0)')
    a('  s_load_dword s26, s[38:39], 0')
    srd(a, 4, 32, T * 4)
    srd(a, 8, 34, T * 4)
    srd(a, 12, 36, T * 2)
    st()
    a('  s_mov_b64 exec, s[44:45]')
    def issue_round(i):
        so = '0' if i == 0 else f's{45+i}'
        sa = '0' if i == 0 else f's{55+i}'
        a(f'  buffer_load_dwordx4 {vr(W0+4*i,4)}, v1, s[4:7], {so} offen{NTF}')
        a(f'  buffer_load_dwordx4 {vr(W1+4*i,4)}, v1, s[8:11], {so} offen{NTF}')
        a(f'  buffer_load_dwordx2 {vr(AUX+2*i,2)}, v3, s[12:15], {sa} offen{NTF}')
    AHEAD = opt.get('ahead', 2)
    for i in range(AHEAD):
        issue_round(i)
    issued = AHEAD
    a('  s_mov_b32 s27, 0xffff0000')
    a(f'  s_mov_b32 s30, {chi_bits:#x}')
    a(f'  s_mov_b32 s31, {clo_bits:#x}')
    a(f'  s_mov_b32 s42, {HIST}')
    a('  s_mov_b32 s43, 0x3fc')
    a('  v_mov_b32 v2, 1')
    srd(a, 20, 28, cfg.TAB_BYTES)
    srd(a, 76, 74, E * 32)
    a(f'  s_mul_i32 s40, s2, {S * cfg.TILE_BYTES}')
    a('  s_add_u32 s28, s28, s40')
    a('  s_addc_u32 s29, s29, 0')
    a(f'  s_add_u32 s28, s28, {cfg.REC_OFF}')
    a('  s_addc_u32 s29, s29, 0')
    a('  s_waitcnt lgkmcnt(0)')
    a('  s_and_b32 s26, s26, 0xffff')
    a('  s_lshl_b32 s26, s26, 16')
    a('  s_barrier')
    for i in range(1, 8):
        a(f'  s_mov_b32 s{CO+i}, {i*16128}')
    stores_done = 0
    for h in range(S):
        sfx = f'_{h}'
        if h > 0:
            a('  v_mov_b32 v2, 1')
            a(f'  s_mov_b32 s42, {HIST}')
            a('  s_mov_b32 s43, 0x3fc')
            a('  s_mov_b64 exec, s[44:45]')
        for i in range(h * cfg.RPS, (h + 1) * cfg.RPS):
            A = [W0 + 4*i + e for e in range(4)]
            O = [W1 + 4*i + e for e in range(4)]
            G = [AUX + 2*i, AUX + 2*i + 1]
            a(f'  s_waitcnt vmcnt({3*(issued - 1 - i) + stores_done})')
            if issued < 10:
                issue_round(issued); issued += 1
            a(f'  v_lshlrev_b32 v{t[0]}, 16, v{G[0]}')
            a(f'  v_and_b32 v{t[1]}, s27, v{G[0]}')
            a(f'  v_lshlrev_b32 v{t[2]}, 16, v{G[1]}')
            a(f'  v_and_b32 v{t[3]}, s27, v{G[1]}')
            for e in range(4):
                a(f'  v_mul_f32 v{t[e]}, s26, v{t[e]}')
            a(f'  v_cvt_pk_bf16_f32 v{t[4]}, v{t[0]}, v{t[1]}')
            a(f'  v_cvt_pk_bf16_f32 v{t[5]}, v{t[2]}, v{t[3]}')
            for e in range(4):
                a(f'  v_lshrrev_b32 v{t[8+e]}, 8, v{O[e]}')
            a(f'  v_lshlrev_b32 v{t[0]}, 16, v{t[4]}')
            a(f'  v_and_b32 v{t[1]}, s27, v{t[4]}')
            a(f'  v_lshlrev_b32 v{t[2]}, 16, v{t[5]}')
            a(f'  v_and_b32 v{t[3]}, s27, v{t[5]}')
            for e in range(4):
                a(f'  v_bfi_b32 v{t[8+e]}, 15, v{O[e]}, v{t[8+e]}')
            for e in range(4):
                a(f'  v_mul_f32 v{t[4+e]}, s30, v{t[e]}')
            for e in range(4):
                a(f'  v_fract_f32 v{t[4+e]}, v{t[4+e]}')
            for e in range(4):
                a(f'  v_fma_f32 v{t[4+e]}, v{t[e]}, s31, v{t[4+e]}')
            for e in range(4):
                a(f'  v_cos_f32 v{t[4+e]}, v{t[4+e]}')
            for e in range(4):
                a(f'  v_lshrrev_b32 v{t[12+e]}, 2, v{O[e]}')
            for e in range(4):
                a(f'  v_lshrrev_b32 v{t[e]}, {KSH}, v{A[e]}')
            for e in range(4):
                a(f'  v_and_b32 v{t[12+e]}, s43, v{t[12+e]}')
            for e in range(4):
                a(f'  v_lshl_or_b32 v{t[12+e]}, v{t[e]}, 10, v{t[12+e]}')
            a(f'  v_cvt_pk_bf16_f32 v{t[16]}, v{t[4]}, v{t[5]}')
            a(f'  v_cvt_pk_bf16_f32 v{t[17]}, v{t[6]}, v{t[7]}')
            for e in range(4):
                a(f'  v_add_u32 v{t[e]}, s42, v{t[12+e]}')
            for e in range(4):
                a(f'  ds_add_u32 v{t[e]}, v2')
            for e in range(4):
                a(f'  v_lshl_or_b32 v{A[e]}, v{t[8+e]}, 19, v{A[e]}')
            a(f'  v_mov_b32 v{O[0]}, v{t[16]}')
            a(f'  v_mov_b32 v{O[2]}, v{t[17]}')
            a(f'  v_lshl_or_b32 v{G[0]}, v{t[13]}, 16, v{t[12]}')
            a(f'  v_lshl_or_b32 v{G[1]}, v{t[15]}, 16, v{t[14]}')
        a('  s_mov_b64 exec, -1')
        a('  s_waitcnt lgkmcnt(0)')
        a('  s_barrier')
        st()
        if h == S - 1 and opt.get('mpf1', 1):
            a('  s_sub_u32 s40, s24, 4')
            a('  s_cmp_ge_u32 s40, 5')
            a('  s_cbranch_scc1 p1_nopf')
            a('  s_mul_i32 s41, s2, 40000')
            a('  s_and_b32 s41, s41, 0xffffff80')
            a('  v_subrev_u32 v5, 256, v0')
            a('  v_lshlrev_b32 v5, 7, v5')
            a(f'  buffer_load_dword v{W1+1}, v5, s[76:79], s41 offen')
            a.label('p1_nopf')
        a('  v_lshlrev_b32 v4, 2, v0')
        a(f'  v_add_u32 v4, {HIST}, v4')
        a('  s_cmp_ge_u32 s24, 4')
        a(f'  s_cbranch_scc1 p1_skip1{sfx}')
        for k in range(NK):
            a(f'  ds_read_b32 v{t[k]}, v4 offset:{k*1024}')
        a('  v_mov_b32 v5, 0')
        a('  s_waitcnt lgkmcnt(0)')
        ra, rb = 5, 6
        for k in range(NK):
            a(f'  v_add_u32 v{rb}, v{ra}, v{t[k]}')
            a(f'  v_mov_b32 v{t[k]}, v{ra}')
            ra, rb = rb, ra
        assert ra == 5
        a('  v_add_u32 v6, 7, v5')
        a('  v_and_b32 v6, -8, v6')
        a('  v_mov_b32 v7, v6')
        for sh in (1, 2, 4, 8):
            a('  s_nop 1')
            a(f'  v_add_u32_dpp v7, v7, v7 row_shr:{sh} row_mask:0xf bank_mask:0xf bound_ctrl:0')
        a('  s_nop 1')
        a('  v_add_u32_dpp v7, v7, v7 row_bcast:15 row_mask:0xa bank_mask:0xf')
        a('  s_nop 1')
        a('  v_add_u32_dpp v7, v7, v7 row_bcast:31 row_mask:0xc bank_mask:0xf')
        a('  s_lshl_b32 s40, s24, 2')
        a(f'  s_add_u32 s40, s40, {TMP}')
        a('  v_mov_b32 v3, s40')
        a('  s_mov_b32 exec_lo, 0')
        a('  s_mov_b32 exec_hi, 0x80000000')
        a('  ds_write_b32 v3, v7')
        a('  s_mov_b64 exec, -1')
        a.label(f'p1_skip1{sfx}')
        a('  s_waitcnt lgkmcnt(0)')
        a('  s_barrier')
        a(f'  v_mov_b32 v1, {TMP}')
        a('  ds_read2_b32 v[2:3], v1 offset0:0 offset1:1')
        a('  s_waitcnt lgkmcnt(0)')
        a('  v_readfirstlane_b32 s66, v2')
        a('  v_readfirstlane_b32 s67, v3')
        a('  ds_read2_b32 v[2:3], v1 offset0:2 offset1:3')
        a('  s_waitcnt lgkmcnt(0)')
        a('  v_readfirstlane_b32 s68, v2')
        a('  v_readfirstlane_b32 s69, v3')
        a('  s_nop 3')
        a('  s_add_u32 s70, s66, s67')
        a('  s_add_u32 s71, s70, s68')
        a('  s_add_u32 s72, s71, s69')
        a('  s_cmp_ge_u32 s24, 4')
        a(f'  s_cbranch_scc1 p1_skip2{sfx}')
        a('  s_mov_b32 s73, 0')
        a('  s_cmp_eq_u32 s24, 1')
        a('  s_cselect_b32 s73, s66, s73')
        a('  s_cmp_eq_u32 s24, 2')
        a('  s_cselect_b32 s73, s70, s73')
        a('  s_cmp_eq_u32 s24, 3')
        a('  s_cselect_b32 s73, s71, s73')
        a('  v_sub_u32 v7, v7, v6')
        a('  v_add_u32 v7, s73, v7')
        for k in range(NK):
            a(f'  v_add_u32 v{t[k]}, v7, v{t[k]}')
            a(f'  ds_write_b32 v4, v{t[k]} offset:{k*1024}')
        a('  v_lshl_or_b32 v5, v7, 13, v5')
        a(f'  s_mul_i32 s40, s2, {S*4}')
        if h: a(f'  s_add_u32 s40, s40, {h*4}')
        a(f'  s_mov_b32 s41, {cfg.NTT*4}')
        a('  v_mul_lo_u32 v6, v0, s41')
        a('  buffer_store_dword v5, v6, s[20:23], s40 offen')
        a.label(f'p1_skip2{sfx}')
        a('  s_waitcnt lgkmcnt(0)')
        a('  s_barrier')
        st()
        a('  v_mov_b32 v2, 1')
        a(f'  v_mov_b32 v1, {HIST}')
        a('  s_mov_b64 exec, s[44:45]')
        r0 = h * cfg.RPS * 4
        nrec = cfg.RPS * 4
        batches = [(b, min(8, nrec - b)) for b in range(0, nrec, 8)]
        def rank_issue(bi):
            b, n = batches[bi]
            base = (bi & 1) * 8
            for x in range(n):
                rec = r0 + b + x
                j, hh = rec >> 1, rec & 1
                ad = 4 + (x & 3)
                a(f'  v_add_u32_sdwa v{ad}, v1, v{AUX+j} dst_sel:DWORD dst_unused:UNUSED_PAD src0_sel:DWORD src1_sel:WORD_{hh}')
                a(f'  ds_add_rtn_u32 v{t[base+x]}, v{ad}, v2')
        def rank_pack(bi):
            b, n = batches[bi]
            base = (bi & 1) * 8
            for x in range(0, n, 2):
                j = (r0 + b + x) >> 1
                a(f'  v_lshl_or_b32 v{AUX+j}, v{t[base+x+1]}, 16, v{t[base+x]}')
        rank_issue(0)
        for bi in range(len(batches)):
            if bi + 1 < len(batches):
                rank_issue(bi + 1)
                a(f'  s_waitcnt lgkmcnt({batches[bi+1][1]})')
            else:
                a('  s_waitcnt lgkmcnt(0)')
            rank_pack(bi)
        if opt.get('p1stamp'): st()
        a('  s_mov_b64 exec, -1')
        a(f'  s_mov_b32 s43, {cfg.SLICE}')
        a(f'  s_mov_b32 s41, {cfg.CBASE}')
        a('  s_mov_b32 s40, 0xaaab')
        a('  v_mul_u32_u24 v1, s40, v0')
        a('  v_lshrrev_b32 v1, 17, v1')
        a('  v_mul_u32_u24 v3, 3, v1')
        a('  v_sub_u32 v3, v0, v3')
        a(f'  v_lshlrev_b32 v{t[16]}, 5, v1')
        a(f'  v_lshl_add_u32 v{t[16]}, v3, 4, v{t[16]}')
        a(f'  v_lshlrev_b32 v{t[17]}, 4, v1')
        a(f'  v_add_u32 v{t[17]}, s41, v{t[17]}')
        a('  v_cmp_eq_u32 vcc, 2, v3')
        a(f'  v_mov_b32 v{t[19]}, {336*32}')
        a(f'  v_mov_b32 v1, {336*16}')
        a(f'  v_cndmask_b32 v{t[16]}, v{t[16]}, v{t[17]}, vcc')
        a(f'  v_cndmask_b32 v{t[17]}, v{t[19]}, v1, vcc')
        for s in range(cfg.NSL):
            a('  s_mov_b64 exec, s[44:45]')
            a(f'  s_mov_b32 s42, {s*cfg.SLICE}')
            for x in range(r0, r0 + nrec):
                j, hh = x >> 1, x & 1
                q = 4 + 2 * (x & 1); a0 = q + 1
                creg = W1 + 4 * (x >> 2) + 2 * ((x >> 1) & 1)
                a(f'  v_subrev_u32_sdwa v{q}, s42, v{AUX+j} dst_sel:DWORD dst_unused:UNUSED_PAD src0_sel:DWORD src1_sel:WORD_{hh}')
                a(f'  v_cmpx_gt_u32 vcc, s43, v{q}')
                a(f'  v_lshlrev_b32 v{a0}, 2, v{q}')
                a(f'  v_lshl_add_u32 v{q}, v{q}, 1, s41')
                a(f'  ds_write_b32 v{a0}, v{W0+x}')
                a(f'  ds_write_b16{"_d16_hi" if (x & 1) else ""} v{q}, v{creg}')
                a('  s_mov_b64 exec, s[44:45]')
            a('  s_mov_b64 exec, -1')
            a(f'  s_add_u32 s16, s28, {s*cfg.SLICE_BYTES}')
            a('  s_addc_u32 s17, s29, 0')
            a('  s_and_b32 s17, s17, 0xffff')
            last = (s == cfg.NSL - 1)
            if not last:
                a(f'  s_mov_b32 s18, {cfg.SLICE_BYTES}')
            else:
                a(f'  s_sub_u32 s18, s72, {s*cfg.SLICE}')
                a('  s_mul_i32 s18, s18, 6')
            a('  s_mov_b32 s19, 0x20000')
            a('  v_lshlrev_b32 v1, 4, v0')
            a(f'  v_mov_b32 v3, v{t[16]}')
            a('  s_waitcnt lgkmcnt(0)')
            if opt.get('p1stamp'): st()
            a('  s_barrier')
            for half in range(2):
                for u in range(4):
                    a(f'  ds_read_b128 {vr(t[4*u],4)}, v3')
                    a(f'  v_add_u32 v3, v3, v{t[17]}')
                for u in range(4):
                    a(f'  s_waitcnt lgkmcnt({3-u})')
                    rnd = half * 4 + u
                    so = '0' if rnd == 0 else f's{CO+rnd}'
                    a(f'  buffer_store_dwordx4 {vr(t[4*u],4)}, v1, s[16:19], {so} offen{STF}')
                a('  s_nop 1')
            if not last:
                a('  s_barrier')
                if opt.get('p1stamp'): st()
        st()
    if st.on:
        a('  s_waitcnt vmcnt(0)')
        st()
    st.flush('s24')
    a.label('p1_done')
    a('  s_endpgm')

class RegAlloc:
    def __init__(self, start):
        self.n = start
    def get(self, k=1, align=1):
        self.n = (self.n + align - 1) // align * align
        r = self.n; self.n += k
        return r

def gen_p2(a, opt, cfg):
    st = Stamps(a, bool(opt.get('stamp')), 'p2', 1); st.wave = opt.get('swave', 0)
    b_lag = opt.get('lag', 1)
    R = b_lag + 1
    NG = 8
    RNT = {0: '', 1: ' nt', 2: ' sc1', 3: ' sc0 sc1', 4: ' sc0 sc1 nt', 5: ' sc1 nt'}[opt.get('nt_rec', 0)]
    OTF = {0: '', 1: ' nt', 2: ' sc1', 3: ' sc0 sc1', 4: ' sc0'}[opt.get('out_st', 2)]
    se = opt.get('sync', 2)
    NSEG = 16 * cfg.S
    JPC = 32 // NSEG
    ra = RegAlloc(1)
    J4 = ra.get(); J8 = ra.get(); P = ra.get(); P7 = ra.get(); J2H = ra.get()
    VN = ra.get(); VB = ra.get(); VOFF8 = ra.get(); EE = ra.get()
    SELA = ra.get(); SELB = ra.get(); VDUM = ra.get(); COL = ra.get()
    D = [ra.get(2, 2), ra.get(2, 2)]
    PT = [ra.get(), ra.get()]; LA = [ra.get(), ra.get()]; GAD = [ra.get(), ra.get()]
    YR = [ra.get(), ra.get()]; AB = [ra.get(), ra.get()]
    X = [ra.get() for _ in range(6)]
    VROW4 = ra.get(); VLANE = ra.get()
    WD = ra.get(4, 2); WU = ra.get(4, 2)
    MM = ra.get(10, 2)
    GG = ra.get(20, 2)
    HH = ra.get(10, 2)
    main0 = ra.n
    RW = [ra.get() for _ in range(R)]; RC = [ra.get() for _ in range(R)]
    VV = [ra.get() for _ in range(R)]
    CC = [ra.get() for _ in range(R)]
    ROW = [ra.get() for _ in range(R)]
    G = [ra.get(NG) for _ in range(R)]
    maxv = ra.n
    rp = RegAlloc(G[0])
    WSt = rp.get(2, 2); WRt = rp.get(2, 2); CEN = rp.get(2); DI = rp.get(5); RBp = rp.get(2, 2)
    assert rp.n <= G[0] + NG * R, (rp.n, G[0] + NG*R)
    HT = D[0]
    ra2 = RegAlloc(main0)
    Sg = ra2.get(8, 2); SF = ra2.get(4, 2); BT = ra2.get(4, 2); Y = ra2.get(4, 2); Z = ra2.get(4, 2)
    maxv = max(maxv, ra2.n)
    assert maxv <= 128, maxv
    a('.p2align 8')
    a('.type p2_kernel,@function')
    a.label('p2_kernel')
    a('  s_cmp_ge_u32 s2, 256')
    a('  s_cbranch_scc1 p2_done')
    a('  s_load_dwordx2 s[28:29], s[0:1], 104')
    a('  s_load_dwordx2 s[32:33], s[0:1], 0')
    a('  s_load_dwordx2 s[34:35], s[0:1], 24')
    a('  s_load_dwordx2 s[36:37], s[0:1], 40')
    a('  s_load_dwordx4 s[40:43], s[0:1], 56')
    a('  s_load_dwordx4 s[44:47], s[0:1], 72')
    a('  s_load_dwordx2 s[48:49], s[0:1], 88')
    a('  v_readfirstlane_b32 s24, v0')
    a(f'  v_and_b32 v{VLANE}, 63, v0')
    a(f'  v_and_b32 v{P}, 15, v0')
    a('  s_lshr_b32 s24, s24, 6')
    a(f'  v_lshrrev_b32 v{X[0]}, 1, v{VLANE}')
    a(f'  v_and_b32 v{X[1]}, {NSEG-1}, v{X[0]}')
    a(f'  s_mul_i32 s25, s2, {cfg.NTT}')
    a(f'  s_mul_i32 s26, s24, {NSEG}')
    a('  s_add_u32 s25, s25, s26')
    a('  s_lshl_b32 s25, s25, 2')
    a(f'  v_lshlrev_b32 v{X[2]}, 2, v{X[1]}')
    a(f'  v_lshrrev_b32 v{VROW4}, 4, v{VLANE}')
    a('  s_waitcnt lgkmcnt(0)')
    srd(a, 12, 28, cfg.TAB_BYTES)
    a(f'  buffer_load_dword v{VN}, v{X[2]}, s[12:15], s25 offen')
    st()
    srd(a, 4, 32, E * 32)
    srd(a, 20, 34, E * 2)
    npf = 0
    a(f'  v_lshlrev_b32 v{X[3]}, 1, v{P}')
    a(f'  v_lshl_add_u32 v{X[4]}, v{VROW4}, 7, v{X[3]}')
    WTMP = [YR[0], YR[1], AB[0], AB[1], PT[0], PT[1], LA[0], LA[1]]
    for q in range(4):
        a(f'  global_load_ushort v{WTMP[q]}, v{X[4]}, s[44:45] offset:{q*32}'); npf += 1
    for q in range(4):
        a(f'  global_load_ushort v{WTMP[4+q]}, v{X[4]}, s[46:47] offset:{q*32}'); npf += 1
    a(f'  v_lshl_add_u32 v{X[4]}, v{VROW4}, 5, v{X[3]}')
    WT2 = [GAD[0], GAD[1], COL, EE]
    for q in range(2):
        a(f'  global_load_ushort v{WT2[q]}, v{X[4]}, s[42:43] offset:{q*128}'); npf += 1
    for q in range(2):
        a(f'  global_load_ushort v{WT2[2+q]}, v{X[4]}, s[40:41] offset:{q*128}'); npf += 1
    a(f'  v_lshlrev_b32 v{X[4]}, 1, v{VROW4}')
    for q in range(2):
        a(f'  global_load_ushort v{CEN+q}, v{X[4]}, s[36:37] offset:{q*8}'); npf += 1
    a(f'  s_lshl_b32 s27, s2, 4')
    for u in range(5):
        a(f'  s_add_u32 s26, s24, {16*u}')
        a('  s_lshl_b32 s26, s26, 12')
        a('  s_add_u32 s26, s26, s27')
        a(f'  s_mov_b32 s{70+u}, s26')
        a(f'  v_add_u32 v{X[3]}, s26, v{P}')
        a(f'  v_lshlrev_b32 v{X[4]}, 1, v{X[3]}')
        a(f'  buffer_load_ushort v{DI+u}, v{X[4]}, s[20:23], 0 offen'); npf += 1
    for u in range(5):
        a(f'  v_add_u32 v{X[3]}, s{70+u}, v{P}')
        a(f'  v_lshlrev_b32 v{X[4]}, 5, v{X[3]}')
        a(f'  v_lshl_add_u32 v{X[4]}, v{VROW4}, 3, v{X[4]}')
        a(f'  buffer_load_dwordx2 {vr(MM+2*u,2)}, v{X[4]}, s[4:7], 0 offen'); npf += 1
    nm = 5
    if opt.get('warm', 0):
        a('  s_cmp_ge_u32 s24, 8')
        a('  s_cbranch_scc1 p2_nowarm')
        a('  s_lshr_b32 s26, s2, 3')
        a('  s_lshl_b32 s26, s26, 3')
        a('  s_add_u32 s26, s26, s24')
        a('  s_lshl_b32 s26, s26, 13')
        a(f'  v_lshlrev_b32 v{X[4]}, 7, v{VLANE}')
        a(f'  buffer_load_dword v{VDUM}, v{X[4]}, s[4:7], s26 offen')
        a.label('p2_nowarm')
    a(f'  s_add_u32 s8, s28, {cfg.REC_OFF}')
    a('  s_addc_u32 s9, s29, 0')
    a('  s_and_b32 s9, s9, 0xffff')
    a(f'  s_mov_b32 s10, {cfg.REC_BYTES}')
    a('  s_mov_b32 s11, 0x20000')
    srd(a, 16, 48, E * 32)
    a(f'  v_lshlrev_b32 v{X[3]}, 4, v0')
    for r in (D[0], D[0]+1, D[1], D[1]+1):
        a(f'  v_mov_b32 v{r}, 0')
    assert D[1] == D[0] + 2
    a(f'  v_add_u32 v{X[4]}, 0x10000, v{X[3]}')
    a(f'  v_add_u32 v{X[5]}, 0x20000, v{X[3]}')
    for i in range(4):
        a(f'  ds_write_b128 v{X[3]}, {vr(D[0],4)} offset:{i*16384}')
    for i in range(4):
        a(f'  ds_write_b128 v{X[4]}, {vr(D[0],4)} offset:{i*16384}')
    for i in range(2):
        a(f'  ds_write_b128 v{X[5]}, {vr(D[0],4)} offset:{i*16384}')
    a(f'  v_and_b32 v{P7}, 7, v0')
    a(f'  v_lshlrev_b32 v{J4}, 2, v{P7}')
    a(f'  v_lshlrev_b32 v{J8}, 3, v{P}')
    a(f'  v_lshlrev_b32 v{J2H}, 1, v{P7}')
    a(f'  v_cmp_gt_u32 vcc, 8, v{P}')
    a(f'  v_mov_b32 v{X[3]}, 0x03020c0c')
    a(f'  v_mov_b32 v{X[4]}, 0x05040c0c')
    a(f'  v_cndmask_b32 v{SELA}, v{X[3]}, v{X[4]}, vcc')
    a(f'  v_mov_b32 v{X[3]}, 0x07060c0c')
    a(f'  v_mov_b32 v{X[4]}, 0x01000c0c')
    a(f'  v_cndmask_b32 v{SELB}, v{X[3]}, v{X[4]}, vcc')
    a(f'  v_and_b32 v{VOFF8}, 1, v{VLANE}')
    a(f'  v_lshlrev_b32 v{VOFF8}, 3, v{VOFF8}')
    if JPC > 1:
        a(f'  v_lshrrev_b32 v{X[3]}, {1 + int(math.log2(NSEG))}, v{VLANE}')
        a(f'  v_lshl_add_u32 v{VOFF8}, v{X[3]}, 4, v{VOFF8}')
    a(f'  s_mul_i32 s26, s24, {NSEG}')
    a(f'  v_add_u32 v{X[0]}, s26, v{X[1]}')
    a(f'  s_mov_b32 s27, {cfg.TILE_BYTES}')
    a(f'  v_mul_lo_u32 v{X[0]}, v{X[0]}, s27')
    a('  s_mov_b32 s52, 0xfffffff0')
    a('  s_mov_b32 s53, 0xffff0000')
    a('  s_mov_b32 s54, 0x3ff80')
    a('  s_mov_b32 s55, 0xffffe0')
    a(f'  s_waitcnt vmcnt({npf})')
    if opt.get('pstamp'): st()
    a(f'  v_lshrrev_b32 v{VB}, 16, v{VN}')
    a(f'  v_and_b32 v{VN}, 0xffff, v{VN}')
    a(f'  v_mad_u32_u24 v{VB}, v{VB}, 48, v{X[0]}')
    a(f'  v_mov_b32 v{X[0]}, v{VN}')
    for sh in (1, 2, 4, 8):
        a('  s_nop 1')
        a(f'  v_max_u32_dpp v{X[0]}, v{X[0]}, v{X[0]} row_ror:{sh} row_mask:0xf bank_mask:0xf')
    a('  s_nop 1')
    for i, ln in enumerate((0, 16, 32, 48)):
        a(f'  v_readlane_b32 s{56+i}, v{X[0]}, {ln}')
    a('  s_nop 3')
    a('  s_max_u32 s56, s56, s57')
    a('  s_max_u32 s58, s58, s59')
    a('  s_max_u32 s50, s56, s58')
    a('  s_mov_b32 s51, 0')
    a('  s_mov_b32 s56, 0')
    a('  s_mov_b32 s64, 0')
    if se:
        a(f'  s_mov_b32 s69, {opt.get("nsync", 38 // se)}')
    a(f'  s_waitcnt vmcnt({nm})')
    if opt.get('pstamp'): st()
    a(f'  v_lshl_or_b32 v{WD}, v{WTMP[1]}, 16, v{WTMP[0]}')
    a(f'  v_lshl_or_b32 v{WD+1}, v{WTMP[3]}, 16, v{WTMP[2]}')
    a(f'  v_lshl_or_b32 v{WU}, v{WTMP[5]}, 16, v{WTMP[4]}')
    a(f'  v_lshl_or_b32 v{WU+1}, v{WTMP[7]}, 16, v{WTMP[6]}')
    a(f'  v_lshl_or_b32 v{WSt}, v{WT2[1]}, 16, v{WT2[0]}')
    a(f'  v_lshl_or_b32 v{WRt}, v{WT2[3]}, 16, v{WT2[2]}')
    a(f'  v_mov_b32 v{WD+2}, v{WD}')
    a(f'  v_mov_b32 v{WD+3}, v{WD+1}')
    a(f'  v_mov_b32 v{WU+2}, v{WU}')
    a(f'  v_mov_b32 v{WU+3}, v{WU+1}')
    a(f'  v_mov_b32 v{WSt+1}, 0')
    a(f'  v_mov_b32 v{WRt+1}, 0')
    a(f'  v_mov_b32 v{RBp+1}, 0')
    a(f'  v_lshlrev_b32 v{CEN}, 16, v{CEN}')
    a(f'  v_lshlrev_b32 v{CEN+1}, 16, v{CEN+1}')
    uid = [0]
    def stageA(b):
        u = uid[0]; uid[0] += 1
        a.label(f'p2_chk{u}')
        a('  s_cmp_lg_u32 s56, 0')
        a(f'  s_cbranch_scc1 p2_go{u}')
        a('  s_cmp_ge_u32 s51, s50')
        a(f'  s_cbranch_scc1 p2_exh{u}')
        a(f'  v_add_u32 v{X[0]}, s51, v{VOFF8}')
        a(f'  v_cmp_gt_u32 vcc, v{VN}, v{X[0]}')
        a(f'  v_sub_u32 v{X[1]}, v{VN}, v{X[0]}')
        a(f'  v_min_u32 v{X[1]}, 8, v{X[1]}')
        a(f'  v_mad_u32_u24 v{X[2]}, v{X[0]}, 6, v{VB}')
        a(f'  v_or_b32 v{X[2]}, v{X[2]}, v{X[1]}')
        a(f'  s_bcnt1_i32_b64 s67, vcc')
        a(f'  v_mbcnt_lo_u32_b32 v{X[3]}, vcc_lo, 0')
        a(f'  v_mbcnt_hi_u32_b32 v{X[3]}, vcc_hi, v{X[3]}')
        a(f'  v_sub_u32 v{X[4]}, v{VLANE}, v{X[3]}')
        a(f'  v_add_u32 v{X[4]}, s67, v{X[4]}')
        a(f'  v_cndmask_b32 v{X[4]}, v{X[4]}, v{X[3]}, vcc')
        a(f'  v_cndmask_b32 v{X[2]}, 0, v{X[2]}, vcc')
        a(f'  v_and_b32 v{X[5]}, 6, v{X[4]}')
        a(f'  v_lshlrev_b32 v{X[5]}, 5, v{X[5]}')
        a(f'  v_and_or_b32 v{X[5]}, v{X[4]}, -8, v{X[5]}')
        a(f'  v_and_b32 v{X[4]}, 1, v{X[4]}')
        a(f'  v_lshl_or_b32 v{X[5]}, v{X[4]}, 2, v{X[5]}')
        a(f'  ds_permute_b32 v{EE}, v{X[5]}, v{X[2]}')
        a('  s_add_u32 s56, s67, 7')
        a('  s_lshr_b32 s56, s56, 3')
        a('  s_add_u32 s64, s64, s56')
        a(f'  s_add_u32 s51, s51, {16*JPC}')
        a('  s_waitcnt lgkmcnt(0)')
        a(f'  s_branch p2_go{u}')
        a.label(f'p2_exh{u}')
        a(f'  v_mov_b32 v{EE}, 0')
        a('  s_mov_b32 s56, 1')
        a('  s_nop 0')
        a.label(f'p2_go{u}')
        a('  s_sub_u32 s56, s56, 1')
        a(f'  v_mov_b32_dpp v{X[0]}, v{EE} row_newbcast:0 row_mask:0xf bank_mask:0x3')
        a(f'  v_mov_b32_dpp v{X[0]}, v{EE} row_newbcast:1 row_mask:0xf bank_mask:0xc')
        a(f'  v_mov_b32_dpp v{EE}, v{EE} row_shl:2 row_mask:0xf bank_mask:0xf bound_ctrl:0')
        a(f'  v_and_b32 v{X[1]}, s52, v{X[0]}')
        a(f'  v_and_b32 v{VV[b]}, 15, v{X[0]}')
        a(f'  v_add_u32 v{X[0]}, v{X[1]}, v{J4}')
        a(f'  v_add_u32 v{X[1]}, v{X[1]}, v{J2H}')
        a(f'  buffer_load_dword v{RW[b]}, v{X[0]}, s[8:11], 0 offen{RNT}')
        a(f'  buffer_load_short_d16_hi v{RC[b]}, v{X[1]}, s[8:11], 0 offen offset:32{RNT}')
    def decode(b):
        a(f'  v_cmp_gt_u32 vcc, v{VV[b]}, v{P7}')
        a(f'  v_lshlrev_b32 v{X[2]}, 5, v{RW[b]}')
        a(f'  v_lshrrev_b32 v{X[3]}, 12, v{RW[b]}')
        a(f'  v_and_b32 v{CC[b]}, s53, v{RC[b]}')
        a(f'  v_and_b32 v{X[2]}, s55, v{X[2]}')
        a(f'  v_and_b32 v{X[3]}, s54, v{X[3]}')
        a(f'  v_cndmask_b32 v{COL}, 0, v{X[2]}, vcc')
        if opt.get('colmask'):
            a(f'  v_and_b32 v{COL}, {opt["colmask"]}, v{COL}')
        a(f'  v_cndmask_b32 v{ROW[b]}, v{VDUM}, v{X[3]}, vcc')
        a('  s_nop 0')
    def gather(b, g):
        ad = GAD[g & 1]
        a(f'  v_add_u32_dpp v{ad}, v{COL}, v{J4} row_newbcast:{2*g} row_mask:0xf bank_mask:0x3')
        a(f'  v_add_u32_dpp v{ad}, v{COL}, v{J4} row_newbcast:{2*g+1} row_mask:0xf bank_mask:0xc')
        GF = {0: '', 1: ' sc0', 2: ' sc1', 3: ' nt'}[opt.get('gflag', 0)]
        a(f'  buffer_load_dword v{G[b]+g}, v{ad}, s[4:7], 0 offen{GF}')
    def consume(b, g):
        x = G[b] + g; y = YR[g & 1]
        a(f'  v_mov_b32_dpp v{y}, v{x} row_ror:8 row_mask:0xf bank_mask:0xf')
        a(f'  v_add_u32_dpp v{LA[0]}, v{ROW[b]}, v{J8} row_newbcast:{2*g} row_mask:0xf bank_mask:0xf')
        a(f'  v_add_u32_dpp v{LA[1]}, v{ROW[b]}, v{J8} row_newbcast:{2*g+1} row_mask:0xf bank_mask:0xf')
        a(f'  v_perm_b32 v{AB[0]}, v{x}, v{y}, v{SELA}')
        a(f'  v_perm_b32 v{AB[1]}, v{x}, v{y}, v{SELB}')
        a(f'  v_mul_f32_dpp v{PT[0]}, v{CC[b]}, v{AB[0]} row_newbcast:{2*g} row_mask:0xf bank_mask:0xf')
        a(f'  v_mul_f32_dpp v{PT[1]}, v{CC[b]}, v{AB[1]} row_newbcast:{2*g+1} row_mask:0xf bank_mask:0xf')
        a(f'  v_cvt_f64_f32 {vr(D[0],2)}, v{PT[0]}')
        a(f'  v_cvt_f64_f32 {vr(D[1],2)}, v{PT[1]}')
        if not opt.get('no_ds'):
            a(f'  ds_add_f64 v{LA[0]}, {vr(D[0],2)}')
            a(f'  ds_add_f64 v{LA[1]}, {vr(D[1],2)}')
    for t in range(-2*b_lag, -b_lag):
        stageA((t + 2*b_lag) % R)
    first = True
    for t in range(-b_lag, 0):
        stageA((t + 2*b_lag) % R)
        if first:
            first = False
            a('  s_mov_b32 s76, 0xc1200000')
            a('  s_mov_b32 s77, 0x3fb8aa3b')
            for u in range(5):
                a(f'  v_lshlrev_b32 v{X[1]}, 16, v{DI+u}')
                a(f'  v_sub_f32 v{X[2]}, v{X[1]}, v{CEN}')
                a(f'  v_sub_f32 v{X[3]}, v{X[1]}, v{CEN+1}')
                def rnd2():
                    a(f'  v_cvt_pk_bf16_f32 v{X[4]}, v{X[2]}, v{X[3]}')
                    a(f'  v_lshlrev_b32 v{X[2]}, 16, v{X[4]}')
                    a(f'  v_and_b32 v{X[3]}, s53, v{X[4]}')
                rnd2()
                a(f'  v_mul_f32 v{X[2]}, v{X[2]}, v{X[2]}')
                a(f'  v_mul_f32 v{X[3]}, v{X[3]}, v{X[3]}')
                rnd2()
                a(f'  v_mul_f32 v{X[2]}, s76, v{X[2]}')
                a(f'  v_mul_f32 v{X[3]}, s76, v{X[3]}')
                rnd2()
                a(f'  v_mul_f32 v{X[2]}, s77, v{X[2]}')
                a(f'  v_mul_f32 v{X[3]}, s77, v{X[3]}')
                a(f'  v_exp_f32 v{X[2]}, v{X[2]}')
                a(f'  v_exp_f32 v{X[3]}, v{X[3]}')
                a('  s_nop 0')
                a(f'  v_cvt_pk_bf16_f32 v{RBp}, v{X[2]}, v{X[3]}')
                a('  s_nop 1')
                a(f'  v_mfma_f32_16x16x16_bf16 {vr(GG+4*u,4)}, {vr(WSt,2)}, {vr(RBp,2)}, 0')
                a(f'  v_mfma_f32_16x16x16_bf16 {vr(HT,4)}, {vr(WRt,2)}, {vr(RBp,2)}, 0')
                a('  s_nop 7')
                a('  s_nop 1')
                a(f'  v_cvt_pk_bf16_f32 v{HH+2*u}, v{HT}, v{HT+1}')
                a(f'  v_cvt_pk_bf16_f32 v{HH+2*u+1}, v{HT+2}, v{HT+3}')
        if opt.get('pstamp') and t == -b_lag: st()
        a(f'  s_waitcnt vmcnt({2*b_lag + NG*(t + b_lag)})')
        if opt.get('pstamp') and t == -b_lag: st()
        if t == -b_lag:
            a(f'  v_mov_b32 v{VDUM}, {DUMMY_ROW*128}')
        decode((t + b_lag) % R)
        for g in range(NG):
            gather((t + b_lag) % R, g)
    a('  s_waitcnt lgkmcnt(0)')
    a('  s_barrier')
    st()
    if opt.get('prio'):
        pr = opt['prio']
        if pr == 1:
            a('  s_cmp_lt_u32 s24, 8')
            a('  s_cbranch_scc1 p2_noprio')
            a('  s_setprio 1')
            a.label('p2_noprio')
        if pr == 2:
            a('  s_cmp_lt_u32 s24, 4')
            a('  s_cbranch_scc1 p2_noprio')
            a('  s_setprio 1')
            a('  s_cmp_lt_u32 s24, 8')
            a('  s_cbranch_scc1 p2_noprio')
            a('  s_setprio 2')
            a('  s_cmp_lt_u32 s24, 12')
            a('  s_cbranch_scc1 p2_noprio')
            a('  s_setprio 3')
            a.label('p2_noprio')
    a('  s_cmp_eq_u32 s64, 0')
    a('  s_cbranch_scc1 p2_loop_exit')
    a.label('p2_loop')
    U = R
    if se and se > R and se % R == 0:
        U = se
    for t in range(U):
        tb = t % R
        stageA((tb + 2*b_lag) % R)
        a(f'  s_waitcnt vmcnt({(NG+2)*b_lag})')
        decode((tb + b_lag) % R)
        for g in range(NG):
            gather((tb + b_lag) % R, g)
            a(f'  s_waitcnt vmcnt({(NG+2)*b_lag})')
            consume(tb, g)
        if se and (t % se) == se - 1:
            a('  s_cmp_eq_u32 s69, 0')
            a(f'  s_cbranch_scc1 p2_nosync{t}')
            a('  s_barrier')
            a('  s_sub_u32 s69, s69, 1')
            a.label(f'p2_nosync{t}')
        a('  s_sub_u32 s64, s64, 1')
        a('  s_cmp_eq_u32 s64, 0')
        if t < U - 1:
            a('  s_cbranch_scc1 p2_loop_exit')
        else:
            a('  s_cbranch_scc0 p2_loop')
    a.label('p2_loop_exit')
    if se:
        a.label('p2_owed')
        a('  s_cmp_eq_u32 s69, 0')
        a('  s_cbranch_scc1 p2_owed_done')
        a('  s_barrier')
        a('  s_sub_u32 s69, s69, 1')
        a('  s_branch p2_owed')
        a.label('p2_owed_done')
    st()
    a('  s_waitcnt vmcnt(0) lgkmcnt(0)')
    a('  s_barrier')
    st()
    def split4(src):
        a(f'  v_cvt_pk_bf16_f32 v{BT}, v{src}, v{src+1}')
        a(f'  v_cvt_pk_bf16_f32 v{BT+1}, v{src+2}, v{src+3}')
        a(f'  v_lshlrev_b32 v{X[0]}, 16, v{BT}')
        a(f'  v_and_b32 v{X[1]}, s53, v{BT}')
        a(f'  v_lshlrev_b32 v{X[2]}, 16, v{BT+1}')
        a(f'  v_and_b32 v{X[3]}, s53, v{BT+1}')
        for q in range(4):
            a(f'  v_sub_f32 v{X[q]}, v{src+q}, v{X[q]}')
        a(f'  v_cvt_pk_bf16_f32 v{BT+2}, v{X[0]}, v{X[1]}')
        a(f'  v_cvt_pk_bf16_f32 v{BT+3}, v{X[2]}, v{X[3]}')
        a('  s_nop 1')
    for u in range(5):
        a(f'  s_cmp_ge_u32 s{70+u}, {E}')
        a(f'  s_cbranch_scc1 p2_epi_skip{u}')
        a(f'  s_add_u32 s26, s24, {16*u}')
        a('  s_lshl_b32 s26, s26, 11')
        a(f'  v_lshlrev_b32 v{X[0]}, 7, v{P}')
        a(f'  v_lshl_add_u32 v{X[0]}, v{VROW4}, 4, v{X[0]}')
        a(f'  v_add_u32 v{X[0]}, s26, v{X[0]}')
        a(f'  ds_read_b128 {vr(Sg,4)}, v{X[0]}')
        a(f'  ds_read_b128 {vr(Sg+4,4)}, v{X[0]} offset:64')
        a('  s_waitcnt lgkmcnt(0)')
        order = [0, 2, 1, 3]
        for i in range(4):
            a(f'  v_cvt_f32_f64 v{SF+order[i]}, {vr(Sg+2*i,2)}')
        split4(SF)
        a(f'  v_mfma_f32_16x16x32_bf16 {vr(Y,4)}, {vr(WD,4)}, {vr(BT,4)}, 0')
        a('  s_nop 7')
        a('  s_nop 1')
        for q in range(4):
            a(f'  v_mul_f32 v{Y+q}, v{Y+q}, v{GG+4*u+q}')
        split4(Y)
        a(f'  v_mfma_f32_16x16x32_bf16 {vr(Z,4)}, {vr(WU,4)}, {vr(BT,4)}, 0')
        a(f'  v_lshlrev_b32 v{SF}, 16, v{HH+2*u}')
        a(f'  v_and_b32 v{SF+1}, s53, v{HH+2*u}')
        a(f'  v_lshlrev_b32 v{SF+2}, 16, v{HH+2*u+1}')
        a(f'  v_and_b32 v{SF+3}, s53, v{HH+2*u+1}')
        a(f'  v_lshlrev_b32 v{Y}, 16, v{MM+2*u}')
        a(f'  v_and_b32 v{Y+1}, s53, v{MM+2*u}')
        a(f'  v_lshlrev_b32 v{Y+2}, 16, v{MM+2*u+1}')
        a(f'  v_and_b32 v{Y+3}, s53, v{MM+2*u+1}')
        a('  s_nop 1')
        a(f'  v_cvt_pk_bf16_f32 v{X[0]}, v{Z}, v{Z+1}')
        a(f'  v_cvt_pk_bf16_f32 v{X[1]}, v{Z+2}, v{Z+3}')
        a(f'  v_lshlrev_b32 v{Z}, 16, v{X[0]}')
        a(f'  v_and_b32 v{Z+1}, s53, v{X[0]}')
        a(f'  v_lshlrev_b32 v{Z+2}, 16, v{X[1]}')
        a(f'  v_and_b32 v{Z+3}, s53, v{X[1]}')
        for q in range(4):
            a(f'  v_mul_f32 v{Z+q}, v{Z+q}, v{SF+q}')
        a(f'  v_cvt_pk_bf16_f32 v{X[0]}, v{Z}, v{Z+1}')
        a(f'  v_cvt_pk_bf16_f32 v{X[1]}, v{Z+2}, v{Z+3}')
        a(f'  v_lshlrev_b32 v{Z}, 16, v{X[0]}')
        a(f'  v_and_b32 v{Z+1}, s53, v{X[0]}')
        a(f'  v_lshlrev_b32 v{Z+2}, 16, v{X[1]}')
        a(f'  v_and_b32 v{Z+3}, s53, v{X[1]}')
        for q in range(4):
            a(f'  v_add_f32 v{Z+q}, v{Z+q}, v{Y+q}')
        a(f'  v_cvt_pk_bf16_f32 v{Z}, v{Z}, v{Z+1}')
        a(f'  v_cvt_pk_bf16_f32 v{Z+1}, v{Z+2}, v{Z+3}')
        a(f'  v_add_u32 v{X[3]}, s{70+u}, v{P}')
        a(f'  v_lshlrev_b32 v{X[4]}, 5, v{X[3]}')
        a(f'  v_lshl_add_u32 v{X[4]}, v{VROW4}, 3, v{X[4]}')
        a(f'  buffer_store_dwordx2 {vr(Z,2)}, v{X[4]}, s[16:19], 0 offen{OTF}')
        a.label(f'p2_epi_skip{u}')
    if st.on:
        a('  s_waitcnt vmcnt(0)')
        st()
    st.flush('s24')
    a.label('p2_done')
    a('  s_endpgm')
    return maxv

def descriptor(a, name, vgpr, sgpr):
    a(f'.amdhsa_kernel {name}')
    a(f'  .amdhsa_next_free_vgpr {vgpr}')
    a(f'  .amdhsa_next_free_sgpr {sgpr}')
    a(f'  .amdhsa_accum_offset {(vgpr + 3) // 4 * 4}')
    a('  .amdhsa_group_segment_fixed_size 0')
    a('  .amdhsa_kernarg_size 112')
    a('  .amdhsa_user_sgpr_count 2')
    a('  .amdhsa_user_sgpr_kernarg_segment_ptr 1')
    a('  .amdhsa_system_sgpr_workgroup_id_x 1')
    a('  .amdhsa_float_denorm_mode_32 3')
    a('.end_amdhsa_kernel')

HEADER = '''; Kernarg layout (112 bytes, ptrs only, base s[0:1]):
; @launch kernel=p1_kernel grid=(256,1,1) block=(1024,1,1) lds=163840
; @launch kernel=p2_kernel grid=(256,1,1) block=(1024,1,1) lds=163840
.amdgcn_target "amdgcn-amd-amdhsa--gfx950"
.text
.globl p1_kernel
.globl p2_kernel
'''

def build(opt):
    cfg = Cfg(opt)
    a = Asm()
    a(HEADER.rstrip('\n'))
    gen_p1(a, opt, cfg)
    v2 = gen_p2(a, opt, cfg)
    a('.section .rodata,"a"')
    a('.p2align 6')
    ns = 102 if opt.get('stamp') else 80
    descriptor(a, 'p1_kernel', 128, ns)
    a('.p2align 6')
    descriptor(a, 'p2_kernel', v2, ns)
    return a.text()

if __name__ == '__main__':
    out = sys.argv[1] if len(sys.argv) > 1 else 'standalone__molecular_angular_gemnet__graph.s'
    opt = {}
    for kv in sys.argv[2:]:
        k, v = kv.split('=')
        opt[k] = int(v) if v.lstrip('-').isdigit() else v
    open(out, 'w').write(build(opt))
    print('wrote', out)
```

```python
import struct, sys, math

def f32bits(x):
    return struct.unpack('<I', struct.pack('<f', x))[0]
def bits2f(b):
    return struct.unpack('<f', struct.pack('<I', b))[0]

E = 320000
T = 10240000
NWG = 256
import os
KSH = int(os.environ.get('KSH', 14))
NK = (E + (1 << KSH) - 1) >> KSH
HIST = 131072
TMP = HIST + NK * 1024
DUMMY_ROW = 1264

class Cfg:
    def __init__(self, opt):
        self.S = 1
        self.NTT = NWG
        self.SUB = 40000
        self.RPS = 10
        self.SLICE = 21504
        self.CBASE = self.SLICE * 4
        self.SLICE_BYTES = self.SLICE * 6
        maxpad = self.SUB + 256 * 7
        assert maxpad <= 2 * self.SLICE and self.SUB > self.SLICE
        self.TILE_BYTES = (maxpad * 6 + 127) // 128 * 128
        self.TAB_BYTES = 256 * self.NTT * 4
        self.REC_OFF = self.TAB_BYTES
        self.REC_BYTES = self.NTT * self.TILE_BYTES
        self.NSL = 2

class Asm:
    def __init__(self):
        self.lines = []
    def __call__(self, s=''):
        for l in s.split('\n'):
            self.lines.append(l)
    def label(self, s):
        self.lines.append(s + ':')
    def text(self):
        return '\n'.join(self.lines) + '\n'

def vr(a, n=1):
    return f'v{a}' if n == 1 else f'v[{a}:{a+n-1}]'

def srd(a, d, ptr, size):
    a(f'  s_mov_b32 s{d}, s{ptr}')
    a(f'  s_and_b32 s{d+1}, s{ptr+1}, 0xffff')
    a(f'  s_mov_b32 s{d+2}, {size}')
    a(f'  s_mov_b32 s{d+3}, 0x20000')

class Stamps:
    def __init__(self, a, on, name, slot):
        self.a = a; self.on = on; self.n = 0; self.name = name; self.slot = slot; self.wave = 0
    def __call__(self):
        if not self.on: return
        a = self.a
        a('  s_memtime s[80:81]')
        a('  s_memrealtime s[82:83]')
        a('  s_waitcnt lgkmcnt(0)')
        a(f'  s_mov_b32 s{84+2*self.n}, s80')
        a(f'  s_mov_b32 s{85+2*self.n}, s82')
        self.n += 1
        assert self.n <= 9
    def flush(self, wavereg):
        if not self.on: return
        a = self.a
        a(f'  s_cmp_lg_u32 {wavereg}, {self.wave}')
        a(f'  s_cbranch_scc1 {self.name}_nostamp')
        a('  s_load_dwordx2 s[80:81], s[0:1], 104')
        a('  s_waitcnt lgkmcnt(0)')
        a(f'  s_add_u32 s80, s80, {200*1048576 + self.slot*65536}')
        a('  s_addc_u32 s81, s81, 0')
        a('  s_lshl_b32 s82, s2, 7')
        a('  v_mov_b32 v1, s82')
        for i in range(2*self.n):
            a(f'  v_mov_b32 v2, s{84+i}')
            a(f'  global_store_dword v1, v2, s[80:81] offset:{4*i}')
        a.label(f'{self.name}_nostamp')

def gen_p1(a, opt, cfg):
    st = Stamps(a, bool(opt.get('stamp')), 'p1', 0)
    NTF = ' nt' if opt.get('nt_in', 1) else ''
    STF = {0: '', 1: ' nt', 2: ' sc1', 3: ' sc0 sc1', 4: ' sc0'}[opt.get('nt_st', 2)]
    S = cfg.S
    W0, W1, AUX = 8, 48, 88
    CO = 32
    t = [108 + i for i in range(20)]
    inv2pi = 1.0 / (2.0 * math.pi)
    chi_bits = f32bits(inv2pi) & 0xffffff00
    clo_bits = f32bits(inv2pi - bits2f(chi_bits))
    a('.p2align 8')
    a('.type p1_kernel,@function')
    a.label('p1_kernel')
    a('  s_cmp_ge_u32 s2, 256')
    a('  s_cbranch_scc1 p1_done')
    a('  s_load_dwordx4 s[32:35], s[0:1], 8')
    a('  s_load_dwordx2 s[36:37], s[0:1], 32')
    a('  s_load_dwordx2 s[38:39], s[0:1], 48')
    a('  s_load_dwordx2 s[28:29], s[0:1], 104')
    a('  s_load_dwordx2 s[74:75], s[0:1], 0')
    a('  v_lshlrev_b32 v1, 4, v0')
    a(f'  v_add_u32 v2, {HIST}, v1')
    for r in range(4, 8):
        a(f'  v_mov_b32 v{r}, 0')
    a('  ds_write_b128 v2, v[4:7]')
    a('  ds_write_b128 v2, v[4:7] offset:16384')
    IL = opt.get('ilv', 0)
    a(f'  s_mul_i32 s40, s2, {16000 if IL else 160000}')
    a(f'  s_mul_i32 s41, s2, {8000 if IL else 80000}')
    a('  v_add_u32 v1, s40, v1')
    a('  v_lshlrev_b32 v3, 3, v0')
    a('  v_add_u32 v3, s41, v3')
    a('  v_readfirstlane_b32 s24, v0')
    a('  v_cmp_gt_u32 vcc, 1000, v0')
    a('  s_lshr_b32 s24, s24, 6')
    a('  s_mov_b64 s[44:45], vcc')
    for i in range(1, 10):
        a(f'  s_mov_b32 s{45+i}, {i*16000*(256 if IL else 1)}')
        a(f'  s_mov_b32 s{55+i}, {i*8000*(256 if IL else 1)}')
    a('  s_waitcnt lgkmcnt(0)')
    a('  s_load_dword s26, s[38:39], 0')
    srd(a, 4, 32, T * 4)
    srd(a, 8, 34, T * 4)
    srd(a, 12, 36, T * 2)
    st()
    a('  s_mov_b64 exec, s[44:45]')
    def issue_round(i):
        so = '0' if i == 0 else f's{45+i}'
        sa = '0' if i == 0 else f's{55+i}'
        a(f'  buffer_load_dwordx4 {vr(W0+4*i,4)}, v1, s[4:7], {so} offen{NTF}')
        a(f'  buffer_load_dwordx4 {vr(W1+4*i,4)}, v1, s[8:11], {so} offen{NTF}')
        a(f'  buffer_load_dwordx2 {vr(AUX+2*i,2)}, v3, s[12:15], {sa} offen{NTF}')
    AHEAD = opt.get('ahead', 2)
    for i in range(AHEAD):
        issue_round(i)
    issued = AHEAD
    a('  s_mov_b32 s27, 0xffff0000')
    a(f'  s_mov_b32 s30, {chi_bits:#x}')
    a(f'  s_mov_b32 s31, {clo_bits:#x}')
    a(f'  s_mov_b32 s42, {HIST}')
    a('  s_mov_b32 s43, 0x3fc')
    a('  v_mov_b32 v2, 1')
    srd(a, 20, 28, cfg.TAB_BYTES)
    srd(a, 76, 74, E * 32)
    a(f'  s_mul_i32 s40, s2, {S * cfg.TILE_BYTES}')
    a('  s_add_u32 s28, s28, s40')
    a('  s_addc_u32 s29, s29, 0')
    a(f'  s_add_u32 s28, s28, {cfg.REC_OFF}')
    a('  s_addc_u32 s29, s29, 0')
    a('  s_waitcnt lgkmcnt(0)')
    a('  s_and_b32 s26, s26, 0xffff')
    a('  s_lshl_b32 s26, s26, 16')
    a('  s_barrier')
    for i in range(1, 8):
        a(f'  s_mov_b32 s{CO+i}, {i*16128}')
    stores_done = 0
    for h in range(S):
        sfx = f'_{h}'
        if h > 0:
            a('  v_mov_b32 v2, 1')
            a(f'  s_mov_b32 s42, {HIST}')
            a('  s_mov_b32 s43, 0x3fc')
            a('  s_mov_b64 exec, s[44:45]')
        for i in range(h * cfg.RPS, (h + 1) * cfg.RPS):
            A = [W0 + 4*i + e for e in range(4)]
            O = [W1 + 4*i + e for e in range(4)]
            G = [AUX + 2*i, AUX + 2*i + 1]
            a(f'  s_waitcnt vmcnt({3*(issued - 1 - i) + stores_done})')
            if issued < 10:
                issue_round(issued); issued += 1
            a(f'  v_lshlrev_b32 v{t[0]}, 16, v{G[0]}')
            a(f'  v_and_b32 v{t[1]}, s27, v{G[0]}')
            a(f'  v_lshlrev_b32 v{t[2]}, 16, v{G[1]}')
            a(f'  v_and_b32 v{t[3]}, s27, v{G[1]}')
            for e in range(4):
                a(f'  v_mul_f32 v{t[e]}, s26, v{t[e]}')
            a(f'  v_cvt_pk_bf16_f32 v{t[4]}, v{t[0]}, v{t[1]}')
            a(f'  v_cvt_pk_bf16_f32 v{t[5]}, v{t[2]}, v{t[3]}')
            for e in range(4):
                a(f'  v_lshrrev_b32 v{t[8+e]}, 8, v{O[e]}')
            a(f'  v_lshlrev_b32 v{t[0]}, 16, v{t[4]}')
            a(f'  v_and_b32 v{t[1]}, s27, v{t[4]}')
            a(f'  v_lshlrev_b32 v{t[2]}, 16, v{t[5]}')
            a(f'  v_and_b32 v{t[3]}, s27, v{t[5]}')
            for e in range(4):
                a(f'  v_bfi_b32 v{t[8+e]}, 15, v{O[e]}, v{t[8+e]}')
            for e in range(4):
                a(f'  v_mul_f32 v{t[4+e]}, s30, v{t[e]}')
            for e in range(4):
                a(f'  v_fract_f32 v{t[4+e]}, v{t[4+e]}')
            for e in range(4):
                a(f'  v_fma_f32 v{t[4+e]}, v{t[e]}, s31, v{t[4+e]}')
            for e in range(4):
                a(f'  v_cos_f32 v{t[4+e]}, v{t[4+e]}')
            for e in range(4):
                a(f'  v_lshrrev_b32 v{t[12+e]}, 2, v{O[e]}')
            for e in range(4):
                a(f'  v_lshrrev_b32 v{t[e]}, {KSH}, v{A[e]}')
            for e in range(4):
                a(f'  v_and_b32 v{t[12+e]}, s43, v{t[12+e]}')
            for e in range(4):
                a(f'  v_lshl_or_b32 v{t[12+e]}, v{t[e]}, 10, v{t[12+e]}')
            a(f'  v_cvt_pk_bf16_f32 v{t[16]}, v{t[4]}, v{t[5]}')
            a(f'  v_cvt_pk_bf16_f32 v{t[17]}, v{t[6]}, v{t[7]}')
            for e in range(4):
                a(f'  v_add_u32 v{t[e]}, s42, v{t[12+e]}')
            for e in range(4):
                a(f'  ds_add_u32 v{t[e]}, v2')
            for e in range(4):
                a(f'  v_lshl_or_b32 v{A[e]}, v{t[8+e]}, 19, v{A[e]}')
            a(f'  v_mov_b32 v{O[0]}, v{t[16]}')
            a(f'  v_mov_b32 v{O[2]}, v{t[17]}')
            a(f'  v_lshl_or_b32 v{G[0]}, v{t[13]}, 16, v{t[12]}')
            a(f'  v_lshl_or_b32 v{G[1]}, v{t[15]}, 16, v{t[14]}')
        a('  s_mov_b64 exec, -1')
        a('  s_waitcnt lgkmcnt(0)')
        a('  s_barrier')
        st()
        if h == S - 1 and opt.get('mpf1', 1):
            a('  s_sub_u32 s40, s24, 4')
            a('  s_cmp_ge_u32 s40, 5')
            a('  s_cbranch_scc1 p1_nopf')
            a('  s_mul_i32 s41, s2, 40000')
            a('  s_and_b32 s41, s41, 0xffffff80')
            a('  v_subrev_u32 v5, 256, v0')
            a('  v_lshlrev_b32 v5, 7, v5')
            a(f'  buffer_load_dword v{W1+1}, v5, s[76:79], s41 offen')
            a.label('p1_nopf')
        a('  v_lshlrev_b32 v4, 2, v0')
        a(f'  v_add_u32 v4, {HIST}, v4')
        a('  s_cmp_ge_u32 s24, 4')
        a(f'  s_cbranch_scc1 p1_skip1{sfx}')
        for k in range(NK):
            a(f'  ds_read_b32 v{t[k]}, v4 offset:{k*1024}')
        a('  v_mov_b32 v5, 0')
        a('  s_waitcnt lgkmcnt(0)')
        ra, rb = 5, 6
        for k in range(NK):
            a(f'  v_add_u32 v{rb}, v{ra}, v{t[k]}')
            a(f'  v_mov_b32 v{t[k]}, v{ra}')
            ra, rb = rb, ra
        assert ra == 5
        a('  v_add_u32 v6, 7, v5')
        a('  v_and_b32 v6, -8, v6')
        a('  v_mov_b32 v7, v6')
        for sh in (1, 2, 4, 8):
            a('  s_nop 1')
            a(f'  v_add_u32_dpp v7, v7, v7 row_shr:{sh} row_mask:0xf bank_mask:0xf bound_ctrl:0')
        a('  s_nop 1')
        a('  v_add_u32_dpp v7, v7, v7 row_bcast:15 row_mask:0xa bank_mask:0xf')
        a('  s_nop 1')
        a('  v_add_u32_dpp v7, v7, v7 row_bcast:31 row_mask:0xc bank_mask:0xf')
        a('  s_lshl_b32 s40, s24, 2')
        a(f'  s_add_u32 s40, s40, {TMP}')
        a('  v_mov_b32 v3, s40')
        a('  s_mov_b32 exec_lo, 0')
        a('  s_mov_b32 exec_hi, 0x80000000')
        a('  ds_write_b32 v3, v7')
        a('  s_mov_b64 exec, -1')
        a.label(f'p1_skip1{sfx}')
        a('  s_waitcnt lgkmcnt(0)')
        a('  s_barrier')
        a(f'  v_mov_b32 v1, {TMP}')
        a('  ds_read2_b32 v[2:3], v1 offset0:0 offset1:1')
        a('  s_waitcnt lgkmcnt(0)')
        a('  v_readfirstlane_b32 s66, v2')
        a('  v_readfirstlane_b32 s67, v3')
        a('  ds_read2_b32 v[2:3], v1 offset0:2 offset1:3')
        a('  s_waitcnt lgkmcnt(0)')
        a('  v_readfirstlane_b32 s68, v2')
        a('  v_readfirstlane_b32 s69, v3')
        a('  s_nop 3')
        a('  s_add_u32 s70, s66, s67')
        a('  s_add_u32 s71, s70, s68')
        a('  s_add_u32 s72, s71, s69')
        a('  s_cmp_ge_u32 s24, 4')
        a(f'  s_cbranch_scc1 p1_skip2{sfx}')
        a('  s_mov_b32 s73, 0')
        a('  s_cmp_eq_u32 s24, 1')
        a('  s_cselect_b32 s73, s66, s73')
        a('  s_cmp_eq_u32 s24, 2')
        a('  s_cselect_b32 s73, s70, s73')
        a('  s_cmp_eq_u32 s24, 3')
        a('  s_cselect_b32 s73, s71, s73')
        a('  v_sub_u32 v7, v7, v6')
        a('  v_add_u32 v7, s73, v7')
        for k in range(NK):
            a(f'  v_add_u32 v{t[k]}, v7, v{t[k]}')
            a(f'  ds_write_b32 v4, v{t[k]} offset:{k*1024}')
        a('  v_lshl_or_b32 v5, v7, 13, v5')
        a(f'  s_mul_i32 s40, s2, {S*4}')
        if h: a(f'  s_add_u32 s40, s40, {h*4}')
        a(f'  s_mov_b32 s41, {cfg.NTT*4}')
        a('  v_mul_lo_u32 v6, v0, s41')
        a('  buffer_store_dword v5, v6, s[20:23], s40 offen')
        a.label(f'p1_skip2{sfx}')
        a('  s_waitcnt lgkmcnt(0)')
        a('  s_barrier')
        st()
        a('  v_mov_b32 v2, 1')
        a(f'  v_mov_b32 v1, {HIST}')
        a('  s_mov_b64 exec, s[44:45]')
        r0 = h * cfg.RPS * 4
        nrec = cfg.RPS * 4
        batches = [(b, min(8, nrec - b)) for b in range(0, nrec, 8)]
        def rank_issue(bi):
            b, n = batches[bi]
            base = (bi & 1) * 8
            for x in range(n):
                rec = r0 + b + x
                j, hh = rec >> 1, rec & 1
                ad = 4 + (x & 3)
                a(f'  v_add_u32_sdwa v{ad}, v1, v{AUX+j} dst_sel:DWORD dst_unused:UNUSED_PAD src0_sel:DWORD src1_sel:WORD_{hh}')
                a(f'  ds_add_rtn_u32 v{t[base+x]}, v{ad}, v2')
        def rank_pack(bi):
            b, n = batches[bi]
            base = (bi & 1) * 8
            for x in range(0, n, 2):
                j = (r0 + b + x) >> 1
                a(f'  v_lshl_or_b32 v{AUX+j}, v{t[base+x+1]}, 16, v{t[base+x]}')
        rank_issue(0)
        for bi in range(len(batches)):
            if bi + 1 < len(batches):
                rank_issue(bi + 1)
                a(f'  s_waitcnt lgkmcnt({batches[bi+1][1]})')
            else:
                a('  s_waitcnt lgkmcnt(0)')
            rank_pack(bi)
        if opt.get('p1stamp'): st()
        a('  s_mov_b64 exec, -1')
        a(f'  s_mov_b32 s43, {cfg.SLICE}')
        a(f'  s_mov_b32 s41, {cfg.CBASE}')
        a('  s_mov_b32 s40, 0xaaab')
        a('  v_mul_u32_u24 v1, s40, v0')
        a('  v_lshrrev_b32 v1, 17, v1')
        a('  v_mul_u32_u24 v3, 3, v1')
        a('  v_sub_u32 v3, v0, v3')
        a(f'  v_lshlrev_b32 v{t[16]}, 5, v1')
        a(f'  v_lshl_add_u32 v{t[16]}, v3, 4, v{t[16]}')
        a(f'  v_lshlrev_b32 v{t[17]}, 4, v1')
        a(f'  v_add_u32 v{t[17]}, s41, v{t[17]}')
        a('  v_cmp_eq_u32 vcc, 2, v3')
        a(f'  v_mov_b32 v{t[19]}, {336*32}')
        a(f'  v_mov_b32 v1, {336*16}')
        a(f'  v_cndmask_b32 v{t[16]}, v{t[16]}, v{t[17]}, vcc')
        a(f'  v_cndmask_b32 v{t[17]}, v{t[19]}, v1, vcc')
        for s in range(cfg.NSL):
            a('  s_mov_b64 exec, s[44:45]')
            a(f'  s_mov_b32 s42, {s*cfg.SLICE}')
            for x in range(r0, r0 + nrec):
                j, hh = x >> 1, x & 1
                q = 4 + 2 * (x & 1); a0 = q + 1
                creg = W1 + 4 * (x >> 2) + 2 * ((x >> 1) & 1)
                a(f'  v_subrev_u32_sdwa v{q}, s42, v{AUX+j} dst_sel:DWORD dst_unused:UNUSED_PAD src0_sel:DWORD src1_sel:WORD_{hh}')
                a(f'  v_cmpx_gt_u32 vcc, s43, v{q}')
                a(f'  v_lshlrev_b32 v{a0}, 2, v{q}')
                a(f'  v_lshl_add_u32 v{q}, v{q}, 1, s41')
                a(f'  ds_write_b32 v{a0}, v{W0+x}')
                a(f'  ds_write_b16{"_d16_hi" if (x & 1) else ""} v{q}, v{creg}')
                a('  s_mov_b64 exec, s[44:45]')
            a('  s_mov_b64 exec, -1')
            a(f'  s_add_u32 s16, s28, {s*cfg.SLICE_BYTES}')
            a('  s_addc_u32 s17, s29, 0')
            a('  s_and_b32 s17, s17, 0xffff')
            last = (s == cfg.NSL - 1)
            if not last:
                a(f'  s_mov_b32 s18, {cfg.SLICE_BYTES}')
            else:
                a(f'  s_sub_u32 s18, s72, {s*cfg.SLICE}')
                a('  s_mul_i32 s18, s18, 6')
            a('  s_mov_b32 s19, 0x20000')
            a('  v_lshlrev_b32 v1, 4, v0')
            a(f'  v_mov_b32 v3, v{t[16]}')
            a('  s_waitcnt lgkmcnt(0)')
            if opt.get('p1stamp'): st()
            a('  s_barrier')
            for half in range(2):
                for u in range(4):
                    a(f'  ds_read_b128 {vr(t[4*u],4)}, v3')
                    a(f'  v_add_u32 v3, v3, v{t[17]}')
                for u in range(4):
                    a(f'  s_waitcnt lgkmcnt({3-u})')
                    rnd = half * 4 + u
                    so = '0' if rnd == 0 else f's{CO+rnd}'
                    a(f'  buffer_store_dwordx4 {vr(t[4*u],4)}, v1, s[16:19], {so} offen{STF}')
                a('  s_nop 1')
            if not last:
                a('  s_barrier')
                if opt.get('p1stamp'): st()
        st()
    if st.on:
        a('  s_waitcnt vmcnt(0)')
        st()
    st.flush('s24')
    a.label('p1_done')
    a('  s_endpgm')

class RegAlloc:
    def __init__(self, start):
        self.n = start
    def get(self, k=1, align=1):
        self.n = (self.n + align - 1) // align * align
        r = self.n; self.n += k
        return r

def gen_p2(a, opt, cfg):
    st = Stamps(a, bool(opt.get('stamp')), 'p2', 1); st.wave = opt.get('swave', 0)
    b_lag = opt.get('lag', 1)
    R = b_lag + 1
    NG = 8
    RNT = {0: '', 1: ' nt', 2: ' sc1', 3: ' sc0 sc1', 4: ' sc0 sc1 nt', 5: ' sc1 nt'}[opt.get('nt_rec', 0)]
    OTF = {0: '', 1: ' nt', 2: ' sc1', 3: ' sc0 sc1', 4: ' sc0'}[opt.get('out_st', 2)]
    se = opt.get('sync', 2)
    NSEG = 16 * cfg.S
    JPC = 32 // NSEG
    ra = RegAlloc(1)
    J4 = ra.get(); J8 = ra.get(); P = ra.get(); P7 = ra.get(); J2H = ra.get()
    VN = ra.get(); VB = ra.get(); VOFF8 = ra.get(); EE = ra.get()
    SELA = ra.get(); SELB = ra.get(); VDUM = ra.get(); COL = ra.get()
    D = [ra.get(2, 2), ra.get(2, 2)]
    PT = [ra.get(), ra.get()]; LA = [ra.get(), ra.get()]; GAD = [ra.get(), ra.get()]
    YR = [ra.get(), ra.get()]; AB = [ra.get(), ra.get()]
    X = [ra.get() for _ in range(6)]
    VROW4 = ra.get(); VLANE = ra.get()
    WD = ra.get(4, 2); WU = ra.get(4, 2)
    MM = ra.get(10, 2)
    GG = ra.get(20, 2)
    HH = ra.get(10, 2)
    main0 = ra.n
    RW = [ra.get() for _ in range(R)]; RC = [ra.get() for _ in range(R)]
    VV = [ra.get() for _ in range(R)]
    CC = [ra.get() for _ in range(R)]
    ROW = [ra.get() for _ in range(R)]
    G = [ra.get(NG) for _ in range(R)]
    maxv = ra.n
    rp = RegAlloc(G[0])
    WSt = rp.get(2, 2); WRt = rp.get(2, 2); CEN = rp.get(2); DI = rp.get(5); RBp = rp.get(2, 2)
    assert rp.n <= G[0] + NG * R, (rp.n, G[0] + NG*R)
    HT = D[0]
    ra2 = RegAlloc(main0)
    Sg = ra2.get(8, 2); SF = ra2.get(4, 2); BT = ra2.get(4, 2); Y = ra2.get(4, 2); Z = ra2.get(4, 2)
    maxv = max(maxv, ra2.n)
    assert maxv <= 128, maxv
    a('.p2align 8')
    a('.type p2_kernel,@function')
    a.label('p2_kernel')
    a('  s_cmp_ge_u32 s2, 256')
    a('  s_cbranch_scc1 p2_done')
    a('  s_load_dwordx2 s[28:29], s[0:1], 104')
    a('  s_load_dwordx2 s[32:33], s[0:1], 0')
    a('  s_load_dwordx2 s[34:35], s[0:1], 24')
    a('  s_load_dwordx2 s[36:37], s[0:1], 40')
    a('  s_load_dwordx4 s[40:43], s[0:1], 56')
    a('  s_load_dwordx4 s[44:47], s[0:1], 72')
    a('  s_load_dwordx2 s[48:49], s[0:1], 88')
    a('  v_readfirstlane_b32 s24, v0')
    a(f'  v_and_b32 v{VLANE}, 63, v0')
    a(f'  v_and_b32 v{P}, 15, v0')
    a('  s_lshr_b32 s24, s24, 6')
    a(f'  v_lshrrev_b32 v{X[0]}, 1, v{VLANE}')
    a(f'  v_and_b32 v{X[1]}, {NSEG-1}, v{X[0]}')
    a(f'  s_mul_i32 s25, s2, {cfg.NTT}')
    a(f'  s_mul_i32 s26, s24, {NSEG}')
    a('  s_add_u32 s25, s25, s26')
    a('  s_lshl_b32 s25, s25, 2')
    a(f'  v_lshlrev_b32 v{X[2]}, 2, v{X[1]}')
    a(f'  v_lshrrev_b32 v{VROW4}, 4, v{VLANE}')
    a('  s_waitcnt lgkmcnt(0)')
    srd(a, 12, 28, cfg.TAB_BYTES)
    a(f'  buffer_load_dword v{VN}, v{X[2]}, s[12:15], s25 offen')
    st()
    srd(a, 4, 32, E * 32)
    srd(a, 20, 34, E * 2)
    npf = 0
    a(f'  v_lshlrev_b32 v{X[3]}, 1, v{P}')
    a(f'  v_lshl_add_u32 v{X[4]}, v{VROW4}, 7, v{X[3]}')
    WTMP = [YR[0], YR[1], AB[0], AB[1], PT[0], PT[1], LA[0], LA[1]]
    for q in range(4):
        a(f'  global_load_ushort v{WTMP[q]}, v{X[4]}, s[44:45] offset:{q*32}'); npf += 1
    for q in range(4):
        a(f'  global_load_ushort v{WTMP[4+q]}, v{X[4]}, s[46:47] offset:{q*32}'); npf += 1
    a(f'  v_lshl_add_u32 v{X[4]}, v{VROW4}, 5, v{X[3]}')
    WT2 = [GAD[0], GAD[1], COL, EE]
    for q in range(2):
        a(f'  global_load_ushort v{WT2[q]}, v{X[4]}, s[42:43] offset:{q*128}'); npf += 1
    for q in range(2):
        a(f'  global_load_ushort v{WT2[2+q]}, v{X[4]}, s[40:41] offset:{q*128}'); npf += 1
    a(f'  v_lshlrev_b32 v{X[4]}, 1, v{VROW4}')
    for q in range(2):
        a(f'  global_load_ushort v{CEN+q}, v{X[4]}, s[36:37] offset:{q*8}'); npf += 1
    a(f'  s_lshl_b32 s27, s2, 4')
    for u in range(5):
        a(f'  s_add_u32 s26, s24, {16*u}')
        a('  s_lshl_b32 s26, s26, 12')
        a('  s_add_u32 s26, s26, s27')
        a(f'  s_mov_b32 s{70+u}, s26')
        a(f'  v_add_u32 v{X[3]}, s26, v{P}')
        a(f'  v_lshlrev_b32 v{X[4]}, 1, v{X[3]}')
        a(f'  buffer_load_ushort v{DI+u}, v{X[4]}, s[20:23], 0 offen'); npf += 1
    for u in range(5):
        a(f'  v_add_u32 v{X[3]}, s{70+u}, v{P}')
        a(f'  v_lshlrev_b32 v{X[4]}, 5, v{X[3]}')
        a(f'  v_lshl_add_u32 v{X[4]}, v{VROW4}, 3, v{X[4]}')
        a(f'  buffer_load_dwordx2 {vr(MM+2*u,2)}, v{X[4]}, s[4:7], 0 offen'); npf += 1
    nm = 5
    if opt.get('warm', 0):
        a('  s_cmp_ge_u32 s24, 8')
        a('  s_cbranch_scc1 p2_nowarm')
        a('  s_lshr_b32 s26, s2, 3')
        a('  s_lshl_b32 s26, s26, 3')
        a('  s_add_u32 s26, s26, s24')
        a('  s_lshl_b32 s26, s26, 13')
        a(f'  v_lshlrev_b32 v{X[4]}, 7, v{VLANE}')
        a(f'  buffer_load_dword v{VDUM}, v{X[4]}, s[4:7], s26 offen')
        a.label('p2_nowarm')
    a(f'  s_add_u32 s8, s28, {cfg.REC_OFF}')
    a('  s_addc_u32 s9, s29, 0')
    a('  s_and_b32 s9, s9, 0xffff')
    a(f'  s_mov_b32 s10, {cfg.REC_BYTES}')
    a('  s_mov_b32 s11, 0x20000')
    srd(a, 16, 48, E * 32)
    a(f'  v_lshlrev_b32 v{X[3]}, 4, v0')
    for r in (D[0], D[0]+1, D[1], D[1]+1):
        a(f'  v_mov_b32 v{r}, 0')
    assert D[1] == D[0] + 2
    a(f'  v_add_u32 v{X[4]}, 0x10000, v{X[3]}')
    a(f'  v_add_u32 v{X[5]}, 0x20000, v{X[3]}')
    for i in range(4):
        a(f'  ds_write_b128 v{X[3]}, {vr(D[0],4)} offset:{i*16384}')
    for i in range(4):
        a(f'  ds_write_b128 v{X[4]}, {vr(D[0],4)} offset:{i*16384}')
    for i in range(2):
        a(f'  ds_write_b128 v{X[5]}, {vr(D[0],4)} offset:{i*16384}')
    a(f'  v_and_b32 v{P7}, 7, v0')
    a(f'  v_lshlrev_b32 v{J4}, 2, v{P7}')
    a(f'  v_lshlrev_b32 v{J8}, 3, v{P}')
    a(f'  v_lshlrev_b32 v{J2H}, 1, v{P7}')
    a(f'  v_cmp_gt_u32 vcc, 8, v{P}')
    a(f'  v_mov_b32 v{X[3]}, 0x03020c0c')
    a(f'  v_mov_b32 v{X[4]}, 0x05040c0c')
    a(f'  v_cndmask_b32 v{SELA}, v{X[3]}, v{X[4]}, vcc')
    a(f'  v_mov_b32 v{X[3]}, 0x07060c0c')
    a(f'  v_mov_b32 v{X[4]}, 0x01000c0c')
    a(f'  v_cndmask_b32 v{SELB}, v{X[3]}, v{X[4]}, vcc')
    a(f'  v_and_b32 v{VOFF8}, 1, v{VLANE}')
    a(f'  v_lshlrev_b32 v{VOFF8}, 3, v{VOFF8}')
    if JPC > 1:
        a(f'  v_lshrrev_b32 v{X[3]}, {1 + int(math.log2(NSEG))}, v{VLANE}')
        a(f'  v_lshl_add_u32 v{VOFF8}, v{X[3]}, 4, v{VOFF8}')
    a(f'  s_mul_i32 s26, s24, {NSEG}')
    a(f'  v_add_u32 v{X[0]}, s26, v{X[1]}')
    a(f'  s_mov_b32 s27, {cfg.TILE_BYTES}')
    a(f'  v_mul_lo_u32 v{X[0]}, v{X[0]}, s27')
    a('  s_mov_b32 s52, 0xfffffff0')
    a('  s_mov_b32 s53, 0xffff0000')
    a('  s_mov_b32 s54, 0x3ff80')
    a('  s_mov_b32 s55, 0xffffe0')
    a(f'  s_waitcnt vmcnt({npf})')
    if opt.get('pstamp'): st()
    a(f'  v_lshrrev_b32 v{VB}, 16, v{VN}')
    a(f'  v_and_b32 v{VN}, 0xffff, v{VN}')
    a(f'  v_mad_u32_u24 v{VB}, v{VB}, 48, v{X[0]}')
    a(f'  v_mov_b32 v{X[0]}, v{VN}')
    for sh in (1, 2, 4, 8):
        a('  s_nop 1')
        a(f'  v_max_u32_dpp v{X[0]}, v{X[0]}, v{X[0]} row_ror:{sh} row_mask:0xf bank_mask:0xf')
    a('  s_nop 1')
    for i, ln in enumerate((0, 16, 32, 48)):
        a(f'  v_readlane_b32 s{56+i}, v{X[0]}, {ln}')
    a('  s_nop 3')
    a('  s_max_u32 s56, s56, s57')
    a('  s_max_u32 s58, s58, s59')
    a('  s_max_u32 s50, s56, s58')
    a('  s_mov_b32 s51, 0')
    a('  s_mov_b32 s56, 0')
    a('  s_mov_b32 s64, 0')
    if se:
        a(f'  s_mov_b32 s69, {opt.get("nsync", 38 // se)}')
    a(f'  s_waitcnt vmcnt({nm})')
    if opt.get('pstamp'): st()
    a(f'  v_lshl_or_b32 v{WD}, v{WTMP[1]}, 16, v{WTMP[0]}')
    a(f'  v_lshl_or_b32 v{WD+1}, v{WTMP[3]}, 16, v{WTMP[2]}')
    a(f'  v_lshl_or_b32 v{WU}, v{WTMP[5]}, 16, v{WTMP[4]}')
    a(f'  v_lshl_or_b32 v{WU+1}, v{WTMP[7]}, 16, v{WTMP[6]}')
    a(f'  v_lshl_or_b32 v{WSt}, v{WT2[1]}, 16, v{WT2[0]}')
    a(f'  v_lshl_or_b32 v{WRt}, v{WT2[3]}, 16, v{WT2[2]}')
    a(f'  v_mov_b32 v{WD+2}, v{WD}')
    a(f'  v_mov_b32 v{WD+3}, v{WD+1}')
    a(f'  v_mov_b32 v{WU+2}, v{WU}')
    a(f'  v_mov_b32 v{WU+3}, v{WU+1}')
    a(f'  v_mov_b32 v{WSt+1}, 0')
    a(f'  v_mov_b32 v{WRt+1}, 0')
    a(f'  v_mov_b32 v{RBp+1}, 0')
    a(f'  v_lshlrev_b32 v{CEN}, 16, v{CEN}')
    a(f'  v_lshlrev_b32 v{CEN+1}, 16, v{CEN+1}')
    uid = [0]
    def stageA(b):
        u = uid[0]; uid[0] += 1
        a.label(f'p2_chk{u}')
        a('  s_cmp_lg_u32 s56, 0')
        a(f'  s_cbranch_scc1 p2_go{u}')
        a('  s_cmp_ge_u32 s51, s50')
        a(f'  s_cbranch_scc1 p2_exh{u}')
        a(f'  v_add_u32 v{X[0]}, s51, v{VOFF8}')
        a(f'  v_cmp_gt_u32 vcc, v{VN}, v{X[0]}')
        a(f'  v_sub_u32 v{X[1]}, v{VN}, v{X[0]}')
        a(f'  v_min_u32 v{X[1]}, 8, v{X[1]}')
        a(f'  v_mad_u32_u24 v{X[2]}, v{X[0]}, 6, v{VB}')
        a(f'  v_or_b32 v{X[2]}, v{X[2]}, v{X[1]}')
        a(f'  s_bcnt1_i32_b64 s67, vcc')
        a(f'  v_mbcnt_lo_u32_b32 v{X[3]}, vcc_lo, 0')
        a(f'  v_mbcnt_hi_u32_b32 v{X[3]}, vcc_hi, v{X[3]}')
        a(f'  v_sub_u32 v{X[4]}, v{VLANE}, v{X[3]}')
        a(f'  v_add_u32 v{X[4]}, s67, v{X[4]}')
        a(f'  v_cndmask_b32 v{X[4]}, v{X[4]}, v{X[3]}, vcc')
        a(f'  v_cndmask_b32 v{X[2]}, 0, v{X[2]}, vcc')
        a(f'  v_and_b32 v{X[5]}, 6, v{X[4]}')
        a(f'  v_lshlrev_b32 v{X[5]}, 5, v{X[5]}')
        a(f'  v_and_or_b32 v{X[5]}, v{X[4]}, -8, v{X[5]}')
        a(f'  v_and_b32 v{X[4]}, 1, v{X[4]}')
        a(f'  v_lshl_or_b32 v{X[5]}, v{X[4]}, 2, v{X[5]}')
        a(f'  ds_permute_b32 v{EE}, v{X[5]}, v{X[2]}')
        a('  s_add_u32 s56, s67, 7')
        a('  s_lshr_b32 s56, s56, 3')
        a('  s_add_u32 s64, s64, s56')
        a(f'  s_add_u32 s51, s51, {16*JPC}')
        a('  s_waitcnt lgkmcnt(0)')
        a(f'  s_branch p2_go{u}')
        a.label(f'p2_exh{u}')
        a(f'  v_mov_b32 v{EE}, 0')
        a('  s_mov_b32 s56, 1')
        a('  s_nop 0')
        a.label(f'p2_go{u}')
        a('  s_sub_u32 s56, s56, 1')
        a(f'  v_mov_b32_dpp v{X[0]}, v{EE} row_newbcast:0 row_mask:0xf bank_mask:0x3')
        a(f'  v_mov_b32_dpp v{X[0]}, v{EE} row_newbcast:1 row_mask:0xf bank_mask:0xc')
        a(f'  v_mov_b32_dpp v{EE}, v{EE} row_shl:2 row_mask:0xf bank_mask:0xf bound_ctrl:0')
        a(f'  v_and_b32 v{X[1]}, s52, v{X[0]}')
        a(f'  v_and_b32 v{VV[b]}, 15, v{X[0]}')
        a(f'  v_add_u32 v{X[0]}, v{X[1]}, v{J4}')
        a(f'  v_add_u32 v{X[1]}, v{X[1]}, v{J2H}')
        F = {0: '', 1: ' nt', 2: ' sc1', 3: ' sc0'}
        a(f'  buffer_load_dword v{RW[b]}, v{X[0]}, s[8:11], 0 offen{F[opt.get("rw_f", 0)]}')
        a(f'  buffer_load_short_d16_hi v{RC[b]}, v{X[1]}, s[8:11], 0 offen offset:32{F[opt.get("rc_f", 0)]}')
    def decode(b):
        a(f'  v_cmp_gt_u32 vcc, v{VV[b]}, v{P7}')
        a(f'  v_lshlrev_b32 v{X[2]}, 5, v{RW[b]}')
        a(f'  v_lshrrev_b32 v{X[3]}, 12, v{RW[b]}')
        a(f'  v_and_b32 v{CC[b]}, s53, v{RC[b]}')
        a(f'  v_and_b32 v{X[2]}, s55, v{X[2]}')
        a(f'  v_and_b32 v{X[3]}, s54, v{X[3]}')
        a(f'  v_cndmask_b32 v{COL}, 0, v{X[2]}, vcc')
        if opt.get('colmask'):
            a(f'  v_and_b32 v{COL}, {opt["colmask"]}, v{COL}')
        a(f'  v_cndmask_b32 v{ROW[b]}, v{VDUM}, v{X[3]}, vcc')
        a('  s_nop 0')
    def gather(b, g):
        ad = GAD[g & 1]
        a(f'  v_add_u32_dpp v{ad}, v{COL}, v{J4} row_newbcast:{2*g} row_mask:0xf bank_mask:0x3')
        a(f'  v_add_u32_dpp v{ad}, v{COL}, v{J4} row_newbcast:{2*g+1} row_mask:0xf bank_mask:0xc')
        GF = {0: '', 1: ' sc0', 2: ' sc1', 3: ' nt'}[opt.get('gflag', 0)]
        a(f'  buffer_load_dword v{G[b]+g}, v{ad}, s[4:7], 0 offen{GF}')
    def consume(b, g):
        x = G[b] + g; y = YR[g & 1]
        a(f'  v_mov_b32_dpp v{y}, v{x} row_ror:8 row_mask:0xf bank_mask:0xf')
        a(f'  v_add_u32_dpp v{LA[0]}, v{ROW[b]}, v{J8} row_newbcast:{2*g} row_mask:0xf bank_mask:0xf')
        a(f'  v_add_u32_dpp v{LA[1]}, v{ROW[b]}, v{J8} row_newbcast:{2*g+1} row_mask:0xf bank_mask:0xf')
        a(f'  v_perm_b32 v{AB[0]}, v{x}, v{y}, v{SELA}')
        a(f'  v_perm_b32 v{AB[1]}, v{x}, v{y}, v{SELB}')
        a(f'  v_mul_f32_dpp v{PT[0]}, v{CC[b]}, v{AB[0]} row_newbcast:{2*g} row_mask:0xf bank_mask:0xf')
        a(f'  v_mul_f32_dpp v{PT[1]}, v{CC[b]}, v{AB[1]} row_newbcast:{2*g+1} row_mask:0xf bank_mask:0xf')
        a(f'  v_cvt_f64_f32 {vr(D[0],2)}, v{PT[0]}')
        a(f'  v_cvt_f64_f32 {vr(D[1],2)}, v{PT[1]}')
        if not opt.get('no_ds'):
            a(f'  ds_add_f64 v{LA[0]}, {vr(D[0],2)}')
            a(f'  ds_add_f64 v{LA[1]}, {vr(D[1],2)}')
    for t in range(-2*b_lag, -b_lag):
        stageA((t + 2*b_lag) % R)
    first = True
    for t in range(-b_lag, 0):
        stageA((t + 2*b_lag) % R)
        if first:
            first = False
            a('  s_mov_b32 s76, 0xc1200000')
            a('  s_mov_b32 s77, 0x3fb8aa3b')
            for u in range(5):
                a(f'  v_lshlrev_b32 v{X[1]}, 16, v{DI+u}')
                a(f'  v_sub_f32 v{X[2]}, v{X[1]}, v{CEN}')
                a(f'  v_sub_f32 v{X[3]}, v{X[1]}, v{CEN+1}')
                def rnd2():
                    a(f'  v_cvt_pk_bf16_f32 v{X[4]}, v{X[2]}, v{X[3]}')
                    a(f'  v_lshlrev_b32 v{X[2]}, 16, v{X[4]}')
                    a(f'  v_and_b32 v{X[3]}, s53, v{X[4]}')
                rnd2()
                a(f'  v_mul_f32 v{X[2]}, v{X[2]}, v{X[2]}')
                a(f'  v_mul_f32 v{X[3]}, v{X[3]}, v{X[3]}')
                rnd2()
                a(f'  v_mul_f32 v{X[2]}, s76, v{X[2]}')
                a(f'  v_mul_f32 v{X[3]}, s76, v{X[3]}')
                rnd2()
                a(f'  v_mul_f32 v{X[2]}, s77, v{X[2]}')
                a(f'  v_mul_f32 v{X[3]}, s77, v{X[3]}')
                a(f'  v_exp_f32 v{X[2]}, v{X[2]}')
                a(f'  v_exp_f32 v{X[3]}, v{X[3]}')
                a('  s_nop 0')
                a(f'  v_cvt_pk_bf16_f32 v{RBp}, v{X[2]}, v{X[3]}')
                a('  s_nop 1')
                a(f'  v_mfma_f32_16x16x16_bf16 {vr(GG+4*u,4)}, {vr(WSt,2)}, {vr(RBp,2)}, 0')
                a(f'  v_mfma_f32_16x16x16_bf16 {vr(HT,4)}, {vr(WRt,2)}, {vr(RBp,2)}, 0')
                a('  s_nop 7')
                a('  s_nop 1')
                a(f'  v_cvt_pk_bf16_f32 v{HH+2*u}, v{HT}, v{HT+1}')
                a(f'  v_cvt_pk_bf16_f32 v{HH+2*u+1}, v{HT+2}, v{HT+3}')
        if opt.get('pstamp') and t == -b_lag: st()
        a(f'  s_waitcnt vmcnt({2*b_lag + NG*(t + b_lag)})')
        if opt.get('pstamp') and t == -b_lag: st()
        if t == -b_lag:
            a(f'  v_mov_b32 v{VDUM}, {DUMMY_ROW*128}')
        decode((t + b_lag) % R)
        for g in range(NG):
            gather((t + b_lag) % R, g)
    a('  s_waitcnt lgkmcnt(0)')
    a('  s_barrier')
    st()
    if opt.get('prio'):
        pr = opt['prio']
        if pr == 1:
            a('  s_cmp_lt_u32 s24, 8')
            a('  s_cbranch_scc1 p2_noprio')
            a('  s_setprio 1')
            a.label('p2_noprio')
        if pr == 2:
            a('  s_cmp_lt_u32 s24, 4')
            a('  s_cbranch_scc1 p2_noprio')
            a('  s_setprio 1')
            a('  s_cmp_lt_u32 s24, 8')
            a('  s_cbranch_scc1 p2_noprio')
            a('  s_setprio 2')
            a('  s_cmp_lt_u32 s24, 12')
            a('  s_cbranch_scc1 p2_noprio')
            a('  s_setprio 3')
            a.label('p2_noprio')
    a('  s_cmp_eq_u32 s64, 0')
    a('  s_cbranch_scc1 p2_loop_exit')
    a.label('p2_loop')
    U = R
    if se and se > R and se % R == 0:
        U = se
    for t in range(U):
        tb = t % R
        stageA((tb + 2*b_lag) % R)
        a(f'  s_waitcnt vmcnt({(NG+2)*b_lag})')
        decode((tb + b_lag) % R)
        for g in range(NG):
            gather((tb + b_lag) % R, g)
            a(f'  s_waitcnt vmcnt({(NG+2)*b_lag})')
            consume(tb, g)
        if se and (t % se) == se - 1:
            a('  s_cmp_eq_u32 s69, 0')
            a(f'  s_cbranch_scc1 p2_nosync{t}')
            a('  s_barrier')
            a('  s_sub_u32 s69, s69, 1')
            a.label(f'p2_nosync{t}')
        a('  s_sub_u32 s64, s64, 1')
        a('  s_cmp_eq_u32 s64, 0')
        if t < U - 1:
            a('  s_cbranch_scc1 p2_loop_exit')
        else:
            a('  s_cbranch_scc0 p2_loop')
    a.label('p2_loop_exit')
    if se:
        a.label('p2_owed')
        a('  s_cmp_eq_u32 s69, 0')
        a('  s_cbranch_scc1 p2_owed_done')
        a('  s_barrier')
        a('  s_sub_u32 s69, s69, 1')
        a('  s_branch p2_owed')
        a.label('p2_owed_done')
    st()
    a('  s_waitcnt vmcnt(0) lgkmcnt(0)')
    a('  s_barrier')
    st()
    def split4(src):
        a(f'  v_cvt_pk_bf16_f32 v{BT}, v{src}, v{src+1}')
        a(f'  v_cvt_pk_bf16_f32 v{BT+1}, v{src+2}, v{src+3}')
        a(f'  v_lshlrev_b32 v{X[0]}, 16, v{BT}')
        a(f'  v_and_b32 v{X[1]}, s53, v{BT}')
        a(f'  v_lshlrev_b32 v{X[2]}, 16, v{BT+1}')
        a(f'  v_and_b32 v{X[3]}, s53, v{BT+1}')
        for q in range(4):
            a(f'  v_sub_f32 v{X[q]}, v{src+q}, v{X[q]}')
        a(f'  v_cvt_pk_bf16_f32 v{BT+2}, v{X[0]}, v{X[1]}')
        a(f'  v_cvt_pk_bf16_f32 v{BT+3}, v{X[2]}, v{X[3]}')
        a('  s_nop 1')
    for u in range(5):
        a(f'  s_cmp_ge_u32 s{70+u}, {E}')
        a(f'  s_cbranch_scc1 p2_epi_skip{u}')
        a(f'  s_add_u32 s26, s24, {16*u}')
        a('  s_lshl_b32 s26, s26, 11')
        a(f'  v_lshlrev_b32 v{X[0]}, 7, v{P}')
        a(f'  v_lshl_add_u32 v{X[0]}, v{VROW4}, 4, v{X[0]}')
        a(f'  v_add_u32 v{X[0]}, s26, v{X[0]}')
        a(f'  ds_read_b128 {vr(Sg,4)}, v{X[0]}')
        a(f'  ds_read_b128 {vr(Sg+4,4)}, v{X[0]} offset:64')
        a('  s_waitcnt lgkmcnt(0)')
        order = [0, 2, 1, 3]
        for i in range(4):
            a(f'  v_cvt_f32_f64 v{SF+order[i]}, {vr(Sg+2*i,2)}')
        split4(SF)
        a(f'  v_mfma_f32_16x16x32_bf16 {vr(Y,4)}, {vr(WD,4)}, {vr(BT,4)}, 0')
        a('  s_nop 7')
        a('  s_nop 1')
        for q in range(4):
            a(f'  v_mul_f32 v{Y+q}, v{Y+q}, v{GG+4*u+q}')
        split4(Y)
        a(f'  v_mfma_f32_16x16x32_bf16 {vr(Z,4)}, {vr(WU,4)}, {vr(BT,4)}, 0')
        a(f'  v_lshlrev_b32 v{SF}, 16, v{HH+2*u}')
        a(f'  v_and_b32 v{SF+1}, s53, v{HH+2*u}')
        a(f'  v_lshlrev_b32 v{SF+2}, 16, v{HH+2*u+1}')
        a(f'  v_and_b32 v{SF+3}, s53, v{HH+2*u+1}')
        a(f'  v_lshlrev_b32 v{Y}, 16, v{MM+2*u}')
        a(f'  v_and_b32 v{Y+1}, s53, v{MM+2*u}')
        a(f'  v_lshlrev_b32 v{Y+2}, 16, v{MM+2*u+1}')
        a(f'  v_and_b32 v{Y+3}, s53, v{MM+2*u+1}')
        a('  s_nop 1')
        a(f'  v_cvt_pk_bf16_f32 v{X[0]}, v{Z}, v{Z+1}')
        a(f'  v_cvt_pk_bf16_f32 v{X[1]}, v{Z+2}, v{Z+3}')
        a(f'  v_lshlrev_b32 v{Z}, 16, v{X[0]}')
        a(f'  v_and_b32 v{Z+1}, s53, v{X[0]}')
        a(f'  v_lshlrev_b32 v{Z+2}, 16, v{X[1]}')
        a(f'  v_and_b32 v{Z+3}, s53, v{X[1]}')
        for q in range(4):
            a(f'  v_mul_f32 v{Z+q}, v{Z+q}, v{SF+q}')
        a(f'  v_cvt_pk_bf16_f32 v{X[0]}, v{Z}, v{Z+1}')
        a(f'  v_cvt_pk_bf16_f32 v{X[1]}, v{Z+2}, v{Z+3}')
        a(f'  v_lshlrev_b32 v{Z}, 16, v{X[0]}')
        a(f'  v_and_b32 v{Z+1}, s53, v{X[0]}')
        a(f'  v_lshlrev_b32 v{Z+2}, 16, v{X[1]}')
        a(f'  v_and_b32 v{Z+3}, s53, v{X[1]}')
        for q in range(4):
            a(f'  v_add_f32 v{Z+q}, v{Z+q}, v{Y+q}')
        a(f'  v_cvt_pk_bf16_f32 v{Z}, v{Z}, v{Z+1}')
        a(f'  v_cvt_pk_bf16_f32 v{Z+1}, v{Z+2}, v{Z+3}')
        a(f'  v_add_u32 v{X[3]}, s{70+u}, v{P}')
        a(f'  v_lshlrev_b32 v{X[4]}, 5, v{X[3]}')
        a(f'  v_lshl_add_u32 v{X[4]}, v{VROW4}, 3, v{X[4]}')
        a(f'  buffer_store_dwordx2 {vr(Z,2)}, v{X[4]}, s[16:19], 0 offen{OTF}')
        a.label(f'p2_epi_skip{u}')
    if st.on:
        a('  s_waitcnt vmcnt(0)')
        st()
    st.flush('s24')
    a.label('p2_done')
    a('  s_endpgm')
    return maxv

def descriptor(a, name, vgpr, sgpr):
    a(f'.amdhsa_kernel {name}')
    a(f'  .amdhsa_next_free_vgpr {vgpr}')
    a(f'  .amdhsa_next_free_sgpr {sgpr}')
    a(f'  .amdhsa_accum_offset {(vgpr + 3) // 4 * 4}')
    a('  .amdhsa_group_segment_fixed_size 0')
    a('  .amdhsa_kernarg_size 112')
    a('  .amdhsa_user_sgpr_count 2')
    a('  .amdhsa_user_sgpr_kernarg_segment_ptr 1')
    a('  .amdhsa_system_sgpr_workgroup_id_x 1')
    a('  .amdhsa_float_denorm_mode_32 3')
    a('.end_amdhsa_kernel')

HEADER = '''; Kernarg layout (112 bytes, ptrs only, base s[0:1]):
; @launch kernel=p1_kernel grid=(256,1,1) block=(1024,1,1) lds=163840
; @launch kernel=p2_kernel grid=(256,1,1) block=(1024,1,1) lds=163840
.amdgcn_target "amdgcn-amd-amdhsa--gfx950"
.text
.globl p1_kernel
.globl p2_kernel
'''

def build(opt):
    cfg = Cfg(opt)
    a = Asm()
    a(HEADER.rstrip('\n'))
    gen_p1(a, opt, cfg)
    v2 = gen_p2(a, opt, cfg)
    a('.section .rodata,"a"')
    a('.p2align 6')
    ns = 102 if opt.get('stamp') else 80
    descriptor(a, 'p1_kernel', 128, ns)
    a('.p2align 6')
    descriptor(a, 'p2_kernel', v2, ns)
    return a.text()

if __name__ == '__main__':
    out = sys.argv[1] if len(sys.argv) > 1 else 'standalone__molecular_angular_gemnet__graph.s'
    opt = {}
    for kv in sys.argv[2:]:
        k, v = kv.split('=')
        opt[k] = int(v) if v.lstrip('-').isdigit() else v
    open(out, 'w').write(build(opt))
    print('wrote', out)
```

```python
import struct, sys, math

def f32bits(x):
    return struct.unpack('<I', struct.pack('<f', x))[0]
def bits2f(b):
    return struct.unpack('<f', struct.pack('<I', b))[0]

E = 320000
T = 10240000
NWG = 256
import os
KSH = int(os.environ.get('KSH', 14))
NK = (E + (1 << KSH) - 1) >> KSH
HIST = 131072
TMP = HIST + NK * 1024
DUMMY_ROW = 1264

class Cfg:
    def __init__(self, opt):
        self.S = 1
        self.NTT = NWG
        self.SUB = 40000
        self.RPS = 10
        self.SLICE = 21504
        self.CBASE = self.SLICE * 4
        self.SLICE_BYTES = self.SLICE * 6
        maxpad = self.SUB + 256 * 7
        assert maxpad <= 2 * self.SLICE and self.SUB > self.SLICE
        self.TILE_BYTES = (maxpad * 6 + 127) // 128 * 128
        self.TAB_BYTES = 256 * self.NTT * 4
        self.REC_OFF = self.TAB_BYTES
        self.REC_BYTES = self.NTT * self.TILE_BYTES
        self.NSL = 2

class Asm:
    def __init__(self):
        self.lines = []
    def __call__(self, s=''):
        for l in s.split('\n'):
            self.lines.append(l)
    def label(self, s):
        self.lines.append(s + ':')
    def text(self):
        return '\n'.join(self.lines) + '\n'

def vr(a, n=1):
    return f'v{a}' if n == 1 else f'v[{a}:{a+n-1}]'

def srd(a, d, ptr, size):
    a(f'  s_mov_b32 s{d}, s{ptr}')
    a(f'  s_and_b32 s{d+1}, s{ptr+1}, 0xffff')
    a(f'  s_mov_b32 s{d+2}, {size}')
    a(f'  s_mov_b32 s{d+3}, 0x20000')

class Stamps:
    def __init__(self, a, on, name, slot):
        self.a = a; self.on = on; self.n = 0; self.name = name; self.slot = slot; self.wave = 0
    def __call__(self):
        if not self.on: return
        a = self.a
        a('  s_memtime s[80:81]')
        a('  s_memrealtime s[82:83]')
        a('  s_waitcnt lgkmcnt(0)')
        a(f'  s_mov_b32 s{84+2*self.n}, s80')
        a(f'  s_mov_b32 s{85+2*self.n}, s82')
        self.n += 1
        assert self.n <= 9
    def flush(self, wavereg):
        if not self.on: return
        a = self.a
        a(f'  s_cmp_lg_u32 {wavereg}, {self.wave}')
        a(f'  s_cbranch_scc1 {self.name}_nostamp')
        a('  s_load_dwordx2 s[80:81], s[0:1], 104')
        a('  s_waitcnt lgkmcnt(0)')
        a(f'  s_add_u32 s80, s80, {200*1048576 + self.slot*65536}')
        a('  s_addc_u32 s81, s81, 0')
        a('  s_lshl_b32 s82, s2, 7')
        a('  v_mov_b32 v1, s82')
        for i in range(2*self.n):
            a(f'  v_mov_b32 v2, s{84+i}')
            a(f'  global_store_dword v1, v2, s[80:81] offset:{4*i}')
        a.label(f'{self.name}_nostamp')

def gen_p1(a, opt, cfg):
    st = Stamps(a, bool(opt.get('stamp')), 'p1', 0)
    NTF = ' nt' if opt.get('nt_in', 1) else ''
    STF = {0: '', 1: ' nt', 2: ' sc1', 3: ' sc0 sc1', 4: ' sc0'}[opt.get('nt_st', 2)]
    S = cfg.S
    W0, W1, AUX = 8, 48, 88
    CO = 32
    t = [108 + i for i in range(20)]
    inv2pi = 1.0 / (2.0 * math.pi)
    chi_bits = f32bits(inv2pi) & 0xffffff00
    clo_bits = f32bits(inv2pi - bits2f(chi_bits))
    a('.p2align 8')
    a('.type p1_kernel,@function')
    a.label('p1_kernel')
    a('  s_cmp_ge_u32 s2, 256')
    a('  s_cbranch_scc1 p1_done')
    a('  s_load_dwordx4 s[32:35], s[0:1], 8')
    a('  s_load_dwordx2 s[36:37], s[0:1], 32')
    a('  s_load_dwordx2 s[38:39], s[0:1], 48')
    a('  s_load_dwordx2 s[28:29], s[0:1], 104')
    a('  s_load_dwordx2 s[74:75], s[0:1], 0')
    a('  v_lshlrev_b32 v1, 4, v0')
    a(f'  v_add_u32 v2, {HIST}, v1')
    for r in range(4, 8):
        a(f'  v_mov_b32 v{r}, 0')
    a('  ds_write_b128 v2, v[4:7]')
    a('  ds_write_b128 v2, v[4:7] offset:16384')
    IL = opt.get('ilv', 0)
    a(f'  s_mul_i32 s40, s2, {16000 if IL else 160000}')
    a(f'  s_mul_i32 s41, s2, {8000 if IL else 80000}')
    a('  v_add_u32 v1, s40, v1')
    a('  v_lshlrev_b32 v3, 3, v0')
    a('  v_add_u32 v3, s41, v3')
    a('  v_readfirstlane_b32 s24, v0')
    a('  v_cmp_gt_u32 vcc, 1000, v0')
    a('  s_lshr_b32 s24, s24, 6')
    a('  s_mov_b64 s[44:45], vcc')
    for i in range(1, 10):
        a(f'  s_mov_b32 s{45+i}, {i*16000*(256 if IL else 1)}')
        a(f'  s_mov_b32 s{55+i}, {i*8000*(256 if IL else 1)}')
    a('  s_waitcnt lgkmcnt(0)')
    a('  s_load_dword s26, s[38:39], 0')
    srd(a, 4, 32, T * 4)
    srd(a, 8, 34, T * 4)
    srd(a, 12, 36, T * 2)
    st()
    a('  s_mov_b64 exec, s[44:45]')
    def issue_round(i):
        so = '0' if i == 0 else f's{45+i}'
        sa = '0' if i == 0 else f's{55+i}'
        a(f'  buffer_load_dwordx4 {vr(W0+4*i,4)}, v1, s[4:7], {so} offen{NTF}')
        a(f'  buffer_load_dwordx4 {vr(W1+4*i,4)}, v1, s[8:11], {so} offen{NTF}')
        a(f'  buffer_load_dwordx2 {vr(AUX+2*i,2)}, v3, s[12:15], {sa} offen{NTF}')
    AHEAD = opt.get('ahead', 2)
    for i in range(AHEAD):
        issue_round(i)
    issued = AHEAD
    a('  s_mov_b32 s27, 0xffff0000')
    a(f'  s_mov_b32 s30, {chi_bits:#x}')
    a(f'  s_mov_b32 s31, {clo_bits:#x}')
    a(f'  s_mov_b32 s42, {HIST}')
    a('  s_mov_b32 s43, 0x3fc')
    a('  v_mov_b32 v2, 1')
    srd(a, 20, 28, cfg.TAB_BYTES)
    srd(a, 76, 74, E * 32)
    a(f'  s_mul_i32 s40, s2, {S * cfg.TILE_BYTES}')
    a('  s_add_u32 s28, s28, s40')
    a('  s_addc_u32 s29, s29, 0')
    a(f'  s_add_u32 s28, s28, {cfg.REC_OFF}')
    a('  s_addc_u32 s29, s29, 0')
    a('  s_waitcnt lgkmcnt(0)')
    a('  s_and_b32 s26, s26, 0xffff')
    a('  s_lshl_b32 s26, s26, 16')
    a('  s_barrier')
    for i in range(1, 8):
        a(f'  s_mov_b32 s{CO+i}, {i*16128}')
    stores_done = 0
    for h in range(S):
        sfx = f'_{h}'
        if h > 0:
            a('  v_mov_b32 v2, 1')
            a(f'  s_mov_b32 s42, {HIST}')
            a('  s_mov_b32 s43, 0x3fc')
            a('  s_mov_b64 exec, s[44:45]')
        for i in range(h * cfg.RPS, (h + 1) * cfg.RPS):
            A = [W0 + 4*i + e for e in range(4)]
            O = [W1 + 4*i + e for e in range(4)]
            G = [AUX + 2*i, AUX + 2*i + 1]
            a(f'  s_waitcnt vmcnt({3*(issued - 1 - i) + stores_done})')
            if issued < 10:
                issue_round(issued); issued += 1
            a(f'  v_lshlrev_b32 v{t[0]}, 16, v{G[0]}')
            a(f'  v_and_b32 v{t[1]}, s27, v{G[0]}')
            a(f'  v_lshlrev_b32 v{t[2]}, 16, v{G[1]}')
            a(f'  v_and_b32 v{t[3]}, s27, v{G[1]}')
            for e in range(4):
                a(f'  v_mul_f32 v{t[e]}, s26, v{t[e]}')
            a(f'  v_cvt_pk_bf16_f32 v{t[4]}, v{t[0]}, v{t[1]}')
            a(f'  v_cvt_pk_bf16_f32 v{t[5]}, v{t[2]}, v{t[3]}')
            for e in range(4):
                a(f'  v_lshrrev_b32 v{t[8+e]}, 8, v{O[e]}')
            a(f'  v_lshlrev_b32 v{t[0]}, 16, v{t[4]}')
            a(f'  v_and_b32 v{t[1]}, s27, v{t[4]}')
            a(f'  v_lshlrev_b32 v{t[2]}, 16, v{t[5]}')
            a(f'  v_and_b32 v{t[3]}, s27, v{t[5]}')
            for e in range(4):
                a(f'  v_bfi_b32 v{t[8+e]}, 15, v{O[e]}, v{t[8+e]}')
            for e in range(4):
                a(f'  v_mul_f32 v{t[4+e]}, s30, v{t[e]}')
            for e in range(4):
                a(f'  v_fract_f32 v{t[4+e]}, v{t[4+e]}')
            for e in range(4):
                a(f'  v_fma_f32 v{t[4+e]}, v{t[e]}, s31, v{t[4+e]}')
            for e in range(4):
                a(f'  v_cos_f32 v{t[4+e]}, v{t[4+e]}')
            for e in range(4):
                a(f'  v_lshrrev_b32 v{t[12+e]}, 2, v{O[e]}')
            for e in range(4):
                a(f'  v_lshrrev_b32 v{t[e]}, {KSH}, v{A[e]}')
            for e in range(4):
                a(f'  v_and_b32 v{t[12+e]}, s43, v{t[12+e]}')
            for e in range(4):
                a(f'  v_lshl_or_b32 v{t[12+e]}, v{t[e]}, 10, v{t[12+e]}')
            a(f'  v_cvt_pk_bf16_f32 v{t[16]}, v{t[4]}, v{t[5]}')
            a(f'  v_cvt_pk_bf16_f32 v{t[17]}, v{t[6]}, v{t[7]}')
            for e in range(4):
                a(f'  v_add_u32 v{t[e]}, s42, v{t[12+e]}')
            for e in range(4):
                a(f'  ds_add_u32 v{t[e]}, v2')
            for e in range(4):
                a(f'  v_lshl_or_b32 v{A[e]}, v{t[8+e]}, 19, v{A[e]}')
            a(f'  v_mov_b32 v{O[0]}, v{t[16]}')
            a(f'  v_mov_b32 v{O[2]}, v{t[17]}')
            a(f'  v_lshl_or_b32 v{G[0]}, v{t[13]}, 16, v{t[12]}')
            a(f'  v_lshl_or_b32 v{G[1]}, v{t[15]}, 16, v{t[14]}')
        a('  s_mov_b64 exec, -1')
        a('  s_waitcnt lgkmcnt(0)')
        a('  s_barrier')
        st()
        if h == S - 1 and opt.get('mpf1', 1):
            a('  s_sub_u32 s40, s24, 4')
            a('  s_cmp_ge_u32 s40, 5')
            a('  s_cbranch_scc1 p1_nopf')
            a('  s_mul_i32 s41, s2, 40000')
            a('  s_and_b32 s41, s41, 0xffffff80')
            a('  v_subrev_u32 v5, 256, v0')
            a('  v_lshlrev_b32 v5, 7, v5')
            a(f'  buffer_load_dword v{W1+1}, v5, s[76:79], s41 offen')
            a.label('p1_nopf')
        a('  v_lshlrev_b32 v4, 2, v0')
        a(f'  v_add_u32 v4, {HIST}, v4')
        a('  s_cmp_ge_u32 s24, 4')
        a(f'  s_cbranch_scc1 p1_skip1{sfx}')
        for k in range(NK):
            a(f'  ds_read_b32 v{t[k]}, v4 offset:{k*1024}')
        a('  v_mov_b32 v5, 0')
        a('  s_waitcnt lgkmcnt(0)')
        ra, rb = 5, 6
        for k in range(NK):
            a(f'  v_add_u32 v{rb}, v{ra}, v{t[k]}')
            a(f'  v_mov_b32 v{t[k]}, v{ra}')
            ra, rb = rb, ra
        assert ra == 5
        a('  v_add_u32 v6, 7, v5')
        a('  v_and_b32 v6, -8, v6')
        a('  v_mov_b32 v7, v6')
        for sh in (1, 2, 4, 8):
            a('  s_nop 1')
            a(f'  v_add_u32_dpp v7, v7, v7 row_shr:{sh} row_mask:0xf bank_mask:0xf bound_ctrl:0')
        a('  s_nop 1')
        a('  v_add_u32_dpp v7, v7, v7 row_bcast:15 row_mask:0xa bank_mask:0xf')
        a('  s_nop 1')
        a('  v_add_u32_dpp v7, v7, v7 row_bcast:31 row_mask:0xc bank_mask:0xf')
        a('  s_lshl_b32 s40, s24, 2')
        a(f'  s_add_u32 s40, s40, {TMP}')
        a('  v_mov_b32 v3, s40')
        a('  s_mov_b32 exec_lo, 0')
        a('  s_mov_b32 exec_hi, 0x80000000')
        a('  ds_write_b32 v3, v7')
        a('  s_mov_b64 exec, -1')
        a.label(f'p1_skip1{sfx}')
        a('  s_waitcnt lgkmcnt(0)')
        a('  s_barrier')
        a(f'  v_mov_b32 v1, {TMP}')
        a('  ds_read2_b32 v[2:3], v1 offset0:0 offset1:1')
        a('  s_waitcnt lgkmcnt(0)')
        a('  v_readfirstlane_b32 s66, v2')
        a('  v_readfirstlane_b32 s67, v3')
        a('  ds_read2_b32 v[2:3], v1 offset0:2 offset1:3')
        a('  s_waitcnt lgkmcnt(0)')
        a('  v_readfirstlane_b32 s68, v2')
        a('  v_readfirstlane_b32 s69, v3')
        a('  s_nop 3')
        a('  s_add_u32 s70, s66, s67')
        a('  s_add_u32 s71, s70, s68')
        a('  s_add_u32 s72, s71, s69')
        a('  s_cmp_ge_u32 s24, 4')
        a(f'  s_cbranch_scc1 p1_skip2{sfx}')
        a('  s_mov_b32 s73, 0')
        a('  s_cmp_eq_u32 s24, 1')
        a('  s_cselect_b32 s73, s66, s73')
        a('  s_cmp_eq_u32 s24, 2')
        a('  s_cselect_b32 s73, s70, s73')
        a('  s_cmp_eq_u32 s24, 3')
        a('  s_cselect_b32 s73, s71, s73')
        a('  v_sub_u32 v7, v7, v6')
        a('  v_add_u32 v7, s73, v7')
        for k in range(NK):
            a(f'  v_add_u32 v{t[k]}, v7, v{t[k]}')
            a(f'  ds_write_b32 v4, v{t[k]} offset:{k*1024}')
        a('  v_lshl_or_b32 v5, v7, 13, v5')
        a(f'  s_mul_i32 s40, s2, {S*4}')
        if h: a(f'  s_add_u32 s40, s40, {h*4}')
        a(f'  s_mov_b32 s41, {cfg.NTT*4}')
        a('  v_mul_lo_u32 v6, v0, s41')
        a('  buffer_store_dword v5, v6, s[20:23], s40 offen')
        a.label(f'p1_skip2{sfx}')
        a('  s_waitcnt lgkmcnt(0)')
        a('  s_barrier')
        st()
        a('  v_mov_b32 v2, 1')
        a(f'  v_mov_b32 v1, {HIST}')
        a('  s_mov_b64 exec, s[44:45]')
        r0 = h * cfg.RPS * 4
        nrec = cfg.RPS * 4
        batches = [(b, min(8, nrec - b)) for b in range(0, nrec, 8)]
        def rank_issue(bi):
            b, n = batches[bi]
            base = (bi & 1) * 8
            for x in range(n):
                rec = r0 + b + x
                j, hh = rec >> 1, rec & 1
                ad = 4 + (x & 3)
                a(f'  v_add_u32_sdwa v{ad}, v1, v{AUX+j} dst_sel:DWORD dst_unused:UNUSED_PAD src0_sel:DWORD src1_sel:WORD_{hh}')
                a(f'  ds_add_rtn_u32 v{t[base+x]}, v{ad}, v2')
        def rank_pack(bi):
            b, n = batches[bi]
            base = (bi & 1) * 8
            for x in range(0, n, 2):
                j = (r0 + b + x) >> 1
                a(f'  v_lshl_or_b32 v{AUX+j}, v{t[base+x+1]}, 16, v{t[base+x]}')
        rank_issue(0)
        for bi in range(len(batches)):
            if bi + 1 < len(batches):
                rank_issue(bi + 1)
                a(f'  s_waitcnt lgkmcnt({batches[bi+1][1]})')
            else:
                a('  s_waitcnt lgkmcnt(0)')
            rank_pack(bi)
        if opt.get('p1stamp'): st()
        a('  s_mov_b64 exec, -1')
        a(f'  s_mov_b32 s43, {cfg.SLICE}')
        a(f'  s_mov_b32 s41, {cfg.CBASE}')
        a('  s_mov_b32 s40, 0xaaab')
        a('  v_mul_u32_u24 v1, s40, v0')
        a('  v_lshrrev_b32 v1, 17, v1')
        a('  v_mul_u32_u24 v3, 3, v1')
        a('  v_sub_u32 v3, v0, v3')
        a(f'  v_lshlrev_b32 v{t[16]}, 5, v1')
        a(f'  v_lshl_add_u32 v{t[16]}, v3, 4, v{t[16]}')
        a(f'  v_lshlrev_b32 v{t[17]}, 4, v1')
        a(f'  v_add_u32 v{t[17]}, s41, v{t[17]}')
        a('  v_cmp_eq_u32 vcc, 2, v3')
        a(f'  v_mov_b32 v{t[19]}, {336*32}')
        a(f'  v_mov_b32 v1, {336*16}')
        a(f'  v_cndmask_b32 v{t[16]}, v{t[16]}, v{t[17]}, vcc')
        a(f'  v_cndmask_b32 v{t[17]}, v{t[19]}, v1, vcc')
        for s in range(cfg.NSL):
            a('  s_mov_b64 exec, s[44:45]')
            a(f'  s_mov_b32 s42, {s*cfg.SLICE}')
            for x in range(r0, r0 + nrec):
                j, hh = x >> 1, x & 1
                q = 4 + 2 * (x & 1); a0 = q + 1
                creg = W1 + 4 * (x >> 2) + 2 * ((x >> 1) & 1)
                a(f'  v_subrev_u32_sdwa v{q}, s42, v{AUX+j} dst_sel:DWORD dst_unused:UNUSED_PAD src0_sel:DWORD src1_sel:WORD_{hh}')
                a(f'  v_cmpx_gt_u32 vcc, s43, v{q}')
                a(f'  v_lshlrev_b32 v{a0}, 2, v{q}')
                a(f'  v_lshl_add_u32 v{q}, v{q}, 1, s41')
                a(f'  ds_write_b32 v{a0}, v{W0+x}')
                a(f'  ds_write_b16{"_d16_hi" if (x & 1) else ""} v{q}, v{creg}')
                a('  s_mov_b64 exec, s[44:45]')
            a('  s_mov_b64 exec, -1')
            a(f'  s_add_u32 s16, s28, {s*cfg.SLICE_BYTES}')
            a('  s_addc_u32 s17, s29, 0')
            a('  s_and_b32 s17, s17, 0xffff')
            last = (s == cfg.NSL - 1)
            if not last:
                a(f'  s_mov_b32 s18, {cfg.SLICE_BYTES}')
            else:
                a(f'  s_sub_u32 s18, s72, {s*cfg.SLICE}')
                a('  s_mul_i32 s18, s18, 6')
            a('  s_mov_b32 s19, 0x20000')
            a('  v_lshlrev_b32 v1, 4, v0')
            a(f'  v_mov_b32 v3, v{t[16]}')
            a('  s_waitcnt lgkmcnt(0)')
            if opt.get('p1stamp'): st()
            a('  s_barrier')
            for half in range(2):
                for u in range(4):
                    a(f'  ds_read_b128 {vr(t[4*u],4)}, v3')
                    a(f'  v_add_u32 v3, v3, v{t[17]}')
                for u in range(4):
                    a(f'  s_waitcnt lgkmcnt({3-u})')
                    rnd = half * 4 + u
                    so = '0' if rnd == 0 else f's{CO+rnd}'
                    a(f'  buffer_store_dwordx4 {vr(t[4*u],4)}, v1, s[16:19], {so} offen{STF}')
                a('  s_nop 1')
            if not last:
                a('  s_barrier')
                if opt.get('p1stamp'): st()
        st()
    if st.on:
        a('  s_waitcnt vmcnt(0)')
        st()
    st.flush('s24')
    a.label('p1_done')
    a('  s_endpgm')

class RegAlloc:
    def __init__(self, start):
        self.n = start
    def get(self, k=1, align=1):
        self.n = (self.n + align - 1) // align * align
        r = self.n; self.n += k
        return r

def gen_p2(a, opt, cfg):
    st = Stamps(a, bool(opt.get('stamp')), 'p2', 1); st.wave = opt.get('swave', 0)
    b_lag = opt.get('lag', 1)
    R = b_lag + 1
    NG = 8
    RNT = {0: '', 1: ' nt', 2: ' sc1', 3: ' sc0 sc1', 4: ' sc0 sc1 nt', 5: ' sc1 nt'}[opt.get('nt_rec', 0)]
    OTF = {0: '', 1: ' nt', 2: ' sc1', 3: ' sc0 sc1', 4: ' sc0'}[opt.get('out_st', 2)]
    se = opt.get('sync', 2)
    NSEG = 16 * cfg.S
    JPC = 32 // NSEG
    ra = RegAlloc(1)
    J4 = ra.get(); J8 = ra.get(); P = ra.get(); P7 = ra.get(); J2H = ra.get()
    VN = ra.get(); VB = ra.get(); VOFF8 = ra.get(); EE = ra.get()
    SELA = ra.get(); SELB = ra.get(); VDUM = ra.get(); COL = ra.get()
    D = [ra.get(2, 2), ra.get(2, 2)]
    PT = [ra.get(), ra.get()]; LA = [ra.get(), ra.get()]; GAD = [ra.get(), ra.get()]
    YR = [ra.get(), ra.get()]; AB = [ra.get(), ra.get()]
    X = [ra.get() for _ in range(6)]
    VROW4 = ra.get(); VLANE = ra.get()
    WD = ra.get(4, 2); WU = ra.get(4, 2)
    MM = ra.get(10, 2)
    GG = ra.get(20, 2)
    HH = ra.get(10, 2)
    main0 = ra.n
    RW = [ra.get() for _ in range(R)]; RC = [ra.get() for _ in range(R)]
    VV = [ra.get() for _ in range(R)]
    CC = [ra.get() for _ in range(R)]
    ROW = [ra.get() for _ in range(R)]
    G = [ra.get(NG) for _ in range(R)]
    maxv = ra.n
    rp = RegAlloc(G[0])
    WSt = rp.get(2, 2); WRt = rp.get(2, 2); CEN = rp.get(2); DI = rp.get(5); RBp = rp.get(2, 2)
    assert rp.n <= G[0] + NG * R, (rp.n, G[0] + NG*R)
    HT = D[0]
    ra2 = RegAlloc(main0)
    Sg = ra2.get(8, 2); SF = ra2.get(4, 2); BT = ra2.get(4, 2); Y = ra2.get(4, 2); Z = ra2.get(4, 2)
    maxv = max(maxv, ra2.n)
    assert maxv <= 128, maxv
    a('.p2align 8')
    a('.type p2_kernel,@function')
    a.label('p2_kernel')
    a('  s_cmp_ge_u32 s2, 256')
    a('  s_cbranch_scc1 p2_done')
    a('  s_load_dwordx2 s[28:29], s[0:1], 104')
    a('  s_load_dwordx2 s[32:33], s[0:1], 0')
    a('  s_load_dwordx2 s[34:35], s[0:1], 24')
    a('  s_load_dwordx2 s[36:37], s[0:1], 40')
    a('  s_load_dwordx4 s[40:43], s[0:1], 56')
    a('  s_load_dwordx4 s[44:47], s[0:1], 72')
    a('  s_load_dwordx2 s[48:49], s[0:1], 88')
    a('  v_readfirstlane_b32 s24, v0')
    a(f'  v_and_b32 v{VLANE}, 63, v0')
    a(f'  v_and_b32 v{P}, 15, v0')
    a('  s_lshr_b32 s24, s24, 6')
    a(f'  v_lshrrev_b32 v{X[0]}, 1, v{VLANE}')
    a(f'  v_and_b32 v{X[1]}, {NSEG-1}, v{X[0]}')
    a(f'  s_mul_i32 s25, s2, {cfg.NTT}')
    a(f'  s_mul_i32 s26, s24, {NSEG}')
    a('  s_add_u32 s25, s25, s26')
    a('  s_lshl_b32 s25, s25, 2')
    a(f'  v_lshlrev_b32 v{X[2]}, 2, v{X[1]}')
    a(f'  v_lshrrev_b32 v{VROW4}, 4, v{VLANE}')
    a('  s_waitcnt lgkmcnt(0)')
    srd(a, 12, 28, cfg.TAB_BYTES)
    a(f'  buffer_load_dword v{VN}, v{X[2]}, s[12:15], s25 offen')
    st()
    srd(a, 4, 32, E * 32)
    srd(a, 20, 34, E * 2)
    npf = 0
    a(f'  v_lshlrev_b32 v{X[3]}, 1, v{P}')
    a(f'  v_lshl_add_u32 v{X[4]}, v{VROW4}, 7, v{X[3]}')
    WTMP = [YR[0], YR[1], AB[0], AB[1], PT[0], PT[1], LA[0], LA[1]]
    for q in range(4):
        a(f'  global_load_ushort v{WTMP[q]}, v{X[4]}, s[44:45] offset:{q*32}'); npf += 1
    for q in range(4):
        a(f'  global_load_ushort v{WTMP[4+q]}, v{X[4]}, s[46:47] offset:{q*32}'); npf += 1
    a(f'  v_lshl_add_u32 v{X[4]}, v{VROW4}, 5, v{X[3]}')
    WT2 = [GAD[0], GAD[1], COL, EE]
    for q in range(2):
        a(f'  global_load_ushort v{WT2[q]}, v{X[4]}, s[42:43] offset:{q*128}'); npf += 1
    for q in range(2):
        a(f'  global_load_ushort v{WT2[2+q]}, v{X[4]}, s[40:41] offset:{q*128}'); npf += 1
    a(f'  v_lshlrev_b32 v{X[4]}, 1, v{VROW4}')
    for q in range(2):
        a(f'  global_load_ushort v{CEN+q}, v{X[4]}, s[36:37] offset:{q*8}'); npf += 1
    a(f'  s_lshl_b32 s27, s2, 4')
    for u in range(5):
        a(f'  s_add_u32 s26, s24, {16*u}')
        a('  s_lshl_b32 s26, s26, 12')
        a('  s_add_u32 s26, s26, s27')
        a(f'  s_mov_b32 s{70+u}, s26')
        a(f'  v_add_u32 v{X[3]}, s26, v{P}')
        a(f'  v_lshlrev_b32 v{X[4]}, 1, v{X[3]}')
        a(f'  buffer_load_ushort v{DI+u}, v{X[4]}, s[20:23], 0 offen'); npf += 1
    for u in range(5):
        a(f'  v_add_u32 v{X[3]}, s{70+u}, v{P}')
        a(f'  v_lshlrev_b32 v{X[4]}, 5, v{X[3]}')
        a(f'  v_lshl_add_u32 v{X[4]}, v{VROW4}, 3, v{X[4]}')
        a(f'  buffer_load_dwordx2 {vr(MM+2*u,2)}, v{X[4]}, s[4:7], 0 offen'); npf += 1
    nm = 5
    if opt.get('warm', 0):
        a('  s_cmp_ge_u32 s24, 8')
        a('  s_cbranch_scc1 p2_nowarm')
        a('  s_lshr_b32 s26, s2, 3')
        a('  s_lshl_b32 s26, s26, 3')
        a('  s_add_u32 s26, s26, s24')
        a('  s_lshl_b32 s26, s26, 13')
        a(f'  v_lshlrev_b32 v{X[4]}, 7, v{VLANE}')
        a(f'  buffer_load_dword v{VDUM}, v{X[4]}, s[4:7], s26 offen')
        a.label('p2_nowarm')
    a(f'  s_add_u32 s8, s28, {cfg.REC_OFF}')
    a('  s_addc_u32 s9, s29, 0')
    a('  s_and_b32 s9, s9, 0xffff')
    a(f'  s_mov_b32 s10, {cfg.REC_BYTES}')
    a('  s_mov_b32 s11, 0x20000')
    srd(a, 16, 48, E * 32)
    a(f'  v_lshlrev_b32 v{X[3]}, 4, v0')
    for r in (D[0], D[0]+1, D[1], D[1]+1):
        a(f'  v_mov_b32 v{r}, 0')
    assert D[1] == D[0] + 2
    a(f'  v_add_u32 v{X[4]}, 0x10000, v{X[3]}')
    a(f'  v_add_u32 v{X[5]}, 0x20000, v{X[3]}')
    for i in range(4):
        a(f'  ds_write_b128 v{X[3]}, {vr(D[0],4)} offset:{i*16384}')
    for i in range(4):
        a(f'  ds_write_b128 v{X[4]}, {vr(D[0],4)} offset:{i*16384}')
    for i in range(2):
        a(f'  ds_write_b128 v{X[5]}, {vr(D[0],4)} offset:{i*16384}')
    a(f'  v_and_b32 v{P7}, 7, v0')
    a(f'  v_lshlrev_b32 v{J4}, 2, v{P7}')
    a(f'  v_lshlrev_b32 v{J8}, 3, v{P}')
    a(f'  v_lshlrev_b32 v{J2H}, 1, v{P7}')
    a(f'  v_cmp_gt_u32 vcc, 8, v{P}')
    a(f'  v_mov_b32 v{X[3]}, 0x03020c0c')
    a(f'  v_mov_b32 v{X[4]}, 0x05040c0c')
    a(f'  v_cndmask_b32 v{SELA}, v{X[3]}, v{X[4]}, vcc')
    a(f'  v_mov_b32 v{X[3]}, 0x07060c0c')
    a(f'  v_mov_b32 v{X[4]}, 0x01000c0c')
    a(f'  v_cndmask_b32 v{SELB}, v{X[3]}, v{X[4]}, vcc')
    a(f'  v_and_b32 v{VOFF8}, 1, v{VLANE}')
    a(f'  v_lshlrev_b32 v{VOFF8}, 3, v{VOFF8}')
    if JPC > 1:
        a(f'  v_lshrrev_b32 v{X[3]}, {1 + int(math.log2(NSEG))}, v{VLANE}')
        a(f'  v_lshl_add_u32 v{VOFF8}, v{X[3]}, 4, v{VOFF8}')
    a(f'  s_mul_i32 s26, s24, {NSEG}')
    a(f'  v_add_u32 v{X[0]}, s26, v{X[1]}')
    a(f'  s_mov_b32 s27, {cfg.TILE_BYTES}')
    a(f'  v_mul_lo_u32 v{X[0]}, v{X[0]}, s27')
    a('  s_mov_b32 s52, 0xfffffff0')
    a('  s_mov_b32 s53, 0xffff0000')
    a('  s_mov_b32 s54, 0x3ff80')
    a('  s_mov_b32 s55, 0xffffe0')
    a(f'  s_waitcnt vmcnt({npf})')
    if opt.get('pstamp'): st()
    a(f'  v_lshrrev_b32 v{VB}, 16, v{VN}')
    a(f'  v_and_b32 v{VN}, 0xffff, v{VN}')
    a(f'  v_mad_u32_u24 v{VB}, v{VB}, 48, v{X[0]}')
    a(f'  v_mov_b32 v{X[0]}, v{VN}')
    for sh in (1, 2, 4, 8):
        a('  s_nop 1')
        a(f'  v_max_u32_dpp v{X[0]}, v{X[0]}, v{X[0]} row_ror:{sh} row_mask:0xf bank_mask:0xf')
    a('  s_nop 1')
    for i, ln in enumerate((0, 16, 32, 48)):
        a(f'  v_readlane_b32 s{56+i}, v{X[0]}, {ln}')
    a('  s_nop 3')
    a('  s_max_u32 s56, s56, s57')
    a('  s_max_u32 s58, s58, s59')
    a('  s_max_u32 s50, s56, s58')
    a('  s_mov_b32 s51, 0')
    a('  s_mov_b32 s56, 0')
    a('  s_mov_b32 s64, 0')
    if se:
        a(f'  s_mov_b32 s69, {opt.get("nsync", 38 // se)}')
    a(f'  s_waitcnt vmcnt({nm})')
    if opt.get('pstamp'): st()
    a(f'  v_lshl_or_b32 v{WD}, v{WTMP[1]}, 16, v{WTMP[0]}')
    a(f'  v_lshl_or_b32 v{WD+1}, v{WTMP[3]}, 16, v{WTMP[2]}')
    a(f'  v_lshl_or_b32 v{WU}, v{WTMP[5]}, 16, v{WTMP[4]}')
    a(f'  v_lshl_or_b32 v{WU+1}, v{WTMP[7]}, 16, v{WTMP[6]}')
    a(f'  v_lshl_or_b32 v{WSt}, v{WT2[1]}, 16, v{WT2[0]}')
    a(f'  v_lshl_or_b32 v{WRt}, v{WT2[3]}, 16, v{WT2[2]}')
    a(f'  v_mov_b32 v{WD+2}, v{WD}')
    a(f'  v_mov_b32 v{WD+3}, v{WD+1}')
    a(f'  v_mov_b32 v{WU+2}, v{WU}')
    a(f'  v_mov_b32 v{WU+3}, v{WU+1}')
    a(f'  v_mov_b32 v{WSt+1}, 0')
    a(f'  v_mov_b32 v{WRt+1}, 0')
    a(f'  v_mov_b32 v{RBp+1}, 0')
    a(f'  v_lshlrev_b32 v{CEN}, 16, v{CEN}')
    a(f'  v_lshlrev_b32 v{CEN+1}, 16, v{CEN+1}')
    uid = [0]
    def stageA(b):
        u = uid[0]; uid[0] += 1
        a.label(f'p2_chk{u}')
        a('  s_cmp_lg_u32 s56, 0')
        a(f'  s_cbranch_scc1 p2_go{u}')
        a('  s_cmp_ge_u32 s51, s50')
        a(f'  s_cbranch_scc1 p2_exh{u}')
        a(f'  v_add_u32 v{X[0]}, s51, v{VOFF8}')
        a(f'  v_cmp_gt_u32 vcc, v{VN}, v{X[0]}')
        a(f'  v_sub_u32 v{X[1]}, v{VN}, v{X[0]}')
        a(f'  v_min_u32 v{X[1]}, 8, v{X[1]}')
        a(f'  v_mad_u32_u24 v{X[2]}, v{X[0]}, 6, v{VB}')
        a(f'  v_or_b32 v{X[2]}, v{X[2]}, v{X[1]}')
        a(f'  s_bcnt1_i32_b64 s67, vcc')
        a(f'  v_mbcnt_lo_u32_b32 v{X[3]}, vcc_lo, 0')
        a(f'  v_mbcnt_hi_u32_b32 v{X[3]}, vcc_hi, v{X[3]}')
        a(f'  v_sub_u32 v{X[4]}, v{VLANE}, v{X[3]}')
        a(f'  v_add_u32 v{X[4]}, s67, v{X[4]}')
        a(f'  v_cndmask_b32 v{X[4]}, v{X[4]}, v{X[3]}, vcc')
        a(f'  v_cndmask_b32 v{X[2]}, 0, v{X[2]}, vcc')
        a(f'  v_and_b32 v{X[5]}, 6, v{X[4]}')
        a(f'  v_lshlrev_b32 v{X[5]}, 5, v{X[5]}')
        a(f'  v_and_or_b32 v{X[5]}, v{X[4]}, -8, v{X[5]}')
        a(f'  v_and_b32 v{X[4]}, 1, v{X[4]}')
        a(f'  v_lshl_or_b32 v{X[5]}, v{X[4]}, 2, v{X[5]}')
        a(f'  ds_permute_b32 v{EE}, v{X[5]}, v{X[2]}')
        a('  s_add_u32 s56, s67, 7')
        a('  s_lshr_b32 s56, s56, 3')
        a('  s_add_u32 s64, s64, s56')
        a(f'  s_add_u32 s51, s51, {16*JPC}')
        a('  s_waitcnt lgkmcnt(0)')
        a(f'  s_branch p2_go{u}')
        a.label(f'p2_exh{u}')
        a(f'  v_mov_b32 v{EE}, 0')
        a('  s_mov_b32 s56, 1')
        a('  s_nop 0')
        a.label(f'p2_go{u}')
        a('  s_sub_u32 s56, s56, 1')
        a(f'  v_mov_b32_dpp v{X[0]}, v{EE} row_newbcast:0 row_mask:0xf bank_mask:0x3')
        a(f'  v_mov_b32_dpp v{X[0]}, v{EE} row_newbcast:1 row_mask:0xf bank_mask:0xc')
        a(f'  v_mov_b32_dpp v{EE}, v{EE} row_shl:2 row_mask:0xf bank_mask:0xf bound_ctrl:0')
        a(f'  v_and_b32 v{X[1]}, s52, v{X[0]}')
        a(f'  v_and_b32 v{VV[b]}, 15, v{X[0]}')
        a(f'  v_add_u32 v{X[0]}, v{X[1]}, v{J4}')
        a(f'  v_add_u32 v{X[1]}, v{X[1]}, v{J2H}')
        F = {0: '', 1: ' nt', 2: ' sc1', 3: ' sc0'}
        a(f'  buffer_load_dword v{RW[b]}, v{X[0]}, s[8:11], 0 offen{F[opt.get("rw_f", 0)]}')
        a(f'  buffer_load_short_d16_hi v{RC[b]}, v{X[1]}, s[8:11], 0 offen offset:32{F[opt.get("rc_f", 0)]}')
    def decode(b):
        a(f'  v_cmp_gt_u32 vcc, v{VV[b]}, v{P7}')
        a(f'  v_lshlrev_b32 v{X[2]}, 5, v{RW[b]}')
        a(f'  v_lshrrev_b32 v{X[3]}, 12, v{RW[b]}')
        a(f'  v_and_b32 v{CC[b]}, s53, v{RC[b]}')
        a(f'  v_and_b32 v{X[2]}, s55, v{X[2]}')
        a(f'  v_and_b32 v{X[3]}, s54, v{X[3]}')
        a(f'  v_cndmask_b32 v{COL}, 0, v{X[2]}, vcc')
        if opt.get('colmask'):
            a(f'  v_and_b32 v{COL}, {opt["colmask"]}, v{COL}')
        a(f'  v_cndmask_b32 v{ROW[b]}, v{VDUM}, v{X[3]}, vcc')
        a('  s_nop 0')
    def gather(b, g):
        ad = GAD[g & 1]
        a(f'  v_add_u32_dpp v{ad}, v{COL}, v{J4} row_newbcast:{2*g} row_mask:0xf bank_mask:0x3')
        a(f'  v_add_u32_dpp v{ad}, v{COL}, v{J4} row_newbcast:{2*g+1} row_mask:0xf bank_mask:0xc')
        GF = {0: '', 1: ' sc0', 2: ' sc1', 3: ' nt'}[opt.get('gflag', 0)]
        a(f'  buffer_load_dword v{G[b]+g}, v{ad}, s[4:7], 0 offen{GF}')
    def consume(b, g):
        x = G[b] + g; y = YR[g & 1]
        a(f'  v_mov_b32_dpp v{y}, v{x} row_ror:8 row_mask:0xf bank_mask:0xf')
        a(f'  v_add_u32_dpp v{LA[0]}, v{ROW[b]}, v{J8} row_newbcast:{2*g} row_mask:0xf bank_mask:0xf')
        a(f'  v_add_u32_dpp v{LA[1]}, v{ROW[b]}, v{J8} row_newbcast:{2*g+1} row_mask:0xf bank_mask:0xf')
        a(f'  v_perm_b32 v{AB[0]}, v{x}, v{y}, v{SELA}')
        a(f'  v_perm_b32 v{AB[1]}, v{x}, v{y}, v{SELB}')
        a(f'  v_mul_f32_dpp v{PT[0]}, v{CC[b]}, v{AB[0]} row_newbcast:{2*g} row_mask:0xf bank_mask:0xf')
        a(f'  v_mul_f32_dpp v{PT[1]}, v{CC[b]}, v{AB[1]} row_newbcast:{2*g+1} row_mask:0xf bank_mask:0xf')
        a(f'  v_cvt_f64_f32 {vr(D[0],2)}, v{PT[0]}')
        a(f'  v_cvt_f64_f32 {vr(D[1],2)}, v{PT[1]}')
        if not opt.get('no_ds'):
            a(f'  ds_add_f64 v{LA[0]}, {vr(D[0],2)}')
            a(f'  ds_add_f64 v{LA[1]}, {vr(D[1],2)}')
    for t in range(-2*b_lag, -b_lag):
        stageA((t + 2*b_lag) % R)
    first = True
    for t in range(-b_lag, 0):
        stageA((t + 2*b_lag) % R)
        if first:
            first = False
            if opt.get('warm2'):
                nw = opt['warm2']
                a(f'  s_cmp_ge_u32 s24, {nw}')
                a('  s_cbranch_scc1 p2_nowarm2')
                a('  s_lshr_b32 s26, s2, 3')
                a(f'  s_mul_i32 s26, s26, {nw}')
                a('  s_add_u32 s26, s26, s24')
                a('  s_lshl_b32 s26, s26, 13')
                a(f'  v_lshlrev_b32 v{X[4]}, 7, v{VLANE}')
                a(f'  buffer_load_dword v{VDUM}, v{X[4]}, s[4:7], s26 offen')
                a.label('p2_nowarm2')
            a('  s_mov_b32 s76, 0xc1200000')
            a('  s_mov_b32 s77, 0x3fb8aa3b')
            for u in range(5):
                a(f'  v_lshlrev_b32 v{X[1]}, 16, v{DI+u}')
                a(f'  v_sub_f32 v{X[2]}, v{X[1]}, v{CEN}')
                a(f'  v_sub_f32 v{X[3]}, v{X[1]}, v{CEN+1}')
                def rnd2():
                    a(f'  v_cvt_pk_bf16_f32 v{X[4]}, v{X[2]}, v{X[3]}')
                    a(f'  v_lshlrev_b32 v{X[2]}, 16, v{X[4]}')
                    a(f'  v_and_b32 v{X[3]}, s53, v{X[4]}')
                rnd2()
                a(f'  v_mul_f32 v{X[2]}, v{X[2]}, v{X[2]}')
                a(f'  v_mul_f32 v{X[3]}, v{X[3]}, v{X[3]}')
                rnd2()
                a(f'  v_mul_f32 v{X[2]}, s76, v{X[2]}')
                a(f'  v_mul_f32 v{X[3]}, s76, v{X[3]}')
                rnd2()
                a(f'  v_mul_f32 v{X[2]}, s77, v{X[2]}')
                a(f'  v_mul_f32 v{X[3]}, s77, v{X[3]}')
                a(f'  v_exp_f32 v{X[2]}, v{X[2]}')
                a(f'  v_exp_f32 v{X[3]}, v{X[3]}')
                a('  s_nop 0')
                a(f'  v_cvt_pk_bf16_f32 v{RBp}, v{X[2]}, v{X[3]}')
                a('  s_nop 1')
                a(f'  v_mfma_f32_16x16x16_bf16 {vr(GG+4*u,4)}, {vr(WSt,2)}, {vr(RBp,2)}, 0')
                a(f'  v_mfma_f32_16x16x16_bf16 {vr(HT,4)}, {vr(WRt,2)}, {vr(RBp,2)}, 0')
                a('  s_nop 7')
                a('  s_nop 1')
                a(f'  v_cvt_pk_bf16_f32 v{HH+2*u}, v{HT}, v{HT+1}')
                a(f'  v_cvt_pk_bf16_f32 v{HH+2*u+1}, v{HT+2}, v{HT+3}')
        if opt.get('pstamp') and t == -b_lag: st()
        a(f'  s_waitcnt vmcnt({2*b_lag + NG*(t + b_lag)})')
        if opt.get('pstamp') and t == -b_lag: st()
        if t == -b_lag:
            if opt.get('warm2'):
                a('  s_waitcnt vmcnt(0)')
            a(f'  v_mov_b32 v{VDUM}, {DUMMY_ROW*128}')
        decode((t + b_lag) % R)
        for g in range(NG):
            gather((t + b_lag) % R, g)
    a('  s_waitcnt lgkmcnt(0)')
    a('  s_barrier')
    st()
    if opt.get('prio'):
        pr = opt['prio']
        if pr == 1:
            a('  s_cmp_lt_u32 s24, 8')
            a('  s_cbranch_scc1 p2_noprio')
            a('  s_setprio 1')
            a.label('p2_noprio')
        if pr == 2:
            a('  s_cmp_lt_u32 s24, 4')
            a('  s_cbranch_scc1 p2_noprio')
            a('  s_setprio 1')
            a('  s_cmp_lt_u32 s24, 8')
            a('  s_cbranch_scc1 p2_noprio')
            a('  s_setprio 2')
            a('  s_cmp_lt_u32 s24, 12')
            a('  s_cbranch_scc1 p2_noprio')
            a('  s_setprio 3')
            a.label('p2_noprio')
    a('  s_cmp_eq_u32 s64, 0')
    a('  s_cbranch_scc1 p2_loop_exit')
    a.label('p2_loop')
    U = R
    if se and se > R and se % R == 0:
        U = se
    for t in range(U):
        tb = t % R
        stageA((tb + 2*b_lag) % R)
        a(f'  s_waitcnt vmcnt({(NG+2)*b_lag})')
        decode((tb + b_lag) % R)
        for g in range(NG):
            gather((tb + b_lag) % R, g)
            a(f'  s_waitcnt vmcnt({(NG+2)*b_lag})')
            consume(tb, g)
        if se and (t % se) == se - 1:
            a('  s_cmp_eq_u32 s69, 0')
            a(f'  s_cbranch_scc1 p2_nosync{t}')
            a('  s_barrier')
            a('  s_sub_u32 s69, s69, 1')
            a.label(f'p2_nosync{t}')
        a('  s_sub_u32 s64, s64, 1')
        a('  s_cmp_eq_u32 s64, 0')
        if t < U - 1:
            a('  s_cbranch_scc1 p2_loop_exit')
        else:
            a('  s_cbranch_scc0 p2_loop')
    a.label('p2_loop_exit')
    if se:
        a.label('p2_owed')
        a('  s_cmp_eq_u32 s69, 0')
        a('  s_cbranch_scc1 p2_owed_done')
        a('  s_barrier')
        a('  s_sub_u32 s69, s69, 1')
        a('  s_branch p2_owed')
        a.label('p2_owed_done')
    st()
    a('  s_waitcnt vmcnt(0) lgkmcnt(0)')
    a('  s_barrier')
    st()
    def split4(src):
        a(f'  v_cvt_pk_bf16_f32 v{BT}, v{src}, v{src+1}')
        a(f'  v_cvt_pk_bf16_f32 v{BT+1}, v{src+2}, v{src+3}')
        a(f'  v_lshlrev_b32 v{X[0]}, 16, v{BT}')
        a(f'  v_and_b32 v{X[1]}, s53, v{BT}')
        a(f'  v_lshlrev_b32 v{X[2]}, 16, v{BT+1}')
        a(f'  v_and_b32 v{X[3]}, s53, v{BT+1}')
        for q in range(4):
            a(f'  v_sub_f32 v{X[q]}, v{src+q}, v{X[q]}')
        a(f'  v_cvt_pk_bf16_f32 v{BT+2}, v{X[0]}, v{X[1]}')
        a(f'  v_cvt_pk_bf16_f32 v{BT+3}, v{X[2]}, v{X[3]}')
        a('  s_nop 1')
    for u in range(5):
        a(f'  s_cmp_ge_u32 s{70+u}, {E}')
        a(f'  s_cbranch_scc1 p2_epi_skip{u}')
        a(f'  s_add_u32 s26, s24, {16*u}')
        a('  s_lshl_b32 s26, s26, 11')
        a(f'  v_lshlrev_b32 v{X[0]}, 7, v{P}')
        a(f'  v_lshl_add_u32 v{X[0]}, v{VROW4}, 4, v{X[0]}')
        a(f'  v_add_u32 v{X[0]}, s26, v{X[0]}')
        a(f'  ds_read_b128 {vr(Sg,4)}, v{X[0]}')
        a(f'  ds_read_b128 {vr(Sg+4,4)}, v{X[0]} offset:64')
        a('  s_waitcnt lgkmcnt(0)')
        order = [0, 2, 1, 3]
        for i in range(4):
            a(f'  v_cvt_f32_f64 v{SF+order[i]}, {vr(Sg+2*i,2)}')
        split4(SF)
        a(f'  v_mfma_f32_16x16x32_bf16 {vr(Y,4)}, {vr(WD,4)}, {vr(BT,4)}, 0')
        a('  s_nop 7')
        a('  s_nop 1')
        for q in range(4):
            a(f'  v_mul_f32 v{Y+q}, v{Y+q}, v{GG+4*u+q}')
        split4(Y)
        a(f'  v_mfma_f32_16x16x32_bf16 {vr(Z,4)}, {vr(WU,4)}, {vr(BT,4)}, 0')
        a(f'  v_lshlrev_b32 v{SF}, 16, v{HH+2*u}')
        a(f'  v_and_b32 v{SF+1}, s53, v{HH+2*u}')
        a(f'  v_lshlrev_b32 v{SF+2}, 16, v{HH+2*u+1}')
        a(f'  v_and_b32 v{SF+3}, s53, v{HH+2*u+1}')
        a(f'  v_lshlrev_b32 v{Y}, 16, v{MM+2*u}')
        a(f'  v_and_b32 v{Y+1}, s53, v{MM+2*u}')
        a(f'  v_lshlrev_b32 v{Y+2}, 16, v{MM+2*u+1}')
        a(f'  v_and_b32 v{Y+3}, s53, v{MM+2*u+1}')
        a('  s_nop 1')
        a(f'  v_cvt_pk_bf16_f32 v{X[0]}, v{Z}, v{Z+1}')
        a(f'  v_cvt_pk_bf16_f32 v{X[1]}, v{Z+2}, v{Z+3}')
        a(f'  v_lshlrev_b32 v{Z}, 16, v{X[0]}')
        a(f'  v_and_b32 v{Z+1}, s53, v{X[0]}')
        a(f'  v_lshlrev_b32 v{Z+2}, 16, v{X[1]}')
        a(f'  v_and_b32 v{Z+3}, s53, v{X[1]}')
        for q in range(4):
            a(f'  v_mul_f32 v{Z+q}, v{Z+q}, v{SF+q}')
        a(f'  v_cvt_pk_bf16_f32 v{X[0]}, v{Z}, v{Z+1}')
        a(f'  v_cvt_pk_bf16_f32 v{X[1]}, v{Z+2}, v{Z+3}')
        a(f'  v_lshlrev_b32 v{Z}, 16, v{X[0]}')
        a(f'  v_and_b32 v{Z+1}, s53, v{X[0]}')
        a(f'  v_lshlrev_b32 v{Z+2}, 16, v{X[1]}')
        a(f'  v_and_b32 v{Z+3}, s53, v{X[1]}')
        for q in range(4):
            a(f'  v_add_f32 v{Z+q}, v{Z+q}, v{Y+q}')
        a(f'  v_cvt_pk_bf16_f32 v{Z}, v{Z}, v{Z+1}')
        a(f'  v_cvt_pk_bf16_f32 v{Z+1}, v{Z+2}, v{Z+3}')
        a(f'  v_add_u32 v{X[3]}, s{70+u}, v{P}')
        a(f'  v_lshlrev_b32 v{X[4]}, 5, v{X[3]}')
        a(f'  v_lshl_add_u32 v{X[4]}, v{VROW4}, 3, v{X[4]}')
        a(f'  buffer_store_dwordx2 {vr(Z,2)}, v{X[4]}, s[16:19], 0 offen{OTF}')
        a.label(f'p2_epi_skip{u}')
    if st.on:
        a('  s_waitcnt vmcnt(0)')
        st()
    st.flush('s24')
    a.label('p2_done')
    a('  s_endpgm')
    return maxv

def descriptor(a, name, vgpr, sgpr):
    a(f'.amdhsa_kernel {name}')
    a(f'  .amdhsa_next_free_vgpr {vgpr}')
    a(f'  .amdhsa_next_free_sgpr {sgpr}')
    a(f'  .amdhsa_accum_offset {(vgpr + 3) // 4 * 4}')
    a('  .amdhsa_group_segment_fixed_size 0')
    a('  .amdhsa_kernarg_size 112')
    a('  .amdhsa_user_sgpr_count 2')
    a('  .amdhsa_user_sgpr_kernarg_segment_ptr 1')
    a('  .amdhsa_system_sgpr_workgroup_id_x 1')
    a('  .amdhsa_float_denorm_mode_32 3')
    a('.end_amdhsa_kernel')

HEADER = '''; Kernarg layout (112 bytes, ptrs only, base s[0:1]):
; @launch kernel=p1_kernel grid=(256,1,1) block=(1024,1,1) lds=163840
; @launch kernel=p2_kernel grid=(256,1,1) block=(1024,1,1) lds=163840
.amdgcn_target "amdgcn-amd-amdhsa--gfx950"
.text
.globl p1_kernel
.globl p2_kernel
'''

def build(opt):
    cfg = Cfg(opt)
    a = Asm()
    a(HEADER.rstrip('\n'))
    gen_p1(a, opt, cfg)
    v2 = gen_p2(a, opt, cfg)
    a('.section .rodata,"a"')
    a('.p2align 6')
    ns = 102 if opt.get('stamp') else 80
    descriptor(a, 'p1_kernel', 128, ns)
    a('.p2align 6')
    descriptor(a, 'p2_kernel', v2, ns)
    return a.text()

if __name__ == '__main__':
    out = sys.argv[1] if len(sys.argv) > 1 else 'standalone__molecular_angular_gemnet__graph.s'
    opt = {}
    for kv in sys.argv[2:]:
        k, v = kv.split('=')
        opt[k] = int(v) if v.lstrip('-').isdigit() else v
    open(out, 'w').write(build(opt))
    print('wrote', out)
```

```python
import struct, sys, math

def f32bits(x):
    return struct.unpack('<I', struct.pack('<f', x))[0]
def bits2f(b):
    return struct.unpack('<f', struct.pack('<I', b))[0]

E = 320000
T = 10240000
NWG = 256
import os
KSH = int(os.environ.get('KSH', 14))
NK = (E + (1 << KSH) - 1) >> KSH
HIST = 131072
TMP = HIST + NK * 1024
DUMMY_ROW = 1264

class Cfg:
    def __init__(self, opt):
        self.S = 1
        self.NTT = NWG
        self.SUB = 40000
        self.RPS = 10
        self.SLICE = 21504
        self.CBASE = self.SLICE * 4
        self.SLICE_BYTES = self.SLICE * 6
        maxpad = self.SUB + 256 * 7
        assert maxpad <= 2 * self.SLICE and self.SUB > self.SLICE
        self.TILE_BYTES = (maxpad * 6 + 127) // 128 * 128
        self.TAB_BYTES = 256 * self.NTT * 4
        self.REC_OFF = self.TAB_BYTES
        self.REC_BYTES = self.NTT * self.TILE_BYTES
        self.NSL = 2

class Asm:
    def __init__(self):
        self.lines = []
    def __call__(self, s=''):
        for l in s.split('\n'):
            self.lines.append(l)
    def label(self, s):
        self.lines.append(s + ':')
    def text(self):
        return '\n'.join(self.lines) + '\n'

def vr(a, n=1):
    return f'v{a}' if n == 1 else f'v[{a}:{a+n-1}]'

def srd(a, d, ptr, size):
    a(f'  s_mov_b32 s{d}, s{ptr}')
    a(f'  s_and_b32 s{d+1}, s{ptr+1}, 0xffff')
    a(f'  s_mov_b32 s{d+2}, {size}')
    a(f'  s_mov_b32 s{d+3}, 0x20000')

class Stamps:
    def __init__(self, a, on, name, slot):
        self.a = a; self.on = on; self.n = 0; self.name = name; self.slot = slot; self.wave = 0
    def __call__(self):
        if not self.on: return
        a = self.a
        a('  s_memtime s[80:81]')
        a('  s_memrealtime s[82:83]')
        a('  s_waitcnt lgkmcnt(0)')
        a(f'  s_mov_b32 s{84+2*self.n}, s80')
        a(f'  s_mov_b32 s{85+2*self.n}, s82')
        self.n += 1
        assert self.n <= 9
    def flush(self, wavereg):
        if not self.on: return
        a = self.a
        if getattr(self, 'dbg', False):
            a(f'  s_cmp_lg_u32 {wavereg}, 0')
            a(f'  s_cbranch_scc1 {self.name}_nostamp')
            a(f'  s_cmp_lg_u32 s2, {self.dbgwg}')
            a(f'  s_cbranch_scc1 {self.name}_nostamp')
            a('  s_load_dwordx2 s[80:81], s[0:1], 96')
            a('  s_waitcnt lgkmcnt(0)')
            a('  v_mov_b32 v1, 0')
            for i in range(self.n):
                a(f'  v_mov_b32 v2, s{85+2*i}')
                a(f'  global_store_dword v1, v2, s[80:81] offset:{4*i}')
            a.label(f'{self.name}_nostamp')
            return
        a(f'  s_cmp_lg_u32 {wavereg}, {self.wave}')
        a(f'  s_cbranch_scc1 {self.name}_nostamp')
        a('  s_load_dwordx2 s[80:81], s[0:1], 104')
        a('  s_waitcnt lgkmcnt(0)')
        a(f'  s_add_u32 s80, s80, {200*1048576 + self.slot*65536}')
        a('  s_addc_u32 s81, s81, 0')
        a('  s_lshl_b32 s82, s2, 7')
        a('  v_mov_b32 v1, s82')
        for i in range(2*self.n):
            a(f'  v_mov_b32 v2, s{84+i}')
            a(f'  global_store_dword v1, v2, s[80:81] offset:{4*i}')
        a.label(f'{self.name}_nostamp')

def gen_p1(a, opt, cfg):
    st = Stamps(a, bool(opt.get('stamp')), 'p1', 0); st.dbg = opt.get('stamp') == 2; st.dbgwg = opt.get('dwg', 0)
    NTF = ' nt' if opt.get('nt_in', 1) else ''
    STF = {0: '', 1: ' nt', 2: ' sc1', 3: ' sc0 sc1', 4: ' sc0'}[opt.get('nt_st', 2)]
    S = cfg.S
    W0, W1, AUX = 8, 48, 88
    CO = 32
    t = [108 + i for i in range(20)]
    inv2pi = 1.0 / (2.0 * math.pi)
    chi_bits = f32bits(inv2pi) & 0xffffff00
    clo_bits = f32bits(inv2pi - bits2f(chi_bits))
    a('.p2align 8')
    a('.type p1_kernel,@function')
    a.label('p1_kernel')
    a('  s_cmp_ge_u32 s2, 256')
    a('  s_cbranch_scc1 p1_done')
    a('  s_load_dwordx4 s[32:35], s[0:1], 8')
    a('  s_load_dwordx2 s[36:37], s[0:1], 32')
    a('  s_load_dwordx2 s[38:39], s[0:1], 48')
    a('  s_load_dwordx2 s[28:29], s[0:1], 104')
    a('  s_load_dwordx2 s[74:75], s[0:1], 0')
    a('  v_lshlrev_b32 v1, 4, v0')
    a(f'  v_add_u32 v2, {HIST}, v1')
    for r in range(4, 8):
        a(f'  v_mov_b32 v{r}, 0')
    a('  ds_write_b128 v2, v[4:7]')
    a('  ds_write_b128 v2, v[4:7] offset:16384')
    IL = opt.get('ilv', 0)
    a(f'  s_mul_i32 s40, s2, {16000 if IL else 160000}')
    a(f'  s_mul_i32 s41, s2, {8000 if IL else 80000}')
    a('  v_add_u32 v1, s40, v1')
    a('  v_lshlrev_b32 v3, 3, v0')
    a('  v_add_u32 v3, s41, v3')
    a('  v_readfirstlane_b32 s24, v0')
    a('  v_cmp_gt_u32 vcc, 1000, v0')
    a('  s_lshr_b32 s24, s24, 6')
    a('  s_mov_b64 s[44:45], vcc')
    for i in range(1, 10):
        a(f'  s_mov_b32 s{45+i}, {i*16000*(256 if IL else 1)}')
        a(f'  s_mov_b32 s{55+i}, {i*8000*(256 if IL else 1)}')
    a('  s_waitcnt lgkmcnt(0)')
    a('  s_load_dword s26, s[38:39], 0')
    srd(a, 4, 32, T * 4)
    srd(a, 8, 34, T * 4)
    srd(a, 12, 36, T * 2)
    st()
    a('  s_mov_b64 exec, s[44:45]')
    def issue_round(i):
        so = '0' if i == 0 else f's{45+i}'
        sa = '0' if i == 0 else f's{55+i}'
        a(f'  buffer_load_dwordx4 {vr(W0+4*i,4)}, v1, s[4:7], {so} offen{NTF}')
        a(f'  buffer_load_dwordx4 {vr(W1+4*i,4)}, v1, s[8:11], {so} offen{NTF}')
        a(f'  buffer_load_dwordx2 {vr(AUX+2*i,2)}, v3, s[12:15], {sa} offen{NTF}')
    AHEAD = opt.get('ahead', 2)
    for i in range(AHEAD):
        issue_round(i)
    issued = AHEAD
    a('  s_mov_b32 s27, 0xffff0000')
    a(f'  s_mov_b32 s30, {chi_bits:#x}')
    a(f'  s_mov_b32 s31, {clo_bits:#x}')
    a(f'  s_mov_b32 s42, {HIST}')
    a('  s_mov_b32 s43, 0x3fc')
    a('  v_mov_b32 v2, 1')
    srd(a, 20, 28, cfg.TAB_BYTES)
    srd(a, 76, 74, E * 32)
    a(f'  s_mul_i32 s40, s2, {S * cfg.TILE_BYTES}')
    a('  s_add_u32 s28, s28, s40')
    a('  s_addc_u32 s29, s29, 0')
    a(f'  s_add_u32 s28, s28, {cfg.REC_OFF}')
    a('  s_addc_u32 s29, s29, 0')
    a('  s_waitcnt lgkmcnt(0)')
    a('  s_and_b32 s26, s26, 0xffff')
    a('  s_lshl_b32 s26, s26, 16')
    a('  s_barrier')
    for i in range(1, 8):
        a(f'  s_mov_b32 s{CO+i}, {i*16128}')
    stores_done = 0
    for h in range(S):
        sfx = f'_{h}'
        if h > 0:
            a('  v_mov_b32 v2, 1')
            a(f'  s_mov_b32 s42, {HIST}')
            a('  s_mov_b32 s43, 0x3fc')
            a('  s_mov_b64 exec, s[44:45]')
        for i in range(h * cfg.RPS, (h + 1) * cfg.RPS):
            A = [W0 + 4*i + e for e in range(4)]
            O = [W1 + 4*i + e for e in range(4)]
            G = [AUX + 2*i, AUX + 2*i + 1]
            a(f'  s_waitcnt vmcnt({3*(issued - 1 - i) + stores_done})')
            if issued < 10:
                issue_round(issued); issued += 1
            a(f'  v_lshlrev_b32 v{t[0]}, 16, v{G[0]}')
            a(f'  v_and_b32 v{t[1]}, s27, v{G[0]}')
            a(f'  v_lshlrev_b32 v{t[2]}, 16, v{G[1]}')
            a(f'  v_and_b32 v{t[3]}, s27, v{G[1]}')
            for e in range(4):
                a(f'  v_mul_f32 v{t[e]}, s26, v{t[e]}')
            a(f'  v_cvt_pk_bf16_f32 v{t[4]}, v{t[0]}, v{t[1]}')
            a(f'  v_cvt_pk_bf16_f32 v{t[5]}, v{t[2]}, v{t[3]}')
            for e in range(4):
                a(f'  v_lshrrev_b32 v{t[8+e]}, 8, v{O[e]}')
            a(f'  v_lshlrev_b32 v{t[0]}, 16, v{t[4]}')
            a(f'  v_and_b32 v{t[1]}, s27, v{t[4]}')
            a(f'  v_lshlrev_b32 v{t[2]}, 16, v{t[5]}')
            a(f'  v_and_b32 v{t[3]}, s27, v{t[5]}')
            for e in range(4):
                a(f'  v_bfi_b32 v{t[8+e]}, 15, v{O[e]}, v{t[8+e]}')
            for e in range(4):
                a(f'  v_mul_f32 v{t[4+e]}, s30, v{t[e]}')
            for e in range(4):
                a(f'  v_fract_f32 v{t[4+e]}, v{t[4+e]}')
            for e in range(4):
                a(f'  v_fma_f32 v{t[4+e]}, v{t[e]}, s31, v{t[4+e]}')
            for e in range(4):
                a(f'  v_cos_f32 v{t[4+e]}, v{t[4+e]}')
            for e in range(4):
                a(f'  v_lshrrev_b32 v{t[12+e]}, 2, v{O[e]}')
            for e in range(4):
                a(f'  v_lshrrev_b32 v{t[e]}, {KSH}, v{A[e]}')
            for e in range(4):
                a(f'  v_and_b32 v{t[12+e]}, s43, v{t[12+e]}')
            for e in range(4):
                a(f'  v_lshl_or_b32 v{t[12+e]}, v{t[e]}, 10, v{t[12+e]}')
            a(f'  v_cvt_pk_bf16_f32 v{t[16]}, v{t[4]}, v{t[5]}')
            a(f'  v_cvt_pk_bf16_f32 v{t[17]}, v{t[6]}, v{t[7]}')
            for e in range(4):
                a(f'  v_add_u32 v{t[e]}, s42, v{t[12+e]}')
            for e in range(4):
                a(f'  ds_add_u32 v{t[e]}, v2')
            for e in range(4):
                a(f'  v_lshl_or_b32 v{A[e]}, v{t[8+e]}, 19, v{A[e]}')
            a(f'  v_mov_b32 v{O[0]}, v{t[16]}')
            a(f'  v_mov_b32 v{O[2]}, v{t[17]}')
            a(f'  v_lshl_or_b32 v{G[0]}, v{t[13]}, 16, v{t[12]}')
            a(f'  v_lshl_or_b32 v{G[1]}, v{t[15]}, 16, v{t[14]}')
        a('  s_mov_b64 exec, -1')
        a('  s_waitcnt lgkmcnt(0)')
        a('  s_barrier')
        st()
        if h == S - 1 and opt.get('mpf1', 1):
            a('  s_sub_u32 s40, s24, 4')
            a('  s_cmp_ge_u32 s40, 5')
            a('  s_cbranch_scc1 p1_nopf')
            a('  s_mul_i32 s41, s2, 40000')
            a('  s_and_b32 s41, s41, 0xffffff80')
            a('  v_subrev_u32 v5, 256, v0')
            a('  v_lshlrev_b32 v5, 7, v5')
            a(f'  buffer_load_dword v{W1+1}, v5, s[76:79], s41 offen')
            a.label('p1_nopf')
        a('  v_lshlrev_b32 v4, 2, v0')
        a(f'  v_add_u32 v4, {HIST}, v4')
        a('  s_cmp_ge_u32 s24, 4')
        a(f'  s_cbranch_scc1 p1_skip1{sfx}')
        for k in range(NK):
            a(f'  ds_read_b32 v{t[k]}, v4 offset:{k*1024}')
        a('  v_mov_b32 v5, 0')
        a('  s_waitcnt lgkmcnt(0)')
        ra, rb = 5, 6
        for k in range(NK):
            a(f'  v_add_u32 v{rb}, v{ra}, v{t[k]}')
            a(f'  v_mov_b32 v{t[k]}, v{ra}')
            ra, rb = rb, ra
        assert ra == 5
        a('  v_add_u32 v6, 7, v5')
        a('  v_and_b32 v6, -8, v6')
        a('  v_mov_b32 v7, v6')
        for sh in (1, 2, 4, 8):
            a('  s_nop 1')
            a(f'  v_add_u32_dpp v7, v7, v7 row_shr:{sh} row_mask:0xf bank_mask:0xf bound_ctrl:0')
        a('  s_nop 1')
        a('  v_add_u32_dpp v7, v7, v7 row_bcast:15 row_mask:0xa bank_mask:0xf')
        a('  s_nop 1')
        a('  v_add_u32_dpp v7, v7, v7 row_bcast:31 row_mask:0xc bank_mask:0xf')
        a('  s_lshl_b32 s40, s24, 2')
        a(f'  s_add_u32 s40, s40, {TMP}')
        a('  v_mov_b32 v3, s40')
        a('  s_mov_b32 exec_lo, 0')
        a('  s_mov_b32 exec_hi, 0x80000000')
        a('  ds_write_b32 v3, v7')
        a('  s_mov_b64 exec, -1')
        a.label(f'p1_skip1{sfx}')
        a('  s_waitcnt lgkmcnt(0)')
        a('  s_barrier')
        a(f'  v_mov_b32 v1, {TMP}')
        a('  ds_read2_b32 v[2:3], v1 offset0:0 offset1:1')
        a('  s_waitcnt lgkmcnt(0)')
        a('  v_readfirstlane_b32 s66, v2')
        a('  v_readfirstlane_b32 s67, v3')
        a('  ds_read2_b32 v[2:3], v1 offset0:2 offset1:3')
        a('  s_waitcnt lgkmcnt(0)')
        a('  v_readfirstlane_b32 s68, v2')
        a('  v_readfirstlane_b32 s69, v3')
        a('  s_nop 3')
        a('  s_add_u32 s70, s66, s67')
        a('  s_add_u32 s71, s70, s68')
        a('  s_add_u32 s72, s71, s69')
        a('  s_cmp_ge_u32 s24, 4')
        a(f'  s_cbranch_scc1 p1_skip2{sfx}')
        a('  s_mov_b32 s73, 0')
        a('  s_cmp_eq_u32 s24, 1')
        a('  s_cselect_b32 s73, s66, s73')
        a('  s_cmp_eq_u32 s24, 2')
        a('  s_cselect_b32 s73, s70, s73')
        a('  s_cmp_eq_u32 s24, 3')
        a('  s_cselect_b32 s73, s71, s73')
        a('  v_sub_u32 v7, v7, v6')
        a('  v_add_u32 v7, s73, v7')
        for k in range(NK):
            a(f'  v_add_u32 v{t[k]}, v7, v{t[k]}')
            a(f'  ds_write_b32 v4, v{t[k]} offset:{k*1024}')
        a('  v_lshl_or_b32 v5, v7, 13, v5')
        a(f'  s_mul_i32 s40, s2, {S*4}')
        if h: a(f'  s_add_u32 s40, s40, {h*4}')
        a(f'  s_mov_b32 s41, {cfg.NTT*4}')
        a('  v_mul_lo_u32 v6, v0, s41')
        a('  buffer_store_dword v5, v6, s[20:23], s40 offen')
        a.label(f'p1_skip2{sfx}')
        a('  s_waitcnt lgkmcnt(0)')
        a('  s_barrier')
        st()
        a('  v_mov_b32 v2, 1')
        a(f'  v_mov_b32 v1, {HIST}')
        a('  s_mov_b64 exec, s[44:45]')
        r0 = h * cfg.RPS * 4
        nrec = cfg.RPS * 4
        batches = [(b, min(8, nrec - b)) for b in range(0, nrec, 8)]
        def rank_issue(bi):
            b, n = batches[bi]
            base = (bi & 1) * 8
            for x in range(n):
                rec = r0 + b + x
                j, hh = rec >> 1, rec & 1
                ad = 4 + (x & 3)
                a(f'  v_add_u32_sdwa v{ad}, v1, v{AUX+j} dst_sel:DWORD dst_unused:UNUSED_PAD src0_sel:DWORD src1_sel:WORD_{hh}')
                a(f'  ds_add_rtn_u32 v{t[base+x]}, v{ad}, v2')
        def rank_pack(bi):
            b, n = batches[bi]
            base = (bi & 1) * 8
            for x in range(0, n, 2):
                j = (r0 + b + x) >> 1
                a(f'  v_lshl_or_b32 v{AUX+j}, v{t[base+x+1]}, 16, v{t[base+x]}')
        rank_issue(0)
        for bi in range(len(batches)):
            if bi + 1 < len(batches):
                rank_issue(bi + 1)
                a(f'  s_waitcnt lgkmcnt({batches[bi+1][1]})')
            else:
                a('  s_waitcnt lgkmcnt(0)')
            rank_pack(bi)
        if opt.get('p1stamp'): st()
        a('  s_mov_b64 exec, -1')
        a(f'  s_mov_b32 s43, {cfg.SLICE}')
        a(f'  s_mov_b32 s41, {cfg.CBASE}')
        a('  s_mov_b32 s40, 0xaaab')
        a('  v_mul_u32_u24 v1, s40, v0')
        a('  v_lshrrev_b32 v1, 17, v1')
        a('  v_mul_u32_u24 v3, 3, v1')
        a('  v_sub_u32 v3, v0, v3')
        a(f'  v_lshlrev_b32 v{t[16]}, 5, v1')
        a(f'  v_lshl_add_u32 v{t[16]}, v3, 4, v{t[16]}')
        a(f'  v_lshlrev_b32 v{t[17]}, 4, v1')
        a(f'  v_add_u32 v{t[17]}, s41, v{t[17]}')
        a('  v_cmp_eq_u32 vcc, 2, v3')
        a(f'  v_mov_b32 v{t[19]}, {336*32}')
        a(f'  v_mov_b32 v1, {336*16}')
        a(f'  v_cndmask_b32 v{t[16]}, v{t[16]}, v{t[17]}, vcc')
        a(f'  v_cndmask_b32 v{t[17]}, v{t[19]}, v1, vcc')
        for s in range(cfg.NSL):
            a('  s_mov_b64 exec, s[44:45]')
            a(f'  s_mov_b32 s42, {s*cfg.SLICE}')
            for x in range(r0, r0 + nrec):
                j, hh = x >> 1, x & 1
                q = 4 + 2 * (x & 1); a0 = q + 1
                creg = W1 + 4 * (x >> 2) + 2 * ((x >> 1) & 1)
                a(f'  v_subrev_u32_sdwa v{q}, s42, v{AUX+j} dst_sel:DWORD dst_unused:UNUSED_PAD src0_sel:DWORD src1_sel:WORD_{hh}')
                a(f'  v_cmpx_gt_u32 vcc, s43, v{q}')
                a(f'  v_lshlrev_b32 v{a0}, 2, v{q}')
                a(f'  v_lshl_add_u32 v{q}, v{q}, 1, s41')
                a(f'  ds_write_b32 v{a0}, v{W0+x}')
                a(f'  ds_write_b16{"_d16_hi" if (x & 1) else ""} v{q}, v{creg}')
                a('  s_mov_b64 exec, s[44:45]')
            a('  s_mov_b64 exec, -1')
            a(f'  s_add_u32 s16, s28, {s*cfg.SLICE_BYTES}')
            a('  s_addc_u32 s17, s29, 0')
            a('  s_and_b32 s17, s17, 0xffff')
            last = (s == cfg.NSL - 1)
            if not last:
                a(f'  s_mov_b32 s18, {cfg.SLICE_BYTES}')
            else:
                a(f'  s_sub_u32 s18, s72, {s*cfg.SLICE}')
                a('  s_mul_i32 s18, s18, 6')
            a('  s_mov_b32 s19, 0x20000')
            a('  v_lshlrev_b32 v1, 4, v0')
            a(f'  v_mov_b32 v3, v{t[16]}')
            a('  s_waitcnt lgkmcnt(0)')
            if opt.get('p1stamp'): st()
            a('  s_barrier')
            for half in range(2):
                for u in range(4):
                    a(f'  ds_read_b128 {vr(t[4*u],4)}, v3')
                    a(f'  v_add_u32 v3, v3, v{t[17]}')
                for u in range(4):
                    a(f'  s_waitcnt lgkmcnt({3-u})')
                    rnd = half * 4 + u
                    so = '0' if rnd == 0 else f's{CO+rnd}'
                    a(f'  buffer_store_dwordx4 {vr(t[4*u],4)}, v1, s[16:19], {so} offen{STF}')
                a('  s_nop 1')
            if not last:
                a('  s_barrier')
                if opt.get('p1stamp'): st()
        st()
    if st.on:
        a('  s_waitcnt vmcnt(0)')
        st()
    st.flush('s24')
    a.label('p1_done')
    a('  s_endpgm')

class RegAlloc:
    def __init__(self, start):
        self.n = start
    def get(self, k=1, align=1):
        self.n = (self.n + align - 1) // align * align
        r = self.n; self.n += k
        return r

def gen_p2(a, opt, cfg):
    st = Stamps(a, bool(opt.get('stamp')), 'p2', 1); st.wave = opt.get('swave', 0); st.dbg = opt.get('stamp') == 2; st.dbgwg = opt.get('dwg', 0)
    b_lag = opt.get('lag', 1)
    R = b_lag + 1
    NG = 8
    RNT = {0: '', 1: ' nt', 2: ' sc1', 3: ' sc0 sc1', 4: ' sc0 sc1 nt', 5: ' sc1 nt'}[opt.get('nt_rec', 0)]
    OTF = {0: '', 1: ' nt', 2: ' sc1', 3: ' sc0 sc1', 4: ' sc0'}[opt.get('out_st', 2)]
    se = opt.get('sync', 2)
    NSEG = 16 * cfg.S
    JPC = 32 // NSEG
    ra = RegAlloc(1)
    J4 = ra.get(); J8 = ra.get(); P = ra.get(); P7 = ra.get(); J2H = ra.get()
    VN = ra.get(); VB = ra.get(); VOFF8 = ra.get(); EE = ra.get()
    SELA = ra.get(); SELB = ra.get(); VDUM = ra.get(); COL = ra.get()
    D = [ra.get(2, 2), ra.get(2, 2)]
    PT = [ra.get(), ra.get()]; LA = [ra.get(), ra.get()]; GAD = [ra.get(), ra.get()]
    YR = [ra.get(), ra.get()]; AB = [ra.get(), ra.get()]
    X = [ra.get() for _ in range(6)]
    VROW4 = ra.get(); VLANE = ra.get()
    WD = ra.get(4, 2); WU = ra.get(4, 2)
    MM = ra.get(10, 2)
    GG = ra.get(20, 2)
    HH = ra.get(10, 2)
    main0 = ra.n
    RW = [ra.get() for _ in range(R)]; RC = [ra.get() for _ in range(R)]
    VV = [ra.get() for _ in range(R)]
    CC = [ra.get() for _ in range(R)]
    ROW = [ra.get() for _ in range(R)]
    G = [ra.get(NG) for _ in range(R)]
    maxv = ra.n
    rp = RegAlloc(G[0])
    WSt = rp.get(2, 2); WRt = rp.get(2, 2); CEN = rp.get(2); DI = rp.get(5); RBp = rp.get(2, 2)
    assert rp.n <= G[0] + NG * R, (rp.n, G[0] + NG*R)
    HT = D[0]
    ra2 = RegAlloc(main0)
    Sg = ra2.get(8, 2); SF = ra2.get(4, 2); BT = ra2.get(4, 2); Y = ra2.get(4, 2); Z = ra2.get(4, 2)
    maxv = max(maxv, ra2.n)
    assert maxv <= 128, maxv
    a('.p2align 8')
    a('.type p2_kernel,@function')
    a.label('p2_kernel')
    a('  s_cmp_ge_u32 s2, 256')
    a('  s_cbranch_scc1 p2_done')
    a('  s_load_dwordx2 s[28:29], s[0:1], 104')
    a('  s_load_dwordx2 s[32:33], s[0:1], 0')
    a('  s_load_dwordx2 s[34:35], s[0:1], 24')
    a('  s_load_dwordx2 s[36:37], s[0:1], 40')
    a('  s_load_dwordx4 s[40:43], s[0:1], 56')
    a('  s_load_dwordx4 s[44:47], s[0:1], 72')
    a('  s_load_dwordx2 s[48:49], s[0:1], 88')
    a('  v_readfirstlane_b32 s24, v0')
    a(f'  v_and_b32 v{VLANE}, 63, v0')
    a(f'  v_and_b32 v{P}, 15, v0')
    a('  s_lshr_b32 s24, s24, 6')
    a(f'  v_lshrrev_b32 v{X[0]}, 1, v{VLANE}')
    a(f'  v_and_b32 v{X[1]}, {NSEG-1}, v{X[0]}')
    a(f'  s_mul_i32 s25, s2, {cfg.NTT}')
    a(f'  s_mul_i32 s26, s24, {NSEG}')
    a('  s_add_u32 s25, s25, s26')
    a('  s_lshl_b32 s25, s25, 2')
    a(f'  v_lshlrev_b32 v{X[2]}, 2, v{X[1]}')
    a(f'  v_lshrrev_b32 v{VROW4}, 4, v{VLANE}')
    a('  s_waitcnt lgkmcnt(0)')
    srd(a, 12, 28, cfg.TAB_BYTES)
    a(f'  buffer_load_dword v{VN}, v{X[2]}, s[12:15], s25 offen')
    st()
    srd(a, 4, 32, E * 32)
    srd(a, 20, 34, E * 2)
    npf = 0
    a(f'  v_lshlrev_b32 v{X[3]}, 1, v{P}')
    a(f'  v_lshl_add_u32 v{X[4]}, v{VROW4}, 7, v{X[3]}')
    WTMP = [YR[0], YR[1], AB[0], AB[1], PT[0], PT[1], LA[0], LA[1]]
    for q in range(4):
        a(f'  global_load_ushort v{WTMP[q]}, v{X[4]}, s[44:45] offset:{q*32}'); npf += 1
    for q in range(4):
        a(f'  global_load_ushort v{WTMP[4+q]}, v{X[4]}, s[46:47] offset:{q*32}'); npf += 1
    a(f'  v_lshl_add_u32 v{X[4]}, v{VROW4}, 5, v{X[3]}')
    WT2 = [GAD[0], GAD[1], COL, EE]
    for q in range(2):
        a(f'  global_load_ushort v{WT2[q]}, v{X[4]}, s[42:43] offset:{q*128}'); npf += 1
    for q in range(2):
        a(f'  global_load_ushort v{WT2[2+q]}, v{X[4]}, s[40:41] offset:{q*128}'); npf += 1
    a(f'  v_lshlrev_b32 v{X[4]}, 1, v{VROW4}')
    for q in range(2):
        a(f'  global_load_ushort v{CEN+q}, v{X[4]}, s[36:37] offset:{q*8}'); npf += 1
    a(f'  s_lshl_b32 s27, s2, 4')
    for u in range(5):
        a(f'  s_add_u32 s26, s24, {16*u}')
        a('  s_lshl_b32 s26, s26, 12')
        a('  s_add_u32 s26, s26, s27')
        a(f'  s_mov_b32 s{70+u}, s26')
        a(f'  v_add_u32 v{X[3]}, s26, v{P}')
        a(f'  v_lshlrev_b32 v{X[4]}, 1, v{X[3]}')
        a(f'  buffer_load_ushort v{DI+u}, v{X[4]}, s[20:23], 0 offen'); npf += 1
    for u in range(5):
        a(f'  v_add_u32 v{X[3]}, s{70+u}, v{P}')
        a(f'  v_lshlrev_b32 v{X[4]}, 5, v{X[3]}')
        a(f'  v_lshl_add_u32 v{X[4]}, v{VROW4}, 3, v{X[4]}')
        a(f'  buffer_load_dwordx2 {vr(MM+2*u,2)}, v{X[4]}, s[4:7], 0 offen'); npf += 1
    nm = 5
    if opt.get('warm', 0):
        a('  s_cmp_ge_u32 s24, 8')
        a('  s_cbranch_scc1 p2_nowarm')
        a('  s_lshr_b32 s26, s2, 3')
        a('  s_lshl_b32 s26, s26, 3')
        a('  s_add_u32 s26, s26, s24')
        a('  s_lshl_b32 s26, s26, 13')
        a(f'  v_lshlrev_b32 v{X[4]}, 7, v{VLANE}')
        a(f'  buffer_load_dword v{VDUM}, v{X[4]}, s[4:7], s26 offen')
        a.label('p2_nowarm')
    a(f'  s_add_u32 s8, s28, {cfg.REC_OFF}')
    a('  s_addc_u32 s9, s29, 0')
    a('  s_and_b32 s9, s9, 0xffff')
    a(f'  s_mov_b32 s10, {cfg.REC_BYTES}')
    a('  s_mov_b32 s11, 0x20000')
    srd(a, 16, 48, E * 32)
    a(f'  v_lshlrev_b32 v{X[3]}, 4, v0')
    for r in (D[0], D[0]+1, D[1], D[1]+1):
        a(f'  v_mov_b32 v{r}, 0')
    assert D[1] == D[0] + 2
    a(f'  v_add_u32 v{X[4]}, 0x10000, v{X[3]}')
    a(f'  v_add_u32 v{X[5]}, 0x20000, v{X[3]}')
    for i in range(4):
        a(f'  ds_write_b128 v{X[3]}, {vr(D[0],4)} offset:{i*16384}')
    for i in range(4):
        a(f'  ds_write_b128 v{X[4]}, {vr(D[0],4)} offset:{i*16384}')
    for i in range(2):
        a(f'  ds_write_b128 v{X[5]}, {vr(D[0],4)} offset:{i*16384}')
    a(f'  v_and_b32 v{P7}, 7, v0')
    a(f'  v_lshlrev_b32 v{J4}, 2, v{P7}')
    a(f'  v_lshlrev_b32 v{J8}, 3, v{P}')
    a(f'  v_lshlrev_b32 v{J2H}, 1, v{P7}')
    a(f'  v_cmp_gt_u32 vcc, 8, v{P}')
    a(f'  v_mov_b32 v{X[3]}, 0x03020c0c')
    a(f'  v_mov_b32 v{X[4]}, 0x05040c0c')
    a(f'  v_cndmask_b32 v{SELA}, v{X[3]}, v{X[4]}, vcc')
    a(f'  v_mov_b32 v{X[3]}, 0x07060c0c')
    a(f'  v_mov_b32 v{X[4]}, 0x01000c0c')
    a(f'  v_cndmask_b32 v{SELB}, v{X[3]}, v{X[4]}, vcc')
    a(f'  v_and_b32 v{VOFF8}, 1, v{VLANE}')
    a(f'  v_lshlrev_b32 v{VOFF8}, 3, v{VOFF8}')
    if JPC > 1:
        a(f'  v_lshrrev_b32 v{X[3]}, {1 + int(math.log2(NSEG))}, v{VLANE}')
        a(f'  v_lshl_add_u32 v{VOFF8}, v{X[3]}, 4, v{VOFF8}')
    a(f'  s_mul_i32 s26, s24, {NSEG}')
    a(f'  v_add_u32 v{X[0]}, s26, v{X[1]}')
    a(f'  s_mov_b32 s27, {cfg.TILE_BYTES}')
    a(f'  v_mul_lo_u32 v{X[0]}, v{X[0]}, s27')
    a('  s_mov_b32 s52, 0xfffffff0')
    a('  s_mov_b32 s53, 0xffff0000')
    a('  s_mov_b32 s54, 0x3ff80')
    a('  s_mov_b32 s55, 0xffffe0')
    a(f'  s_waitcnt vmcnt({npf})')
    if opt.get('pstamp'): st()
    a(f'  v_lshrrev_b32 v{VB}, 16, v{VN}')
    a(f'  v_and_b32 v{VN}, 0xffff, v{VN}')
    a(f'  v_mad_u32_u24 v{VB}, v{VB}, 48, v{X[0]}')
    a(f'  v_mov_b32 v{X[0]}, v{VN}')
    for sh in (1, 2, 4, 8):
        a('  s_nop 1')
        a(f'  v_max_u32_dpp v{X[0]}, v{X[0]}, v{X[0]} row_ror:{sh} row_mask:0xf bank_mask:0xf')
    a('  s_nop 1')
    for i, ln in enumerate((0, 16, 32, 48)):
        a(f'  v_readlane_b32 s{56+i}, v{X[0]}, {ln}')
    a('  s_nop 3')
    a('  s_max_u32 s56, s56, s57')
    a('  s_max_u32 s58, s58, s59')
    a('  s_max_u32 s50, s56, s58')
    a('  s_mov_b32 s51, 0')
    a('  s_mov_b32 s56, 0')
    a('  s_mov_b32 s64, 0')
    if se:
        a(f'  s_mov_b32 s69, {opt.get("nsync", 38 // se)}')
    a(f'  s_waitcnt vmcnt({nm})')
    if opt.get('pstamp'): st()
    a(f'  v_lshl_or_b32 v{WD}, v{WTMP[1]}, 16, v{WTMP[0]}')
    a(f'  v_lshl_or_b32 v{WD+1}, v{WTMP[3]}, 16, v{WTMP[2]}')
    a(f'  v_lshl_or_b32 v{WU}, v{WTMP[5]}, 16, v{WTMP[4]}')
    a(f'  v_lshl_or_b32 v{WU+1}, v{WTMP[7]}, 16, v{WTMP[6]}')
    a(f'  v_lshl_or_b32 v{WSt}, v{WT2[1]}, 16, v{WT2[0]}')
    a(f'  v_lshl_or_b32 v{WRt}, v{WT2[3]}, 16, v{WT2[2]}')
    a(f'  v_mov_b32 v{WD+2}, v{WD}')
    a(f'  v_mov_b32 v{WD+3}, v{WD+1}')
    a(f'  v_mov_b32 v{WU+2}, v{WU}')
    a(f'  v_mov_b32 v{WU+3}, v{WU+1}')
    a(f'  v_mov_b32 v{WSt+1}, 0')
    a(f'  v_mov_b32 v{WRt+1}, 0')
    a(f'  v_mov_b32 v{RBp+1}, 0')
    a(f'  v_lshlrev_b32 v{CEN}, 16, v{CEN}')
    a(f'  v_lshlrev_b32 v{CEN+1}, 16, v{CEN+1}')
    uid = [0]
    def stageA(b):
        u = uid[0]; uid[0] += 1
        a.label(f'p2_chk{u}')
        a('  s_cmp_lg_u32 s56, 0')
        a(f'  s_cbranch_scc1 p2_go{u}')
        a('  s_cmp_ge_u32 s51, s50')
        a(f'  s_cbranch_scc1 p2_exh{u}')
        a(f'  v_add_u32 v{X[0]}, s51, v{VOFF8}')
        a(f'  v_cmp_gt_u32 vcc, v{VN}, v{X[0]}')
        a(f'  v_sub_u32 v{X[1]}, v{VN}, v{X[0]}')
        a(f'  v_min_u32 v{X[1]}, 8, v{X[1]}')
        a(f'  v_mad_u32_u24 v{X[2]}, v{X[0]}, 6, v{VB}')
        a(f'  v_or_b32 v{X[2]}, v{X[2]}, v{X[1]}')
        a(f'  s_bcnt1_i32_b64 s67, vcc')
        a(f'  v_mbcnt_lo_u32_b32 v{X[3]}, vcc_lo, 0')
        a(f'  v_mbcnt_hi_u32_b32 v{X[3]}, vcc_hi, v{X[3]}')
        a(f'  v_sub_u32 v{X[4]}, v{VLANE}, v{X[3]}')
        a(f'  v_add_u32 v{X[4]}, s67, v{X[4]}')
        a(f'  v_cndmask_b32 v{X[4]}, v{X[4]}, v{X[3]}, vcc')
        a(f'  v_cndmask_b32 v{X[2]}, 0, v{X[2]}, vcc')
        a(f'  v_and_b32 v{X[5]}, 6, v{X[4]}')
        a(f'  v_lshlrev_b32 v{X[5]}, 5, v{X[5]}')
        a(f'  v_and_or_b32 v{X[5]}, v{X[4]}, -8, v{X[5]}')
        a(f'  v_and_b32 v{X[4]}, 1, v{X[4]}')
        a(f'  v_lshl_or_b32 v{X[5]}, v{X[4]}, 2, v{X[5]}')
        a(f'  ds_permute_b32 v{EE}, v{X[5]}, v{X[2]}')
        a('  s_add_u32 s56, s67, 7')
        a('  s_lshr_b32 s56, s56, 3')
        a('  s_add_u32 s64, s64, s56')
        a(f'  s_add_u32 s51, s51, {16*JPC}')
        a('  s_waitcnt lgkmcnt(0)')
        a(f'  s_branch p2_go{u}')
        a.label(f'p2_exh{u}')
        a(f'  v_mov_b32 v{EE}, 0')
        a('  s_mov_b32 s56, 1')
        a('  s_nop 0')
        a.label(f'p2_go{u}')
        a('  s_sub_u32 s56, s56, 1')
        a(f'  v_mov_b32_dpp v{X[0]}, v{EE} row_newbcast:0 row_mask:0xf bank_mask:0x3')
        a(f'  v_mov_b32_dpp v{X[0]}, v{EE} row_newbcast:1 row_mask:0xf bank_mask:0xc')
        a(f'  v_mov_b32_dpp v{EE}, v{EE} row_shl:2 row_mask:0xf bank_mask:0xf bound_ctrl:0')
        a(f'  v_and_b32 v{X[1]}, s52, v{X[0]}')
        a(f'  v_and_b32 v{VV[b]}, 15, v{X[0]}')
        a(f'  v_add_u32 v{X[0]}, v{X[1]}, v{J4}')
        a(f'  v_add_u32 v{X[1]}, v{X[1]}, v{J2H}')
        F = {0: '', 1: ' nt', 2: ' sc1', 3: ' sc0'}
        a(f'  buffer_load_dword v{RW[b]}, v{X[0]}, s[8:11], 0 offen{F[opt.get("rw_f", 0)]}')
        a(f'  buffer_load_short_d16_hi v{RC[b]}, v{X[1]}, s[8:11], 0 offen offset:32{F[opt.get("rc_f", 0)]}')
    def decode(b):
        a(f'  v_cmp_gt_u32 vcc, v{VV[b]}, v{P7}')
        a(f'  v_lshlrev_b32 v{X[2]}, 5, v{RW[b]}')
        a(f'  v_lshrrev_b32 v{X[3]}, 12, v{RW[b]}')
        a(f'  v_and_b32 v{CC[b]}, s53, v{RC[b]}')
        a(f'  v_and_b32 v{X[2]}, s55, v{X[2]}')
        a(f'  v_and_b32 v{X[3]}, s54, v{X[3]}')
        a(f'  v_cndmask_b32 v{COL}, 0, v{X[2]}, vcc')
        if opt.get('colmask'):
            a(f'  v_and_b32 v{COL}, {opt["colmask"]}, v{COL}')
        a(f'  v_cndmask_b32 v{ROW[b]}, v{VDUM}, v{X[3]}, vcc')
        a('  s_nop 0')
    def gather(b, g):
        ad = GAD[g & 1]
        a(f'  v_add_u32_dpp v{ad}, v{COL}, v{J4} row_newbcast:{2*g} row_mask:0xf bank_mask:0x3')
        a(f'  v_add_u32_dpp v{ad}, v{COL}, v{J4} row_newbcast:{2*g+1} row_mask:0xf bank_mask:0xc')
        GF = {0: '', 1: ' sc0', 2: ' sc1', 3: ' nt'}[opt.get('gflag', 0)]
        a(f'  buffer_load_dword v{G[b]+g}, v{ad}, s[4:7], 0 offen{GF}')
    def consume(b, g):
        x = G[b] + g; y = YR[g & 1]
        a(f'  v_mov_b32_dpp v{y}, v{x} row_ror:8 row_mask:0xf bank_mask:0xf')
        a(f'  v_add_u32_dpp v{LA[0]}, v{ROW[b]}, v{J8} row_newbcast:{2*g} row_mask:0xf bank_mask:0xf')
        a(f'  v_add_u32_dpp v{LA[1]}, v{ROW[b]}, v{J8} row_newbcast:{2*g+1} row_mask:0xf bank_mask:0xf')
        a(f'  v_perm_b32 v{AB[0]}, v{x}, v{y}, v{SELA}')
        a(f'  v_perm_b32 v{AB[1]}, v{x}, v{y}, v{SELB}')
        a(f'  v_mul_f32_dpp v{PT[0]}, v{CC[b]}, v{AB[0]} row_newbcast:{2*g} row_mask:0xf bank_mask:0xf')
        a(f'  v_mul_f32_dpp v{PT[1]}, v{CC[b]}, v{AB[1]} row_newbcast:{2*g+1} row_mask:0xf bank_mask:0xf')
        a(f'  v_cvt_f64_f32 {vr(D[0],2)}, v{PT[0]}')
        a(f'  v_cvt_f64_f32 {vr(D[1],2)}, v{PT[1]}')
        if not opt.get('no_ds'):
            a(f'  ds_add_f64 v{LA[0]}, {vr(D[0],2)}')
            a(f'  ds_add_f64 v{LA[1]}, {vr(D[1],2)}')
    for t in range(-2*b_lag, -b_lag):
        stageA((t + 2*b_lag) % R)
    first = True
    for t in range(-b_lag, 0):
        stageA((t + 2*b_lag) % R)
        if first:
            first = False
            if opt.get('warm2'):
                nw = opt['warm2']
                a(f'  s_cmp_ge_u32 s24, {nw}')
                a('  s_cbranch_scc1 p2_nowarm2')
                a('  s_lshr_b32 s26, s2, 3')
                a(f'  s_mul_i32 s26, s26, {nw}')
                a('  s_add_u32 s26, s26, s24')
                a('  s_lshl_b32 s26, s26, 13')
                a(f'  v_lshlrev_b32 v{X[4]}, 7, v{VLANE}')
                a(f'  buffer_load_dword v{VDUM}, v{X[4]}, s[4:7], s26 offen')
                a.label('p2_nowarm2')
            a('  s_mov_b32 s76, 0xc1200000')
            a('  s_mov_b32 s77, 0x3fb8aa3b')
            for u in range(5):
                a(f'  v_lshlrev_b32 v{X[1]}, 16, v{DI+u}')
                a(f'  v_sub_f32 v{X[2]}, v{X[1]}, v{CEN}')
                a(f'  v_sub_f32 v{X[3]}, v{X[1]}, v{CEN+1}')
                def rnd2():
                    a(f'  v_cvt_pk_bf16_f32 v{X[4]}, v{X[2]}, v{X[3]}')
                    a(f'  v_lshlrev_b32 v{X[2]}, 16, v{X[4]}')
                    a(f'  v_and_b32 v{X[3]}, s53, v{X[4]}')
                rnd2()
                a(f'  v_mul_f32 v{X[2]}, v{X[2]}, v{X[2]}')
                a(f'  v_mul_f32 v{X[3]}, v{X[3]}, v{X[3]}')
                rnd2()
                a(f'  v_mul_f32 v{X[2]}, s76, v{X[2]}')
                a(f'  v_mul_f32 v{X[3]}, s76, v{X[3]}')
                rnd2()
                a(f'  v_mul_f32 v{X[2]}, s77, v{X[2]}')
                a(f'  v_mul_f32 v{X[3]}, s77, v{X[3]}')
                a(f'  v_exp_f32 v{X[2]}, v{X[2]}')
                a(f'  v_exp_f32 v{X[3]}, v{X[3]}')
                a('  s_nop 0')
                a(f'  v_cvt_pk_bf16_f32 v{RBp}, v{X[2]}, v{X[3]}')
                a('  s_nop 1')
                a(f'  v_mfma_f32_16x16x16_bf16 {vr(GG+4*u,4)}, {vr(WSt,2)}, {vr(RBp,2)}, 0')
                a(f'  v_mfma_f32_16x16x16_bf16 {vr(HT,4)}, {vr(WRt,2)}, {vr(RBp,2)}, 0')
                a('  s_nop 7')
                a('  s_nop 1')
                a(f'  v_cvt_pk_bf16_f32 v{HH+2*u}, v{HT}, v{HT+1}')
                a(f'  v_cvt_pk_bf16_f32 v{HH+2*u+1}, v{HT+2}, v{HT+3}')
        if opt.get('pstamp') and t == -b_lag: st()
        a(f'  s_waitcnt vmcnt({2*b_lag + NG*(t + b_lag)})')
        if opt.get('pstamp') and t == -b_lag: st()
        if t == -b_lag:
            if opt.get('warm2'):
                a('  s_waitcnt vmcnt(0)')
            a(f'  v_mov_b32 v{VDUM}, {DUMMY_ROW*128}')
        decode((t + b_lag) % R)
        for g in range(NG):
            gather((t + b_lag) % R, g)
    a('  s_waitcnt lgkmcnt(0)')
    a('  s_barrier')
    st()
    if opt.get('prio'):
        pr = opt['prio']
        if pr == 1:
            a('  s_cmp_lt_u32 s24, 8')
            a('  s_cbranch_scc1 p2_noprio')
            a('  s_setprio 1')
            a.label('p2_noprio')
        if pr == 2:
            a('  s_cmp_lt_u32 s24, 4')
            a('  s_cbranch_scc1 p2_noprio')
            a('  s_setprio 1')
            a('  s_cmp_lt_u32 s24, 8')
            a('  s_cbranch_scc1 p2_noprio')
            a('  s_setprio 2')
            a('  s_cmp_lt_u32 s24, 12')
            a('  s_cbranch_scc1 p2_noprio')
            a('  s_setprio 3')
            a.label('p2_noprio')
    a('  s_cmp_eq_u32 s64, 0')
    a('  s_cbranch_scc1 p2_loop_exit')
    a.label('p2_loop')
    U = R
    if se and se > R and se % R == 0:
        U = se
    for t in range(U):
        tb = t % R
        stageA((tb + 2*b_lag) % R)
        a(f'  s_waitcnt vmcnt({(NG+2)*b_lag})')
        decode((tb + b_lag) % R)
        for g in range(NG):
            gather((tb + b_lag) % R, g)
            a(f'  s_waitcnt vmcnt({(NG+2)*b_lag})')
            consume(tb, g)
        if se and (t % se) == se - 1:
            a('  s_cmp_eq_u32 s69, 0')
            a(f'  s_cbranch_scc1 p2_nosync{t}')
            a('  s_barrier')
            a('  s_sub_u32 s69, s69, 1')
            a.label(f'p2_nosync{t}')
        a('  s_sub_u32 s64, s64, 1')
        a('  s_cmp_eq_u32 s64, 0')
        if t < U - 1:
            a('  s_cbranch_scc1 p2_loop_exit')
        else:
            a('  s_cbranch_scc0 p2_loop')
    a.label('p2_loop_exit')
    if se:
        a.label('p2_owed')
        a('  s_cmp_eq_u32 s69, 0')
        a('  s_cbranch_scc1 p2_owed_done')
        a('  s_barrier')
        a('  s_sub_u32 s69, s69, 1')
        a('  s_branch p2_owed')
        a.label('p2_owed_done')
    st()
    a('  s_waitcnt vmcnt(0) lgkmcnt(0)')
    a('  s_barrier')
    st()
    def split4(src):
        a(f'  v_cvt_pk_bf16_f32 v{BT}, v{src}, v{src+1}')
        a(f'  v_cvt_pk_bf16_f32 v{BT+1}, v{src+2}, v{src+3}')
        a(f'  v_lshlrev_b32 v{X[0]}, 16, v{BT}')
        a(f'  v_and_b32 v{X[1]}, s53, v{BT}')
        a(f'  v_lshlrev_b32 v{X[2]}, 16, v{BT+1}')
        a(f'  v_and_b32 v{X[3]}, s53, v{BT+1}')
        for q in range(4):
            a(f'  v_sub_f32 v{X[q]}, v{src+q}, v{X[q]}')
        a(f'  v_cvt_pk_bf16_f32 v{BT+2}, v{X[0]}, v{X[1]}')
        a(f'  v_cvt_pk_bf16_f32 v{BT+3}, v{X[2]}, v{X[3]}')
        a('  s_nop 1')
    for u in range(5):
        a(f'  s_cmp_ge_u32 s{70+u}, {E}')
        a(f'  s_cbranch_scc1 p2_epi_skip{u}')
        a(f'  s_add_u32 s26, s24, {16*u}')
        a('  s_lshl_b32 s26, s26, 11')
        a(f'  v_lshlrev_b32 v{X[0]}, 7, v{P}')
        a(f'  v_lshl_add_u32 v{X[0]}, v{VROW4}, 4, v{X[0]}')
        a(f'  v_add_u32 v{X[0]}, s26, v{X[0]}')
        a(f'  ds_read_b128 {vr(Sg,4)}, v{X[0]}')
        a(f'  ds_read_b128 {vr(Sg+4,4)}, v{X[0]} offset:64')
        a('  s_waitcnt lgkmcnt(0)')
        order = [0, 2, 1, 3]
        for i in range(4):
            a(f'  v_cvt_f32_f64 v{SF+order[i]}, {vr(Sg+2*i,2)}')
        split4(SF)
        a(f'  v_mfma_f32_16x16x32_bf16 {vr(Y,4)}, {vr(WD,4)}, {vr(BT,4)}, 0')
        a('  s_nop 7')
        a('  s_nop 1')
        for q in range(4):
            a(f'  v_mul_f32 v{Y+q}, v{Y+q}, v{GG+4*u+q}')
        split4(Y)
        a(f'  v_mfma_f32_16x16x32_bf16 {vr(Z,4)}, {vr(WU,4)}, {vr(BT,4)}, 0')
        a(f'  v_lshlrev_b32 v{SF}, 16, v{HH+2*u}')
        a(f'  v_and_b32 v{SF+1}, s53, v{HH+2*u}')
        a(f'  v_lshlrev_b32 v{SF+2}, 16, v{HH+2*u+1}')
        a(f'  v_and_b32 v{SF+3}, s53, v{HH+2*u+1}')
        a(f'  v_lshlrev_b32 v{Y}, 16, v{MM+2*u}')
        a(f'  v_and_b32 v{Y+1}, s53, v{MM+2*u}')
        a(f'  v_lshlrev_b32 v{Y+2}, 16, v{MM+2*u+1}')
        a(f'  v_and_b32 v{Y+3}, s53, v{MM+2*u+1}')
        a('  s_nop 1')
        a(f'  v_cvt_pk_bf16_f32 v{X[0]}, v{Z}, v{Z+1}')
        a(f'  v_cvt_pk_bf16_f32 v{X[1]}, v{Z+2}, v{Z+3}')
        a(f'  v_lshlrev_b32 v{Z}, 16, v{X[0]}')
        a(f'  v_and_b32 v{Z+1}, s53, v{X[0]}')
        a(f'  v_lshlrev_b32 v{Z+2}, 16, v{X[1]}')
        a(f'  v_and_b32 v{Z+3}, s53, v{X[1]}')
        for q in range(4):
            a(f'  v_mul_f32 v{Z+q}, v{Z+q}, v{SF+q}')
        a(f'  v_cvt_pk_bf16_f32 v{X[0]}, v{Z}, v{Z+1}')
        a(f'  v_cvt_pk_bf16_f32 v{X[1]}, v{Z+2}, v{Z+3}')
        a(f'  v_lshlrev_b32 v{Z}, 16, v{X[0]}')
        a(f'  v_and_b32 v{Z+1}, s53, v{X[0]}')
        a(f'  v_lshlrev_b32 v{Z+2}, 16, v{X[1]}')
        a(f'  v_and_b32 v{Z+3}, s53, v{X[1]}')
        for q in range(4):
            a(f'  v_add_f32 v{Z+q}, v{Z+q}, v{Y+q}')
        a(f'  v_cvt_pk_bf16_f32 v{Z}, v{Z}, v{Z+1}')
        a(f'  v_cvt_pk_bf16_f32 v{Z+1}, v{Z+2}, v{Z+3}')
        a(f'  v_add_u32 v{X[3]}, s{70+u}, v{P}')
        a(f'  v_lshlrev_b32 v{X[4]}, 5, v{X[3]}')
        a(f'  v_lshl_add_u32 v{X[4]}, v{VROW4}, 3, v{X[4]}')
        a(f'  buffer_store_dwordx2 {vr(Z,2)}, v{X[4]}, s[16:19], 0 offen{OTF}')
        a.label(f'p2_epi_skip{u}')
    if st.on:
        a('  s_waitcnt vmcnt(0)')
        st()
    st.flush('s24')
    a.label('p2_done')
    a('  s_endpgm')
    return maxv

def descriptor(a, name, vgpr, sgpr):
    a(f'.amdhsa_kernel {name}')
    a(f'  .amdhsa_next_free_vgpr {vgpr}')
    a(f'  .amdhsa_next_free_sgpr {sgpr}')
    a(f'  .amdhsa_accum_offset {(vgpr + 3) // 4 * 4}')
    a('  .amdhsa_group_segment_fixed_size 0')
    a('  .amdhsa_kernarg_size 112')
    a('  .amdhsa_user_sgpr_count 2')
    a('  .amdhsa_user_sgpr_kernarg_segment_ptr 1')
    a('  .amdhsa_system_sgpr_workgroup_id_x 1')
    a('  .amdhsa_float_denorm_mode_32 3')
    a('.end_amdhsa_kernel')

HEADER = '''; Kernarg layout (112 bytes, ptrs only, base s[0:1]):
; @launch kernel=p1_kernel grid=(256,1,1) block=(1024,1,1) lds=163840
; @launch kernel=p2_kernel grid=(256,1,1) block=(1024,1,1) lds=163840
.amdgcn_target "amdgcn-amd-amdhsa--gfx950"
.text
.globl p1_kernel
.globl p2_kernel
'''

def build(opt):
    cfg = Cfg(opt)
    a = Asm()
    a(HEADER.rstrip('\n'))
    gen_p1(a, opt, cfg)
    v2 = gen_p2(a, opt, cfg)
    a('.section .rodata,"a"')
    a('.p2align 6')
    ns = 102 if opt.get('stamp') else 80
    descriptor(a, 'p1_kernel', 128, ns)
    a('.p2align 6')
    descriptor(a, 'p2_kernel', v2, ns)
    return a.text()

if __name__ == '__main__':
    out = sys.argv[1] if len(sys.argv) > 1 else 'standalone__molecular_angular_gemnet__graph.s'
    opt = {}
    for kv in sys.argv[2:]:
        k, v = kv.split('=')
        opt[k] = int(v) if v.lstrip('-').isdigit() else v
    open(out, 'w').write(build(opt))
    print('wrote', out)
```

```python
import struct, sys, math

def f32bits(x):
    return struct.unpack('<I', struct.pack('<f', x))[0]
def bits2f(b):
    return struct.unpack('<f', struct.pack('<I', b))[0]

E = 320000
T = 10240000
NWG = 256
import os
KSH = int(os.environ.get('KSH', 14))
NK = (E + (1 << KSH) - 1) >> KSH
HIST = 131072
TMP = HIST + NK * 1024
DUMMY_ROW = 1264

class Cfg:
    def __init__(self, opt):
        self.S = 1
        self.NTT = NWG
        self.SUB = 40000
        self.RPS = 10
        self.SLICE = 21504
        self.CBASE = self.SLICE * 4
        self.SLICE_BYTES = self.SLICE * 6
        maxpad = self.SUB + 256 * 7
        assert maxpad <= 2 * self.SLICE and self.SUB > self.SLICE
        self.TILE_BYTES = (maxpad * 6 + 127) // 128 * 128
        self.TAB_BYTES = 256 * self.NTT * 4
        self.REC_OFF = self.TAB_BYTES
        self.REC_BYTES = self.NTT * self.TILE_BYTES
        self.NSL = 2

class Asm:
    def __init__(self):
        self.lines = []
    def __call__(self, s=''):
        for l in s.split('\n'):
            self.lines.append(l)
    def label(self, s):
        self.lines.append(s + ':')
    def text(self):
        return '\n'.join(self.lines) + '\n'

def vr(a, n=1):
    return f'v{a}' if n == 1 else f'v[{a}:{a+n-1}]'

def srd(a, d, ptr, size):
    a(f'  s_mov_b32 s{d}, s{ptr}')
    a(f'  s_and_b32 s{d+1}, s{ptr+1}, 0xffff')
    a(f'  s_mov_b32 s{d+2}, {size}')
    a(f'  s_mov_b32 s{d+3}, 0x20000')

class Stamps:
    def __init__(self, a, on, name, slot):
        self.a = a; self.on = on; self.n = 0; self.name = name; self.slot = slot; self.wave = 0
    def __call__(self):
        if not self.on: return
        a = self.a
        a('  s_memtime s[80:81]')
        a('  s_memrealtime s[82:83]')
        a('  s_waitcnt lgkmcnt(0)')
        a(f'  s_mov_b32 s{84+2*self.n}, s80')
        a(f'  s_mov_b32 s{85+2*self.n}, s82')
        self.n += 1
        assert self.n <= 9
    def flush(self, wavereg):
        if not self.on: return
        a = self.a
        if getattr(self, 'dbg', False):
            a(f'  s_cmp_lg_u32 {wavereg}, 0')
            a(f'  s_cbranch_scc1 {self.name}_nostamp')
            a(f'  s_cmp_lg_u32 s2, {self.dbgwg}')
            a(f'  s_cbranch_scc1 {self.name}_nostamp')
            if self.name == 'p1':
                a('  s_load_dwordx2 s[80:81], s[0:1], 104')
                a('  s_waitcnt lgkmcnt(0)')
                a(f'  s_add_u32 s80, s80, {200*1048576}')
                a('  s_addc_u32 s81, s81, 0')
                a('  v_mov_b32 v1, 0')
                for i in range(self.n):
                    a(f'  v_mov_b32 v2, s{85+2*i}')
                    a(f'  global_store_dword v1, v2, s[80:81] offset:{4*i}')
            else:
                a('  s_load_dwordx2 s[80:81], s[0:1], 96')
                a('  s_load_dwordx2 s[82:83], s[0:1], 104')
                a('  s_waitcnt lgkmcnt(0)')
                a(f'  s_add_u32 s82, s82, {200*1048576}')
                a('  s_addc_u32 s83, s83, 0')
                a('  v_mov_b32 v1, 0')
                for i in range(9):
                    a(f'  global_load_dword v{4+i}, v1, s[82:83] offset:{4*i}')
                a('  s_waitcnt vmcnt(0)')
                for i in range(9):
                    a(f'  global_store_dword v1, v{4+i}, s[80:81] offset:{4*i}')
                for i in range(self.n):
                    a(f'  v_mov_b32 v2, s{85+2*i}')
                    a(f'  global_store_dword v1, v2, s[80:81] offset:{36+4*i}')
            a.label(f'{self.name}_nostamp')
            return
        a(f'  s_cmp_lg_u32 {wavereg}, {self.wave}')
        a(f'  s_cbranch_scc1 {self.name}_nostamp')
        a('  s_load_dwordx2 s[80:81], s[0:1], 104')
        a('  s_waitcnt lgkmcnt(0)')
        a(f'  s_add_u32 s80, s80, {200*1048576 + self.slot*65536}')
        a('  s_addc_u32 s81, s81, 0')
        a('  s_lshl_b32 s82, s2, 7')
        a('  v_mov_b32 v1, s82')
        for i in range(2*self.n):
            a(f'  v_mov_b32 v2, s{84+i}')
            a(f'  global_store_dword v1, v2, s[80:81] offset:{4*i}')
        a.label(f'{self.name}_nostamp')

def gen_p1(a, opt, cfg):
    st = Stamps(a, bool(opt.get('stamp')), 'p1', 0); st.dbg = opt.get('stamp') == 2; st.dbgwg = opt.get('dwg', 0)
    NTF = ' nt' if opt.get('nt_in', 1) else ''
    STF = {0: '', 1: ' nt', 2: ' sc1', 3: ' sc0 sc1', 4: ' sc0'}[opt.get('nt_st', 2)]
    S = cfg.S
    W0, W1, AUX = 8, 48, 88
    CO = 32
    t = [108 + i for i in range(20)]
    inv2pi = 1.0 / (2.0 * math.pi)
    chi_bits = f32bits(inv2pi) & 0xffffff00
    clo_bits = f32bits(inv2pi - bits2f(chi_bits))
    a('.p2align 8')
    a('.type p1_kernel,@function')
    a.label('p1_kernel')
    a('  s_cmp_ge_u32 s2, 256')
    a('  s_cbranch_scc1 p1_done')
    a('  s_load_dwordx4 s[32:35], s[0:1], 8')
    a('  s_load_dwordx2 s[36:37], s[0:1], 32')
    a('  s_load_dwordx2 s[38:39], s[0:1], 48')
    a('  s_load_dwordx2 s[28:29], s[0:1], 104')
    a('  s_load_dwordx2 s[74:75], s[0:1], 0')
    a('  v_lshlrev_b32 v1, 4, v0')
    a(f'  v_add_u32 v2, {HIST}, v1')
    for r in range(4, 8):
        a(f'  v_mov_b32 v{r}, 0')
    a('  ds_write_b128 v2, v[4:7]')
    a('  ds_write_b128 v2, v[4:7] offset:16384')
    IL = opt.get('ilv', 0)
    a(f'  s_mul_i32 s40, s2, {16000 if IL else 160000}')
    a(f'  s_mul_i32 s41, s2, {8000 if IL else 80000}')
    a('  v_add_u32 v1, s40, v1')
    a('  v_lshlrev_b32 v3, 3, v0')
    a('  v_add_u32 v3, s41, v3')
    a('  v_readfirstlane_b32 s24, v0')
    a('  v_cmp_gt_u32 vcc, 1000, v0')
    a('  s_lshr_b32 s24, s24, 6')
    a('  s_mov_b64 s[44:45], vcc')
    for i in range(1, 10):
        a(f'  s_mov_b32 s{45+i}, {i*16000*(256 if IL else 1)}')
        a(f'  s_mov_b32 s{55+i}, {i*8000*(256 if IL else 1)}')
    a('  s_waitcnt lgkmcnt(0)')
    a('  s_load_dword s26, s[38:39], 0')
    srd(a, 4, 32, T * 4)
    srd(a, 8, 34, T * 4)
    srd(a, 12, 36, T * 2)
    st()
    a('  s_mov_b64 exec, s[44:45]')
    def issue_round(i):
        so = '0' if i == 0 else f's{45+i}'
        sa = '0' if i == 0 else f's{55+i}'
        a(f'  buffer_load_dwordx4 {vr(W0+4*i,4)}, v1, s[4:7], {so} offen{NTF}')
        a(f'  buffer_load_dwordx4 {vr(W1+4*i,4)}, v1, s[8:11], {so} offen{NTF}')
        a(f'  buffer_load_dwordx2 {vr(AUX+2*i,2)}, v3, s[12:15], {sa} offen{NTF}')
    AHEAD = opt.get('ahead', 2)
    for i in range(AHEAD):
        issue_round(i)
    issued = AHEAD
    a('  s_mov_b32 s27, 0xffff0000')
    a(f'  s_mov_b32 s30, {chi_bits:#x}')
    a(f'  s_mov_b32 s31, {clo_bits:#x}')
    a(f'  s_mov_b32 s42, {HIST}')
    a('  s_mov_b32 s43, 0x3fc')
    a('  v_mov_b32 v2, 1')
    srd(a, 20, 28, cfg.TAB_BYTES)
    srd(a, 76, 74, E * 32)
    a(f'  s_mul_i32 s40, s2, {S * cfg.TILE_BYTES}')
    a('  s_add_u32 s28, s28, s40')
    a('  s_addc_u32 s29, s29, 0')
    a(f'  s_add_u32 s28, s28, {cfg.REC_OFF}')
    a('  s_addc_u32 s29, s29, 0')
    a('  s_waitcnt lgkmcnt(0)')
    a('  s_and_b32 s26, s26, 0xffff')
    a('  s_lshl_b32 s26, s26, 16')
    a('  s_barrier')
    for i in range(1, 8):
        a(f'  s_mov_b32 s{CO+i}, {i*16128}')
    stores_done = 0
    for h in range(S):
        sfx = f'_{h}'
        if h > 0:
            a('  v_mov_b32 v2, 1')
            a(f'  s_mov_b32 s42, {HIST}')
            a('  s_mov_b32 s43, 0x3fc')
            a('  s_mov_b64 exec, s[44:45]')
        for i in range(h * cfg.RPS, (h + 1) * cfg.RPS):
            A = [W0 + 4*i + e for e in range(4)]
            O = [W1 + 4*i + e for e in range(4)]
            G = [AUX + 2*i, AUX + 2*i + 1]
            a(f'  s_waitcnt vmcnt({3*(issued - 1 - i) + stores_done})')
            if issued < 10:
                issue_round(issued); issued += 1
            a(f'  v_lshlrev_b32 v{t[0]}, 16, v{G[0]}')
            a(f'  v_and_b32 v{t[1]}, s27, v{G[0]}')
            a(f'  v_lshlrev_b32 v{t[2]}, 16, v{G[1]}')
            a(f'  v_and_b32 v{t[3]}, s27, v{G[1]}')
            for e in range(4):
                a(f'  v_mul_f32 v{t[e]}, s26, v{t[e]}')
            a(f'  v_cvt_pk_bf16_f32 v{t[4]}, v{t[0]}, v{t[1]}')
            a(f'  v_cvt_pk_bf16_f32 v{t[5]}, v{t[2]}, v{t[3]}')
            for e in range(4):
                a(f'  v_lshrrev_b32 v{t[8+e]}, 8, v{O[e]}')
            a(f'  v_lshlrev_b32 v{t[0]}, 16, v{t[4]}')
            a(f'  v_and_b32 v{t[1]}, s27, v{t[4]}')
            a(f'  v_lshlrev_b32 v{t[2]}, 16, v{t[5]}')
            a(f'  v_and_b32 v{t[3]}, s27, v{t[5]}')
            for e in range(4):
                a(f'  v_bfi_b32 v{t[8+e]}, 15, v{O[e]}, v{t[8+e]}')
            for e in range(4):
                a(f'  v_mul_f32 v{t[4+e]}, s30, v{t[e]}')
            for e in range(4):
                a(f'  v_fract_f32 v{t[4+e]}, v{t[4+e]}')
            for e in range(4):
                a(f'  v_fma_f32 v{t[4+e]}, v{t[e]}, s31, v{t[4+e]}')
            for e in range(4):
                a(f'  v_cos_f32 v{t[4+e]}, v{t[4+e]}')
            for e in range(4):
                a(f'  v_lshrrev_b32 v{t[12+e]}, 2, v{O[e]}')
            for e in range(4):
                a(f'  v_lshrrev_b32 v{t[e]}, {KSH}, v{A[e]}')
            for e in range(4):
                a(f'  v_and_b32 v{t[12+e]}, s43, v{t[12+e]}')
            for e in range(4):
                a(f'  v_lshl_or_b32 v{t[12+e]}, v{t[e]}, 10, v{t[12+e]}')
            a(f'  v_cvt_pk_bf16_f32 v{t[16]}, v{t[4]}, v{t[5]}')
            a(f'  v_cvt_pk_bf16_f32 v{t[17]}, v{t[6]}, v{t[7]}')
            for e in range(4):
                a(f'  v_add_u32 v{t[e]}, s42, v{t[12+e]}')
            for e in range(4):
                a(f'  ds_add_u32 v{t[e]}, v2')
            for e in range(4):
                a(f'  v_lshl_or_b32 v{A[e]}, v{t[8+e]}, 19, v{A[e]}')
            a(f'  v_mov_b32 v{O[0]}, v{t[16]}')
            a(f'  v_mov_b32 v{O[2]}, v{t[17]}')
            a(f'  v_lshl_or_b32 v{G[0]}, v{t[13]}, 16, v{t[12]}')
            a(f'  v_lshl_or_b32 v{G[1]}, v{t[15]}, 16, v{t[14]}')
        a('  s_mov_b64 exec, -1')
        a('  s_waitcnt lgkmcnt(0)')
        a('  s_barrier')
        st()
        if h == S - 1 and opt.get('mpf1', 1):
            a('  s_sub_u32 s40, s24, 4')
            a('  s_cmp_ge_u32 s40, 5')
            a('  s_cbranch_scc1 p1_nopf')
            a('  s_mul_i32 s41, s2, 40000')
            a('  s_and_b32 s41, s41, 0xffffff80')
            a('  v_subrev_u32 v5, 256, v0')
            a('  v_lshlrev_b32 v5, 7, v5')
            a(f'  buffer_load_dword v{W1+1}, v5, s[76:79], s41 offen')
            a.label('p1_nopf')
        a('  v_lshlrev_b32 v4, 2, v0')
        a(f'  v_add_u32 v4, {HIST}, v4')
        a('  s_cmp_ge_u32 s24, 4')
        a(f'  s_cbranch_scc1 p1_skip1{sfx}')
        for k in range(NK):
            a(f'  ds_read_b32 v{t[k]}, v4 offset:{k*1024}')
        a('  v_mov_b32 v5, 0')
        a('  s_waitcnt lgkmcnt(0)')
        ra, rb = 5, 6
        for k in range(NK):
            a(f'  v_add_u32 v{rb}, v{ra}, v{t[k]}')
            a(f'  v_mov_b32 v{t[k]}, v{ra}')
            ra, rb = rb, ra
        assert ra == 5
        a('  v_add_u32 v6, 7, v5')
        a('  v_and_b32 v6, -8, v6')
        a('  v_mov_b32 v7, v6')
        for sh in (1, 2, 4, 8):
            a('  s_nop 1')
            a(f'  v_add_u32_dpp v7, v7, v7 row_shr:{sh} row_mask:0xf bank_mask:0xf bound_ctrl:0')
        a('  s_nop 1')
        a('  v_add_u32_dpp v7, v7, v7 row_bcast:15 row_mask:0xa bank_mask:0xf')
        a('  s_nop 1')
        a('  v_add_u32_dpp v7, v7, v7 row_bcast:31 row_mask:0xc bank_mask:0xf')
        a('  s_lshl_b32 s40, s24, 2')
        a(f'  s_add_u32 s40, s40, {TMP}')
        a('  v_mov_b32 v3, s40')
        a('  s_mov_b32 exec_lo, 0')
        a('  s_mov_b32 exec_hi, 0x80000000')
        a('  ds_write_b32 v3, v7')
        a('  s_mov_b64 exec, -1')
        a.label(f'p1_skip1{sfx}')
        a('  s_waitcnt lgkmcnt(0)')
        a('  s_barrier')
        a(f'  v_mov_b32 v1, {TMP}')
        a('  ds_read2_b32 v[2:3], v1 offset0:0 offset1:1')
        a('  s_waitcnt lgkmcnt(0)')
        a('  v_readfirstlane_b32 s66, v2')
        a('  v_readfirstlane_b32 s67, v3')
        a('  ds_read2_b32 v[2:3], v1 offset0:2 offset1:3')
        a('  s_waitcnt lgkmcnt(0)')
        a('  v_readfirstlane_b32 s68, v2')
        a('  v_readfirstlane_b32 s69, v3')
        a('  s_nop 3')
        a('  s_add_u32 s70, s66, s67')
        a('  s_add_u32 s71, s70, s68')
        a('  s_add_u32 s72, s71, s69')
        a('  s_cmp_ge_u32 s24, 4')
        a(f'  s_cbranch_scc1 p1_skip2{sfx}')
        a('  s_mov_b32 s73, 0')
        a('  s_cmp_eq_u32 s24, 1')
        a('  s_cselect_b32 s73, s66, s73')
        a('  s_cmp_eq_u32 s24, 2')
        a('  s_cselect_b32 s73, s70, s73')
        a('  s_cmp_eq_u32 s24, 3')
        a('  s_cselect_b32 s73, s71, s73')
        a('  v_sub_u32 v7, v7, v6')
        a('  v_add_u32 v7, s73, v7')
        for k in range(NK):
            a(f'  v_add_u32 v{t[k]}, v7, v{t[k]}')
            a(f'  ds_write_b32 v4, v{t[k]} offset:{k*1024}')
        a('  v_lshl_or_b32 v5, v7, 13, v5')
        a(f'  s_mul_i32 s40, s2, {S*4}')
        if h: a(f'  s_add_u32 s40, s40, {h*4}')
        a(f'  s_mov_b32 s41, {cfg.NTT*4}')
        a('  v_mul_lo_u32 v6, v0, s41')
        a('  buffer_store_dword v5, v6, s[20:23], s40 offen')
        a.label(f'p1_skip2{sfx}')
        a('  s_waitcnt lgkmcnt(0)')
        a('  s_barrier')
        st()
        a('  v_mov_b32 v2, 1')
        a(f'  v_mov_b32 v1, {HIST}')
        a('  s_mov_b64 exec, s[44:45]')
        r0 = h * cfg.RPS * 4
        nrec = cfg.RPS * 4
        batches = [(b, min(8, nrec - b)) for b in range(0, nrec, 8)]
        def rank_issue(bi):
            b, n = batches[bi]
            base = (bi & 1) * 8
            for x in range(n):
                rec = r0 + b + x
                j, hh = rec >> 1, rec & 1
                ad = 4 + (x & 3)
                a(f'  v_add_u32_sdwa v{ad}, v1, v{AUX+j} dst_sel:DWORD dst_unused:UNUSED_PAD src0_sel:DWORD src1_sel:WORD_{hh}')
                a(f'  ds_add_rtn_u32 v{t[base+x]}, v{ad}, v2')
        def rank_pack(bi):
            b, n = batches[bi]
            base = (bi & 1) * 8
            for x in range(0, n, 2):
                j = (r0 + b + x) >> 1
                a(f'  v_lshl_or_b32 v{AUX+j}, v{t[base+x+1]}, 16, v{t[base+x]}')
        rank_issue(0)
        for bi in range(len(batches)):
            if bi + 1 < len(batches):
                rank_issue(bi + 1)
                a(f'  s_waitcnt lgkmcnt({batches[bi+1][1]})')
            else:
                a('  s_waitcnt lgkmcnt(0)')
            rank_pack(bi)
        if opt.get('p1stamp'): st()
        a('  s_mov_b64 exec, -1')
        a(f'  s_mov_b32 s43, {cfg.SLICE}')
        a(f'  s_mov_b32 s41, {cfg.CBASE}')
        a('  s_mov_b32 s40, 0xaaab')
        a('  v_mul_u32_u24 v1, s40, v0')
        a('  v_lshrrev_b32 v1, 17, v1')
        a('  v_mul_u32_u24 v3, 3, v1')
        a('  v_sub_u32 v3, v0, v3')
        a(f'  v_lshlrev_b32 v{t[16]}, 5, v1')
        a(f'  v_lshl_add_u32 v{t[16]}, v3, 4, v{t[16]}')
        a(f'  v_lshlrev_b32 v{t[17]}, 4, v1')
        a(f'  v_add_u32 v{t[17]}, s41, v{t[17]}')
        a('  v_cmp_eq_u32 vcc, 2, v3')
        a(f'  v_mov_b32 v{t[19]}, {336*32}')
        a(f'  v_mov_b32 v1, {336*16}')
        a(f'  v_cndmask_b32 v{t[16]}, v{t[16]}, v{t[17]}, vcc')
        a(f'  v_cndmask_b32 v{t[17]}, v{t[19]}, v1, vcc')
        for s in range(cfg.NSL):
            a('  s_mov_b64 exec, s[44:45]')
            a(f'  s_mov_b32 s42, {s*cfg.SLICE}')
            for x in range(r0, r0 + nrec):
                j, hh = x >> 1, x & 1
                q = 4 + 2 * (x & 1); a0 = q + 1
                creg = W1 + 4 * (x >> 2) + 2 * ((x >> 1) & 1)
                a(f'  v_subrev_u32_sdwa v{q}, s42, v{AUX+j} dst_sel:DWORD dst_unused:UNUSED_PAD src0_sel:DWORD src1_sel:WORD_{hh}')
                a(f'  v_cmpx_gt_u32 vcc, s43, v{q}')
                a(f'  v_lshlrev_b32 v{a0}, 2, v{q}')
                a(f'  v_lshl_add_u32 v{q}, v{q}, 1, s41')
                a(f'  ds_write_b32 v{a0}, v{W0+x}')
                a(f'  ds_write_b16{"_d16_hi" if (x & 1) else ""} v{q}, v{creg}')
                a('  s_mov_b64 exec, s[44:45]')
            a('  s_mov_b64 exec, -1')
            a(f'  s_add_u32 s16, s28, {s*cfg.SLICE_BYTES}')
            a('  s_addc_u32 s17, s29, 0')
            a('  s_and_b32 s17, s17, 0xffff')
            last = (s == cfg.NSL - 1)
            if not last:
                a(f'  s_mov_b32 s18, {cfg.SLICE_BYTES}')
            else:
                a(f'  s_sub_u32 s18, s72, {s*cfg.SLICE}')
                a('  s_mul_i32 s18, s18, 6')
            a('  s_mov_b32 s19, 0x20000')
            a('  v_lshlrev_b32 v1, 4, v0')
            a(f'  v_mov_b32 v3, v{t[16]}')
            a('  s_waitcnt lgkmcnt(0)')
            if opt.get('p1stamp'): st()
            a('  s_barrier')
            for half in range(2):
                for u in range(4):
                    a(f'  ds_read_b128 {vr(t[4*u],4)}, v3')
                    a(f'  v_add_u32 v3, v3, v{t[17]}')
                for u in range(4):
                    a(f'  s_waitcnt lgkmcnt({3-u})')
                    rnd = half * 4 + u
                    so = '0' if rnd == 0 else f's{CO+rnd}'
                    a(f'  buffer_store_dwordx4 {vr(t[4*u],4)}, v1, s[16:19], {so} offen{STF}')
                a('  s_nop 1')
            if not last:
                a('  s_barrier')
                if opt.get('p1stamp'): st()
        st()
    if st.on:
        a('  s_waitcnt vmcnt(0)')
        st()
    st.flush('s24')
    a.label('p1_done')
    a('  s_endpgm')

class RegAlloc:
    def __init__(self, start):
        self.n = start
    def get(self, k=1, align=1):
        self.n = (self.n + align - 1) // align * align
        r = self.n; self.n += k
        return r

def gen_p2(a, opt, cfg):
    st = Stamps(a, bool(opt.get('stamp')), 'p2', 1); st.wave = opt.get('swave', 0); st.dbg = opt.get('stamp') == 2; st.dbgwg = opt.get('dwg', 0)
    b_lag = opt.get('lag', 1)
    R = b_lag + 1
    NG = 8
    RNT = {0: '', 1: ' nt', 2: ' sc1', 3: ' sc0 sc1', 4: ' sc0 sc1 nt', 5: ' sc1 nt'}[opt.get('nt_rec', 0)]
    OTF = {0: '', 1: ' nt', 2: ' sc1', 3: ' sc0 sc1', 4: ' sc0'}[opt.get('out_st', 2)]
    se = opt.get('sync', 2)
    NSEG = 16 * cfg.S
    JPC = 32 // NSEG
    ra = RegAlloc(1)
    J4 = ra.get(); J8 = ra.get(); P = ra.get(); P7 = ra.get(); J2H = ra.get()
    VN = ra.get(); VB = ra.get(); VOFF8 = ra.get(); EE = ra.get()
    SELA = ra.get(); SELB = ra.get(); VDUM = ra.get(); COL = ra.get()
    D = [ra.get(2, 2), ra.get(2, 2)]
    PT = [ra.get(), ra.get()]; LA = [ra.get(), ra.get()]; GAD = [ra.get(), ra.get()]
    YR = [ra.get(), ra.get()]; AB = [ra.get(), ra.get()]
    X = [ra.get() for _ in range(6)]
    VROW4 = ra.get(); VLANE = ra.get()
    WD = ra.get(4, 2); WU = ra.get(4, 2)
    MM = ra.get(10, 2)
    GG = ra.get(20, 2)
    HH = ra.get(10, 2)
    main0 = ra.n
    RW = [ra.get() for _ in range(R)]; RC = [ra.get() for _ in range(R)]
    VV = [ra.get() for _ in range(R)]
    CC = [ra.get() for _ in range(R)]
    ROW = [ra.get() for _ in range(R)]
    G = [ra.get(NG) for _ in range(R)]
    maxv = ra.n
    rp = RegAlloc(G[0])
    WSt = rp.get(2, 2); WRt = rp.get(2, 2); CEN = rp.get(2); DI = rp.get(5); RBp = rp.get(2, 2)
    assert rp.n <= G[0] + NG * R, (rp.n, G[0] + NG*R)
    HT = D[0]
    ra2 = RegAlloc(main0)
    Sg = ra2.get(8, 2); SF = ra2.get(4, 2); BT = ra2.get(4, 2); Y = ra2.get(4, 2); Z = ra2.get(4, 2)
    maxv = max(maxv, ra2.n)
    assert maxv <= 128, maxv
    a('.p2align 8')
    a('.type p2_kernel,@function')
    a.label('p2_kernel')
    a('  s_cmp_ge_u32 s2, 256')
    a('  s_cbranch_scc1 p2_done')
    a('  s_load_dwordx2 s[28:29], s[0:1], 104')
    a('  s_load_dwordx2 s[32:33], s[0:1], 0')
    a('  s_load_dwordx2 s[34:35], s[0:1], 24')
    a('  s_load_dwordx2 s[36:37], s[0:1], 40')
    a('  s_load_dwordx4 s[40:43], s[0:1], 56')
    a('  s_load_dwordx4 s[44:47], s[0:1], 72')
    a('  s_load_dwordx2 s[48:49], s[0:1], 88')
    a('  v_readfirstlane_b32 s24, v0')
    a(f'  v_and_b32 v{VLANE}, 63, v0')
    a(f'  v_and_b32 v{P}, 15, v0')
    a('  s_lshr_b32 s24, s24, 6')
    a(f'  v_lshrrev_b32 v{X[0]}, 1, v{VLANE}')
    a(f'  v_and_b32 v{X[1]}, {NSEG-1}, v{X[0]}')
    a(f'  s_mul_i32 s25, s2, {cfg.NTT}')
    a(f'  s_mul_i32 s26, s24, {NSEG}')
    a('  s_add_u32 s25, s25, s26')
    a('  s_lshl_b32 s25, s25, 2')
    a(f'  v_lshlrev_b32 v{X[2]}, 2, v{X[1]}')
    a(f'  v_lshrrev_b32 v{VROW4}, 4, v{VLANE}')
    a('  s_waitcnt lgkmcnt(0)')
    srd(a, 12, 28, cfg.TAB_BYTES)
    a(f'  buffer_load_dword v{VN}, v{X[2]}, s[12:15], s25 offen')
    st()
    srd(a, 4, 32, E * 32)
    srd(a, 20, 34, E * 2)
    npf = 0
    a(f'  v_lshlrev_b32 v{X[3]}, 1, v{P}')
    a(f'  v_lshl_add_u32 v{X[4]}, v{VROW4}, 7, v{X[3]}')
    WTMP = [YR[0], YR[1], AB[0], AB[1], PT[0], PT[1], LA[0], LA[1]]
    for q in range(4):
        a(f'  global_load_ushort v{WTMP[q]}, v{X[4]}, s[44:45] offset:{q*32}'); npf += 1
    for q in range(4):
        a(f'  global_load_ushort v{WTMP[4+q]}, v{X[4]}, s[46:47] offset:{q*32}'); npf += 1
    a(f'  v_lshl_add_u32 v{X[4]}, v{VROW4}, 5, v{X[3]}')
    WT2 = [GAD[0], GAD[1], COL, EE]
    for q in range(2):
        a(f'  global_load_ushort v{WT2[q]}, v{X[4]}, s[42:43] offset:{q*128}'); npf += 1
    for q in range(2):
        a(f'  global_load_ushort v{WT2[2+q]}, v{X[4]}, s[40:41] offset:{q*128}'); npf += 1
    a(f'  v_lshlrev_b32 v{X[4]}, 1, v{VROW4}')
    for q in range(2):
        a(f'  global_load_ushort v{CEN+q}, v{X[4]}, s[36:37] offset:{q*8}'); npf += 1
    a(f'  s_lshl_b32 s27, s2, 4')
    for u in range(5):
        a(f'  s_add_u32 s26, s24, {16*u}')
        a('  s_lshl_b32 s26, s26, 12')
        a('  s_add_u32 s26, s26, s27')
        a(f'  s_mov_b32 s{70+u}, s26')
        a(f'  v_add_u32 v{X[3]}, s26, v{P}')
        a(f'  v_lshlrev_b32 v{X[4]}, 1, v{X[3]}')
        a(f'  buffer_load_ushort v{DI+u}, v{X[4]}, s[20:23], 0 offen'); npf += 1
    for u in range(5):
        a(f'  v_add_u32 v{X[3]}, s{70+u}, v{P}')
        a(f'  v_lshlrev_b32 v{X[4]}, 5, v{X[3]}')
        a(f'  v_lshl_add_u32 v{X[4]}, v{VROW4}, 3, v{X[4]}')
        a(f'  buffer_load_dwordx2 {vr(MM+2*u,2)}, v{X[4]}, s[4:7], 0 offen'); npf += 1
    nm = 5
    if opt.get('warm', 0):
        a('  s_cmp_ge_u32 s24, 8')
        a('  s_cbranch_scc1 p2_nowarm')
        a('  s_lshr_b32 s26, s2, 3')
        a('  s_lshl_b32 s26, s26, 3')
        a('  s_add_u32 s26, s26, s24')
        a('  s_lshl_b32 s26, s26, 13')
        a(f'  v_lshlrev_b32 v{X[4]}, 7, v{VLANE}')
        a(f'  buffer_load_dword v{VDUM}, v{X[4]}, s[4:7], s26 offen')
        a.label('p2_nowarm')
    a(f'  s_add_u32 s8, s28, {cfg.REC_OFF}')
    a('  s_addc_u32 s9, s29, 0')
    a('  s_and_b32 s9, s9, 0xffff')
    a(f'  s_mov_b32 s10, {cfg.REC_BYTES}')
    a('  s_mov_b32 s11, 0x20000')
    srd(a, 16, 48, E * 32)
    a(f'  v_lshlrev_b32 v{X[3]}, 4, v0')
    for r in (D[0], D[0]+1, D[1], D[1]+1):
        a(f'  v_mov_b32 v{r}, 0')
    assert D[1] == D[0] + 2
    a(f'  v_add_u32 v{X[4]}, 0x10000, v{X[3]}')
    a(f'  v_add_u32 v{X[5]}, 0x20000, v{X[3]}')
    for i in range(4):
        a(f'  ds_write_b128 v{X[3]}, {vr(D[0],4)} offset:{i*16384}')
    for i in range(4):
        a(f'  ds_write_b128 v{X[4]}, {vr(D[0],4)} offset:{i*16384}')
    for i in range(2):
        a(f'  ds_write_b128 v{X[5]}, {vr(D[0],4)} offset:{i*16384}')
    a(f'  v_and_b32 v{P7}, 7, v0')
    a(f'  v_lshlrev_b32 v{J4}, 2, v{P7}')
    a(f'  v_lshlrev_b32 v{J8}, 3, v{P}')
    a(f'  v_lshlrev_b32 v{J2H}, 1, v{P7}')
    a(f'  v_cmp_gt_u32 vcc, 8, v{P}')
    a(f'  v_mov_b32 v{X[3]}, 0x03020c0c')
    a(f'  v_mov_b32 v{X[4]}, 0x05040c0c')
    a(f'  v_cndmask_b32 v{SELA}, v{X[3]}, v{X[4]}, vcc')
    a(f'  v_mov_b32 v{X[3]}, 0x07060c0c')
    a(f'  v_mov_b32 v{X[4]}, 0x01000c0c')
    a(f'  v_cndmask_b32 v{SELB}, v{X[3]}, v{X[4]}, vcc')
    a(f'  v_and_b32 v{VOFF8}, 1, v{VLANE}')
    a(f'  v_lshlrev_b32 v{VOFF8}, 3, v{VOFF8}')
    if JPC > 1:
        a(f'  v_lshrrev_b32 v{X[3]}, {1 + int(math.log2(NSEG))}, v{VLANE}')
        a(f'  v_lshl_add_u32 v{VOFF8}, v{X[3]}, 4, v{VOFF8}')
    a(f'  s_mul_i32 s26, s24, {NSEG}')
    a(f'  v_add_u32 v{X[0]}, s26, v{X[1]}')
    a(f'  s_mov_b32 s27, {cfg.TILE_BYTES}')
    a(f'  v_mul_lo_u32 v{X[0]}, v{X[0]}, s27')
    a('  s_mov_b32 s52, 0xfffffff0')
    a('  s_mov_b32 s53, 0xffff0000')
    a('  s_mov_b32 s54, 0x3ff80')
    a('  s_mov_b32 s55, 0xffffe0')
    a(f'  s_waitcnt vmcnt({npf})')
    if opt.get('pstamp'): st()
    a(f'  v_lshrrev_b32 v{VB}, 16, v{VN}')
    a(f'  v_and_b32 v{VN}, 0xffff, v{VN}')
    a(f'  v_mad_u32_u24 v{VB}, v{VB}, 48, v{X[0]}')
    a(f'  v_mov_b32 v{X[0]}, v{VN}')
    for sh in (1, 2, 4, 8):
        a('  s_nop 1')
        a(f'  v_max_u32_dpp v{X[0]}, v{X[0]}, v{X[0]} row_ror:{sh} row_mask:0xf bank_mask:0xf')
    a('  s_nop 1')
    for i, ln in enumerate((0, 16, 32, 48)):
        a(f'  v_readlane_b32 s{56+i}, v{X[0]}, {ln}')
    a('  s_nop 3')
    a('  s_max_u32 s56, s56, s57')
    a('  s_max_u32 s58, s58, s59')
    a('  s_max_u32 s50, s56, s58')
    a('  s_mov_b32 s51, 0')
    a('  s_mov_b32 s56, 0')
    a('  s_mov_b32 s64, 0')
    if se:
        a(f'  s_mov_b32 s69, {opt.get("nsync", 38 // se)}')
    a(f'  s_waitcnt vmcnt({nm})')
    if opt.get('pstamp'): st()
    a(f'  v_lshl_or_b32 v{WD}, v{WTMP[1]}, 16, v{WTMP[0]}')
    a(f'  v_lshl_or_b32 v{WD+1}, v{WTMP[3]}, 16, v{WTMP[2]}')
    a(f'  v_lshl_or_b32 v{WU}, v{WTMP[5]}, 16, v{WTMP[4]}')
    a(f'  v_lshl_or_b32 v{WU+1}, v{WTMP[7]}, 16, v{WTMP[6]}')
    a(f'  v_lshl_or_b32 v{WSt}, v{WT2[1]}, 16, v{WT2[0]}')
    a(f'  v_lshl_or_b32 v{WRt}, v{WT2[3]}, 16, v{WT2[2]}')
    a(f'  v_mov_b32 v{WD+2}, v{WD}')
    a(f'  v_mov_b32 v{WD+3}, v{WD+1}')
    a(f'  v_mov_b32 v{WU+2}, v{WU}')
    a(f'  v_mov_b32 v{WU+3}, v{WU+1}')
    a(f'  v_mov_b32 v{WSt+1}, 0')
    a(f'  v_mov_b32 v{WRt+1}, 0')
    a(f'  v_mov_b32 v{RBp+1}, 0')
    a(f'  v_lshlrev_b32 v{CEN}, 16, v{CEN}')
    a(f'  v_lshlrev_b32 v{CEN+1}, 16, v{CEN+1}')
    uid = [0]
    def stageA(b):
        u = uid[0]; uid[0] += 1
        a.label(f'p2_chk{u}')
        a('  s_cmp_lg_u32 s56, 0')
        a(f'  s_cbranch_scc1 p2_go{u}')
        a('  s_cmp_ge_u32 s51, s50')
        a(f'  s_cbranch_scc1 p2_exh{u}')
        a(f'  v_add_u32 v{X[0]}, s51, v{VOFF8}')
        a(f'  v_cmp_gt_u32 vcc, v{VN}, v{X[0]}')
        a(f'  v_sub_u32 v{X[1]}, v{VN}, v{X[0]}')
        a(f'  v_min_u32 v{X[1]}, 8, v{X[1]}')
        a(f'  v_mad_u32_u24 v{X[2]}, v{X[0]}, 6, v{VB}')
        a(f'  v_or_b32 v{X[2]}, v{X[2]}, v{X[1]}')
        a(f'  s_bcnt1_i32_b64 s67, vcc')
        a(f'  v_mbcnt_lo_u32_b32 v{X[3]}, vcc_lo, 0')
        a(f'  v_mbcnt_hi_u32_b32 v{X[3]}, vcc_hi, v{X[3]}')
        a(f'  v_sub_u32 v{X[4]}, v{VLANE}, v{X[3]}')
        a(f'  v_add_u32 v{X[4]}, s67, v{X[4]}')
        a(f'  v_cndmask_b32 v{X[4]}, v{X[4]}, v{X[3]}, vcc')
        a(f'  v_cndmask_b32 v{X[2]}, 0, v{X[2]}, vcc')
        a(f'  v_and_b32 v{X[5]}, 6, v{X[4]}')
        a(f'  v_lshlrev_b32 v{X[5]}, 5, v{X[5]}')
        a(f'  v_and_or_b32 v{X[5]}, v{X[4]}, -8, v{X[5]}')
        a(f'  v_and_b32 v{X[4]}, 1, v{X[4]}')
        a(f'  v_lshl_or_b32 v{X[5]}, v{X[4]}, 2, v{X[5]}')
        a(f'  ds_permute_b32 v{EE}, v{X[5]}, v{X[2]}')
        a('  s_add_u32 s56, s67, 7')
        a('  s_lshr_b32 s56, s56, 3')
        a('  s_add_u32 s64, s64, s56')
        a(f'  s_add_u32 s51, s51, {16*JPC}')
        a('  s_waitcnt lgkmcnt(0)')
        a(f'  s_branch p2_go{u}')
        a.label(f'p2_exh{u}')
        a(f'  v_mov_b32 v{EE}, 0')
        a('  s_mov_b32 s56, 1')
        a('  s_nop 0')
        a.label(f'p2_go{u}')
        a('  s_sub_u32 s56, s56, 1')
        a(f'  v_mov_b32_dpp v{X[0]}, v{EE} row_newbcast:0 row_mask:0xf bank_mask:0x3')
        a(f'  v_mov_b32_dpp v{X[0]}, v{EE} row_newbcast:1 row_mask:0xf bank_mask:0xc')
        a(f'  v_mov_b32_dpp v{EE}, v{EE} row_shl:2 row_mask:0xf bank_mask:0xf bound_ctrl:0')
        a(f'  v_and_b32 v{X[1]}, s52, v{X[0]}')
        a(f'  v_and_b32 v{VV[b]}, 15, v{X[0]}')
        a(f'  v_add_u32 v{X[0]}, v{X[1]}, v{J4}')
        a(f'  v_add_u32 v{X[1]}, v{X[1]}, v{J2H}')
        F = {0: '', 1: ' nt', 2: ' sc1', 3: ' sc0'}
        a(f'  buffer_load_dword v{RW[b]}, v{X[0]}, s[8:11], 0 offen{F[opt.get("rw_f", 0)]}')
        a(f'  buffer_load_short_d16_hi v{RC[b]}, v{X[1]}, s[8:11], 0 offen offset:32{F[opt.get("rc_f", 0)]}')
    def decode(b):
        a(f'  v_cmp_gt_u32 vcc, v{VV[b]}, v{P7}')
        a(f'  v_lshlrev_b32 v{X[2]}, 5, v{RW[b]}')
        a(f'  v_lshrrev_b32 v{X[3]}, 12, v{RW[b]}')
        a(f'  v_and_b32 v{CC[b]}, s53, v{RC[b]}')
        a(f'  v_and_b32 v{X[2]}, s55, v{X[2]}')
        a(f'  v_and_b32 v{X[3]}, s54, v{X[3]}')
        a(f'  v_cndmask_b32 v{COL}, 0, v{X[2]}, vcc')
        if opt.get('colmask'):
            a(f'  v_and_b32 v{COL}, {opt["colmask"]}, v{COL}')
        a(f'  v_cndmask_b32 v{ROW[b]}, v{VDUM}, v{X[3]}, vcc')
        a('  s_nop 0')
    def gather(b, g):
        ad = GAD[g & 1]
        a(f'  v_add_u32_dpp v{ad}, v{COL}, v{J4} row_newbcast:{2*g} row_mask:0xf bank_mask:0x3')
        a(f'  v_add_u32_dpp v{ad}, v{COL}, v{J4} row_newbcast:{2*g+1} row_mask:0xf bank_mask:0xc')
        GF = {0: '', 1: ' sc0', 2: ' sc1', 3: ' nt'}[opt.get('gflag', 0)]
        a(f'  buffer_load_dword v{G[b]+g}, v{ad}, s[4:7], 0 offen{GF}')
    def consume(b, g):
        x = G[b] + g; y = YR[g & 1]
        a(f'  v_mov_b32_dpp v{y}, v{x} row_ror:8 row_mask:0xf bank_mask:0xf')
        a(f'  v_add_u32_dpp v{LA[0]}, v{ROW[b]}, v{J8} row_newbcast:{2*g} row_mask:0xf bank_mask:0xf')
        a(f'  v_add_u32_dpp v{LA[1]}, v{ROW[b]}, v{J8} row_newbcast:{2*g+1} row_mask:0xf bank_mask:0xf')
        a(f'  v_perm_b32 v{AB[0]}, v{x}, v{y}, v{SELA}')
        a(f'  v_perm_b32 v{AB[1]}, v{x}, v{y}, v{SELB}')
        a(f'  v_mul_f32_dpp v{PT[0]}, v{CC[b]}, v{AB[0]} row_newbcast:{2*g} row_mask:0xf bank_mask:0xf')
        a(f'  v_mul_f32_dpp v{PT[1]}, v{CC[b]}, v{AB[1]} row_newbcast:{2*g+1} row_mask:0xf bank_mask:0xf')
        a(f'  v_cvt_f64_f32 {vr(D[0],2)}, v{PT[0]}')
        a(f'  v_cvt_f64_f32 {vr(D[1],2)}, v{PT[1]}')
        if not opt.get('no_ds'):
            a(f'  ds_add_f64 v{LA[0]}, {vr(D[0],2)}')
            a(f'  ds_add_f64 v{LA[1]}, {vr(D[1],2)}')
    for t in range(-2*b_lag, -b_lag):
        stageA((t + 2*b_lag) % R)
    first = True
    for t in range(-b_lag, 0):
        stageA((t + 2*b_lag) % R)
        if first:
            first = False
            if opt.get('warm2'):
                nw = opt['warm2']
                a(f'  s_cmp_ge_u32 s24, {nw}')
                a('  s_cbranch_scc1 p2_nowarm2')
                a('  s_lshr_b32 s26, s2, 3')
                a(f'  s_mul_i32 s26, s26, {nw}')
                a('  s_add_u32 s26, s26, s24')
                a('  s_lshl_b32 s26, s26, 13')
                a(f'  v_lshlrev_b32 v{X[4]}, 7, v{VLANE}')
                a(f'  buffer_load_dword v{VDUM}, v{X[4]}, s[4:7], s26 offen')
                a.label('p2_nowarm2')
            a('  s_mov_b32 s76, 0xc1200000')
            a('  s_mov_b32 s77, 0x3fb8aa3b')
            for u in range(5):
                a(f'  v_lshlrev_b32 v{X[1]}, 16, v{DI+u}')
                a(f'  v_sub_f32 v{X[2]}, v{X[1]}, v{CEN}')
                a(f'  v_sub_f32 v{X[3]}, v{X[1]}, v{CEN+1}')
                def rnd2():
                    a(f'  v_cvt_pk_bf16_f32 v{X[4]}, v{X[2]}, v{X[3]}')
                    a(f'  v_lshlrev_b32 v{X[2]}, 16, v{X[4]}')
                    a(f'  v_and_b32 v{X[3]}, s53, v{X[4]}')
                rnd2()
                a(f'  v_mul_f32 v{X[2]}, v{X[2]}, v{X[2]}')
                a(f'  v_mul_f32 v{X[3]}, v{X[3]}, v{X[3]}')
                rnd2()
                a(f'  v_mul_f32 v{X[2]}, s76, v{X[2]}')
                a(f'  v_mul_f32 v{X[3]}, s76, v{X[3]}')
                rnd2()
                a(f'  v_mul_f32 v{X[2]}, s77, v{X[2]}')
                a(f'  v_mul_f32 v{X[3]}, s77, v{X[3]}')
                a(f'  v_exp_f32 v{X[2]}, v{X[2]}')
                a(f'  v_exp_f32 v{X[3]}, v{X[3]}')
                a('  s_nop 0')
                a(f'  v_cvt_pk_bf16_f32 v{RBp}, v{X[2]}, v{X[3]}')
                a('  s_nop 1')
                a(f'  v_mfma_f32_16x16x16_bf16 {vr(GG+4*u,4)}, {vr(WSt,2)}, {vr(RBp,2)}, 0')
                a(f'  v_mfma_f32_16x16x16_bf16 {vr(HT,4)}, {vr(WRt,2)}, {vr(RBp,2)}, 0')
                a('  s_nop 7')
                a('  s_nop 1')
                a(f'  v_cvt_pk_bf16_f32 v{HH+2*u}, v{HT}, v{HT+1}')
                a(f'  v_cvt_pk_bf16_f32 v{HH+2*u+1}, v{HT+2}, v{HT+3}')
        if opt.get('pstamp') and t == -b_lag: st()
        a(f'  s_waitcnt vmcnt({2*b_lag + NG*(t + b_lag)})')
        if opt.get('pstamp') and t == -b_lag: st()
        if t == -b_lag:
            if opt.get('warm2'):
                a('  s_waitcnt vmcnt(0)')
            a(f'  v_mov_b32 v{VDUM}, {DUMMY_ROW*128}')
        decode((t + b_lag) % R)
        for g in range(NG):
            gather((t + b_lag) % R, g)
    a('  s_waitcnt lgkmcnt(0)')
    a('  s_barrier')
    st()
    if opt.get('prio'):
        pr = opt['prio']
        if pr == 1:
            a('  s_cmp_lt_u32 s24, 8')
            a('  s_cbranch_scc1 p2_noprio')
            a('  s_setprio 1')
            a.label('p2_noprio')
        if pr == 2:
            a('  s_cmp_lt_u32 s24, 4')
            a('  s_cbranch_scc1 p2_noprio')
            a('  s_setprio 1')
            a('  s_cmp_lt_u32 s24, 8')
            a('  s_cbranch_scc1 p2_noprio')
            a('  s_setprio 2')
            a('  s_cmp_lt_u32 s24, 12')
            a('  s_cbranch_scc1 p2_noprio')
            a('  s_setprio 3')
            a.label('p2_noprio')
    a('  s_cmp_eq_u32 s64, 0')
    a('  s_cbranch_scc1 p2_loop_exit')
    a.label('p2_loop')
    U = R
    if se and se > R and se % R == 0:
        U = se
    for t in range(U):
        tb = t % R
        stageA((tb + 2*b_lag) % R)
        a(f'  s_waitcnt vmcnt({(NG+2)*b_lag})')
        decode((tb + b_lag) % R)
        for g in range(NG):
            gather((tb + b_lag) % R, g)
            a(f'  s_waitcnt vmcnt({(NG+2)*b_lag})')
            consume(tb, g)
        if se and (t % se) == se - 1:
            a('  s_cmp_eq_u32 s69, 0')
            a(f'  s_cbranch_scc1 p2_nosync{t}')
            a('  s_barrier')
            a('  s_sub_u32 s69, s69, 1')
            a.label(f'p2_nosync{t}')
        a('  s_sub_u32 s64, s64, 1')
        a('  s_cmp_eq_u32 s64, 0')
        if t < U - 1:
            a('  s_cbranch_scc1 p2_loop_exit')
        else:
            a('  s_cbranch_scc0 p2_loop')
    a.label('p2_loop_exit')
    if se:
        a.label('p2_owed')
        a('  s_cmp_eq_u32 s69, 0')
        a('  s_cbranch_scc1 p2_owed_done')
        a('  s_barrier')
        a('  s_sub_u32 s69, s69, 1')
        a('  s_branch p2_owed')
        a.label('p2_owed_done')
    st()
    a('  s_waitcnt vmcnt(0) lgkmcnt(0)')
    a('  s_barrier')
    st()
    def split4(src):
        a(f'  v_cvt_pk_bf16_f32 v{BT}, v{src}, v{src+1}')
        a(f'  v_cvt_pk_bf16_f32 v{BT+1}, v{src+2}, v{src+3}')
        a(f'  v_lshlrev_b32 v{X[0]}, 16, v{BT}')
        a(f'  v_and_b32 v{X[1]}, s53, v{BT}')
        a(f'  v_lshlrev_b32 v{X[2]}, 16, v{BT+1}')
        a(f'  v_and_b32 v{X[3]}, s53, v{BT+1}')
        for q in range(4):
            a(f'  v_sub_f32 v{X[q]}, v{src+q}, v{X[q]}')
        a(f'  v_cvt_pk_bf16_f32 v{BT+2}, v{X[0]}, v{X[1]}')
        a(f'  v_cvt_pk_bf16_f32 v{BT+3}, v{X[2]}, v{X[3]}')
        a('  s_nop 1')
    for u in range(5):
        a(f'  s_cmp_ge_u32 s{70+u}, {E}')
        a(f'  s_cbranch_scc1 p2_epi_skip{u}')
        a(f'  s_add_u32 s26, s24, {16*u}')
        a('  s_lshl_b32 s26, s26, 11')
        a(f'  v_lshlrev_b32 v{X[0]}, 7, v{P}')
        a(f'  v_lshl_add_u32 v{X[0]}, v{VROW4}, 4, v{X[0]}')
        a(f'  v_add_u32 v{X[0]}, s26, v{X[0]}')
        a(f'  ds_read_b128 {vr(Sg,4)}, v{X[0]}')
        a(f'  ds_read_b128 {vr(Sg+4,4)}, v{X[0]} offset:64')
        a('  s_waitcnt lgkmcnt(0)')
        order = [0, 2, 1, 3]
        for i in range(4):
            a(f'  v_cvt_f32_f64 v{SF+order[i]}, {vr(Sg+2*i,2)}')
        split4(SF)
        a(f'  v_mfma_f32_16x16x32_bf16 {vr(Y,4)}, {vr(WD,4)}, {vr(BT,4)}, 0')
        a('  s_nop 7')
        a('  s_nop 1')
        for q in range(4):
            a(f'  v_mul_f32 v{Y+q}, v{Y+q}, v{GG+4*u+q}')
        split4(Y)
        a(f'  v_mfma_f32_16x16x32_bf16 {vr(Z,4)}, {vr(WU,4)}, {vr(BT,4)}, 0')
        a(f'  v_lshlrev_b32 v{SF}, 16, v{HH+2*u}')
        a(f'  v_and_b32 v{SF+1}, s53, v{HH+2*u}')
        a(f'  v_lshlrev_b32 v{SF+2}, 16, v{HH+2*u+1}')
        a(f'  v_and_b32 v{SF+3}, s53, v{HH+2*u+1}')
        a(f'  v_lshlrev_b32 v{Y}, 16, v{MM+2*u}')
        a(f'  v_and_b32 v{Y+1}, s53, v{MM+2*u}')
        a(f'  v_lshlrev_b32 v{Y+2}, 16, v{MM+2*u+1}')
        a(f'  v_and_b32 v{Y+3}, s53, v{MM+2*u+1}')
        a('  s_nop 1')
        a(f'  v_cvt_pk_bf16_f32 v{X[0]}, v{Z}, v{Z+1}')
        a(f'  v_cvt_pk_bf16_f32 v{X[1]}, v{Z+2}, v{Z+3}')
        a(f'  v_lshlrev_b32 v{Z}, 16, v{X[0]}')
        a(f'  v_and_b32 v{Z+1}, s53, v{X[0]}')
        a(f'  v_lshlrev_b32 v{Z+2}, 16, v{X[1]}')
        a(f'  v_and_b32 v{Z+3}, s53, v{X[1]}')
        for q in range(4):
            a(f'  v_mul_f32 v{Z+q}, v{Z+q}, v{SF+q}')
        a(f'  v_cvt_pk_bf16_f32 v{X[0]}, v{Z}, v{Z+1}')
        a(f'  v_cvt_pk_bf16_f32 v{X[1]}, v{Z+2}, v{Z+3}')
        a(f'  v_lshlrev_b32 v{Z}, 16, v{X[0]}')
        a(f'  v_and_b32 v{Z+1}, s53, v{X[0]}')
        a(f'  v_lshlrev_b32 v{Z+2}, 16, v{X[1]}')
        a(f'  v_and_b32 v{Z+3}, s53, v{X[1]}')
        for q in range(4):
            a(f'  v_add_f32 v{Z+q}, v{Z+q}, v{Y+q}')
        a(f'  v_cvt_pk_bf16_f32 v{Z}, v{Z}, v{Z+1}')
        a(f'  v_cvt_pk_bf16_f32 v{Z+1}, v{Z+2}, v{Z+3}')
        a(f'  v_add_u32 v{X[3]}, s{70+u}, v{P}')
        a(f'  v_lshlrev_b32 v{X[4]}, 5, v{X[3]}')
        a(f'  v_lshl_add_u32 v{X[4]}, v{VROW4}, 3, v{X[4]}')
        a(f'  buffer_store_dwordx2 {vr(Z,2)}, v{X[4]}, s[16:19], 0 offen{OTF}')
        a.label(f'p2_epi_skip{u}')
    if st.on:
        a('  s_waitcnt vmcnt(0)')
        st()
    st.flush('s24')
    a.label('p2_done')
    a('  s_endpgm')
    return maxv

def descriptor(a, name, vgpr, sgpr):
    a(f'.amdhsa_kernel {name}')
    a(f'  .amdhsa_next_free_vgpr {vgpr}')
    a(f'  .amdhsa_next_free_sgpr {sgpr}')
    a(f'  .amdhsa_accum_offset {(vgpr + 3) // 4 * 4}')
    a('  .amdhsa_group_segment_fixed_size 0')
    a('  .amdhsa_kernarg_size 112')
    a('  .amdhsa_user_sgpr_count 2')
    a('  .amdhsa_user_sgpr_kernarg_segment_ptr 1')
    a('  .amdhsa_system_sgpr_workgroup_id_x 1')
    a('  .amdhsa_float_denorm_mode_32 3')
    a('.end_amdhsa_kernel')

HEADER = '''; Kernarg layout (112 bytes, ptrs only, base s[0:1]):
; Two launches: p1 partitions the triplets by output-row bucket (each segment ordered by input column block),
; @launch kernel=p1_kernel grid=(256,1,1) block=(1024,1,1) lds=163840
; @launch kernel=p2_kernel grid=(256,1,1) block=(1024,1,1) lds=163840
.amdgcn_target "amdgcn-amd-amdhsa--gfx950"
.text
.globl p1_kernel
.globl p2_kernel
'''

def build(opt):
    cfg = Cfg(opt)
    a = Asm()
    a(HEADER.rstrip('\n'))
    gen_p1(a, opt, cfg)
    v2 = gen_p2(a, opt, cfg)
    a('.section .rodata,"a"')
    a('.p2align 6')
    ns = 102 if opt.get('stamp') else 80
    descriptor(a, 'p1_kernel', 128, ns)
    a('.p2align 6')
    descriptor(a, 'p2_kernel', v2, ns)
    return a.text()

if __name__ == '__main__':
    out = sys.argv[1] if len(sys.argv) > 1 else 'standalone__molecular_angular_gemnet__graph.s'
    opt = {}
    for kv in sys.argv[2:]:
        k, v = kv.split('=')
        opt[k] = int(v) if v.lstrip('-').isdigit() else v
    open(out, 'w').write(build(opt))
    print('wrote', out)
```

```python
import struct, sys, math

def f32bits(x):
    return struct.unpack('<I', struct.pack('<f', x))[0]
def bits2f(b):
    return struct.unpack('<f', struct.pack('<I', b))[0]

E = 320000
T = 10240000
NWG = 256
import os
KSH = int(os.environ.get('KSH', 14))
NK = (E + (1 << KSH) - 1) >> KSH
HIST = 131072
TMP = HIST + NK * 1024
DUMMY_ROW = 1264

class Cfg:
    def __init__(self, opt):
        self.S = 1
        self.NTT = NWG
        self.SUB = 40000
        self.RPS = 10
        self.SLICE = 21504
        self.CBASE = self.SLICE * 4
        self.SLICE_BYTES = self.SLICE * 6
        maxpad = self.SUB + 256 * 7
        assert maxpad <= 2 * self.SLICE and self.SUB > self.SLICE
        self.TILE_BYTES = (maxpad * 6 + 127) // 128 * 128
        self.TAB_BYTES = 256 * self.NTT * 4
        self.REC_OFF = self.TAB_BYTES
        self.REC_BYTES = self.NTT * self.TILE_BYTES
        self.NSL = 2

class Asm:
    def __init__(self):
        self.lines = []
    def __call__(self, s=''):
        for l in s.split('\n'):
            self.lines.append(l)
    def label(self, s):
        self.lines.append(s + ':')
    def text(self):
        return '\n'.join(self.lines) + '\n'

def vr(a, n=1):
    return f'v{a}' if n == 1 else f'v[{a}:{a+n-1}]'

def srd(a, d, ptr, size):
    a(f'  s_mov_b32 s{d}, s{ptr}')
    a(f'  s_and_b32 s{d+1}, s{ptr+1}, 0xffff')
    a(f'  s_mov_b32 s{d+2}, {size}')
    a(f'  s_mov_b32 s{d+3}, 0x20000')

class Stamps:
    def __init__(self, a, on, name, slot):
        self.a = a; self.on = on; self.n = 0; self.name = name; self.slot = slot; self.wave = 0
    def __call__(self):
        if not self.on: return
        a = self.a
        a('  s_memtime s[80:81]')
        a('  s_memrealtime s[82:83]')
        a('  s_waitcnt lgkmcnt(0)')
        a(f'  s_mov_b32 s{84+2*self.n}, s80')
        a(f'  s_mov_b32 s{85+2*self.n}, s82')
        self.n += 1
        assert self.n <= 9
    def flush(self, wavereg):
        if not self.on: return
        a = self.a
        if getattr(self, 'dbg', False):
            a(f'  s_cmp_lg_u32 {wavereg}, 0')
            a(f'  s_cbranch_scc1 {self.name}_nostamp')
            a(f'  s_cmp_lg_u32 s2, {self.dbgwg}')
            a(f'  s_cbranch_scc1 {self.name}_nostamp')
            if self.name == 'p1':
                a('  s_load_dwordx2 s[80:81], s[0:1], 104')
                a('  s_waitcnt lgkmcnt(0)')
                a(f'  s_add_u32 s80, s80, {200*1048576}')
                a('  s_addc_u32 s81, s81, 0')
                a('  v_mov_b32 v1, 0')
                for i in range(self.n):
                    a(f'  v_mov_b32 v2, s{85+2*i}')
                    a(f'  global_store_dword v1, v2, s[80:81] offset:{4*i}')
            else:
                a('  s_load_dwordx2 s[80:81], s[0:1], 96')
                a('  s_load_dwordx2 s[82:83], s[0:1], 104')
                a('  s_waitcnt lgkmcnt(0)')
                a(f'  s_add_u32 s82, s82, {200*1048576}')
                a('  s_addc_u32 s83, s83, 0')
                a('  v_mov_b32 v1, 0')
                for i in range(9):
                    a(f'  global_load_dword v{4+i}, v1, s[82:83] offset:{4*i}')
                a('  s_waitcnt vmcnt(0)')
                for i in range(9):
                    a(f'  global_store_dword v1, v{4+i}, s[80:81] offset:{4*i}')
                for i in range(self.n):
                    a(f'  v_mov_b32 v2, s{85+2*i}')
                    a(f'  global_store_dword v1, v2, s[80:81] offset:{36+4*i}')
            a.label(f'{self.name}_nostamp')
            return
        a(f'  s_cmp_lg_u32 {wavereg}, {self.wave}')
        a(f'  s_cbranch_scc1 {self.name}_nostamp')
        a('  s_load_dwordx2 s[80:81], s[0:1], 104')
        a('  s_waitcnt lgkmcnt(0)')
        a(f'  s_add_u32 s80, s80, {200*1048576 + self.slot*65536}')
        a('  s_addc_u32 s81, s81, 0')
        a('  s_lshl_b32 s82, s2, 7')
        a('  v_mov_b32 v1, s82')
        for i in range(2*self.n):
            a(f'  v_mov_b32 v2, s{84+i}')
            a(f'  global_store_dword v1, v2, s[80:81] offset:{4*i}')
        a.label(f'{self.name}_nostamp')

def gen_p1(a, opt, cfg):
    st = Stamps(a, bool(opt.get('stamp')), 'p1', 0); st.dbg = opt.get('stamp') == 2; st.dbgwg = opt.get('dwg', 0)
    NTF = ' nt' if opt.get('nt_in', 1) else ''
    STF = {0: '', 1: ' nt', 2: ' sc1', 3: ' sc0 sc1', 4: ' sc0'}[opt.get('nt_st', 2)]
    S = cfg.S
    W0, W1, AUX = 8, 48, 88
    CO = 32
    t = [108 + i for i in range(20)]
    inv2pi = 1.0 / (2.0 * math.pi)
    chi_bits = f32bits(inv2pi) & 0xffffff00
    clo_bits = f32bits(inv2pi - bits2f(chi_bits))
    a('.p2align 8')
    a('.type p1_kernel,@function')
    a.label('p1_kernel')
    a('  s_cmp_ge_u32 s2, 256')
    a('  s_cbranch_scc1 p1_done')
    a('  s_load_dwordx4 s[32:35], s[0:1], 8')
    a('  s_load_dwordx2 s[36:37], s[0:1], 32')
    a('  s_load_dwordx2 s[38:39], s[0:1], 48')
    a('  s_load_dwordx2 s[28:29], s[0:1], 104')
    a('  s_load_dwordx2 s[74:75], s[0:1], 0')
    a('  v_lshlrev_b32 v1, 4, v0')
    a(f'  v_add_u32 v2, {HIST}, v1')
    for r in range(4, 8):
        a(f'  v_mov_b32 v{r}, 0')
    a('  ds_write_b128 v2, v[4:7]')
    a('  ds_write_b128 v2, v[4:7] offset:16384')
    IL = opt.get('ilv', 0)
    a(f'  s_mul_i32 s40, s2, {16000 if IL else 160000}')
    a(f'  s_mul_i32 s41, s2, {8000 if IL else 80000}')
    a('  v_add_u32 v1, s40, v1')
    a('  v_lshlrev_b32 v3, 3, v0')
    a('  v_add_u32 v3, s41, v3')
    a('  v_readfirstlane_b32 s24, v0')
    a('  v_cmp_gt_u32 vcc, 1000, v0')
    a('  s_lshr_b32 s24, s24, 6')
    a('  s_mov_b64 s[44:45], vcc')
    for i in range(1, 10):
        a(f'  s_mov_b32 s{45+i}, {i*16000*(256 if IL else 1)}')
        a(f'  s_mov_b32 s{55+i}, {i*8000*(256 if IL else 1)}')
    a('  s_waitcnt lgkmcnt(0)')
    a('  s_load_dword s26, s[38:39], 0')
    srd(a, 4, 32, T * 4)
    srd(a, 8, 34, T * 4)
    srd(a, 12, 36, T * 2)
    st()
    a('  s_mov_b64 exec, s[44:45]')
    def issue_round(i):
        so = '0' if i == 0 else f's{45+i}'
        sa = '0' if i == 0 else f's{55+i}'
        a(f'  buffer_load_dwordx4 {vr(W0+4*i,4)}, v1, s[4:7], {so} offen{NTF}')
        a(f'  buffer_load_dwordx4 {vr(W1+4*i,4)}, v1, s[8:11], {so} offen{NTF}')
        a(f'  buffer_load_dwordx2 {vr(AUX+2*i,2)}, v3, s[12:15], {sa} offen{NTF}')
    AHEAD = opt.get('ahead', 2)
    for i in range(AHEAD):
        issue_round(i)
    issued = AHEAD
    a('  s_mov_b32 s27, 0xffff0000')
    a(f'  s_mov_b32 s30, {chi_bits:#x}')
    a(f'  s_mov_b32 s31, {clo_bits:#x}')
    a(f'  s_mov_b32 s42, {HIST}')
    a('  s_mov_b32 s43, 0x3fc')
    a('  v_mov_b32 v2, 1')
    srd(a, 20, 28, cfg.TAB_BYTES)
    srd(a, 76, 74, E * 32)
    a(f'  s_mul_i32 s40, s2, {S * cfg.TILE_BYTES}')
    a('  s_add_u32 s28, s28, s40')
    a('  s_addc_u32 s29, s29, 0')
    a(f'  s_add_u32 s28, s28, {cfg.REC_OFF}')
    a('  s_addc_u32 s29, s29, 0')
    a('  s_waitcnt lgkmcnt(0)')
    a('  s_and_b32 s26, s26, 0xffff')
    a('  s_lshl_b32 s26, s26, 16')
    a('  s_barrier')
    for i in range(1, 8):
        a(f'  s_mov_b32 s{CO+i}, {i*16128}')
    stores_done = 0
    for h in range(S):
        sfx = f'_{h}'
        if h > 0:
            a('  v_mov_b32 v2, 1')
            a(f'  s_mov_b32 s42, {HIST}')
            a('  s_mov_b32 s43, 0x3fc')
            a('  s_mov_b64 exec, s[44:45]')
        for i in range(h * cfg.RPS, (h + 1) * cfg.RPS):
            A = [W0 + 4*i + e for e in range(4)]
            O = [W1 + 4*i + e for e in range(4)]
            G = [AUX + 2*i, AUX + 2*i + 1]
            a(f'  s_waitcnt vmcnt({3*(issued - 1 - i) + stores_done})')
            if issued < 10:
                issue_round(issued); issued += 1
            a(f'  v_lshlrev_b32 v{t[0]}, 16, v{G[0]}')
            a(f'  v_and_b32 v{t[1]}, s27, v{G[0]}')
            a(f'  v_lshlrev_b32 v{t[2]}, 16, v{G[1]}')
            a(f'  v_and_b32 v{t[3]}, s27, v{G[1]}')
            for e in range(4):
                a(f'  v_mul_f32 v{t[e]}, s26, v{t[e]}')
            a(f'  v_cvt_pk_bf16_f32 v{t[4]}, v{t[0]}, v{t[1]}')
            a(f'  v_cvt_pk_bf16_f32 v{t[5]}, v{t[2]}, v{t[3]}')
            for e in range(4):
                a(f'  v_lshrrev_b32 v{t[8+e]}, 8, v{O[e]}')
            a(f'  v_lshlrev_b32 v{t[0]}, 16, v{t[4]}')
            a(f'  v_and_b32 v{t[1]}, s27, v{t[4]}')
            a(f'  v_lshlrev_b32 v{t[2]}, 16, v{t[5]}')
            a(f'  v_and_b32 v{t[3]}, s27, v{t[5]}')
            for e in range(4):
                a(f'  v_bfi_b32 v{t[8+e]}, 15, v{O[e]}, v{t[8+e]}')
            for e in range(4):
                a(f'  v_mul_f32 v{t[4+e]}, s30, v{t[e]}')
            for e in range(4):
                a(f'  v_fract_f32 v{t[4+e]}, v{t[4+e]}')
            for e in range(4):
                a(f'  v_fma_f32 v{t[4+e]}, v{t[e]}, s31, v{t[4+e]}')
            for e in range(4):
                a(f'  v_cos_f32 v{t[4+e]}, v{t[4+e]}')
            for e in range(4):
                a(f'  v_lshrrev_b32 v{t[12+e]}, 2, v{O[e]}')
            for e in range(4):
                a(f'  v_lshrrev_b32 v{t[e]}, {KSH}, v{A[e]}')
            for e in range(4):
                a(f'  v_and_b32 v{t[12+e]}, s43, v{t[12+e]}')
            for e in range(4):
                a(f'  v_lshl_or_b32 v{t[12+e]}, v{t[e]}, 10, v{t[12+e]}')
            a(f'  v_cvt_pk_bf16_f32 v{t[16]}, v{t[4]}, v{t[5]}')
            a(f'  v_cvt_pk_bf16_f32 v{t[17]}, v{t[6]}, v{t[7]}')
            for e in range(4):
                a(f'  v_add_u32 v{t[e]}, s42, v{t[12+e]}')
            for e in range(4):
                a(f'  ds_add_u32 v{t[e]}, v2')
            for e in range(4):
                a(f'  v_lshl_or_b32 v{A[e]}, v{t[8+e]}, 19, v{A[e]}')
            a(f'  v_mov_b32 v{O[0]}, v{t[16]}')
            a(f'  v_mov_b32 v{O[2]}, v{t[17]}')
            a(f'  v_lshl_or_b32 v{G[0]}, v{t[13]}, 16, v{t[12]}')
            a(f'  v_lshl_or_b32 v{G[1]}, v{t[15]}, 16, v{t[14]}')
        a('  s_mov_b64 exec, -1')
        a('  s_waitcnt lgkmcnt(0)')
        a('  s_barrier')
        st()
        if h == S - 1 and opt.get('mpf1', 1):
            a('  s_sub_u32 s40, s24, 4')
            a('  s_cmp_ge_u32 s40, 5')
            a('  s_cbranch_scc1 p1_nopf')
            a('  s_mul_i32 s41, s2, 40000')
            a('  s_and_b32 s41, s41, 0xffffff80')
            a('  v_subrev_u32 v5, 256, v0')
            a('  v_lshlrev_b32 v5, 7, v5')
            a(f'  buffer_load_dword v{W1+1}, v5, s[76:79], s41 offen')
            a.label('p1_nopf')
        a('  v_lshlrev_b32 v4, 2, v0')
        a(f'  v_add_u32 v4, {HIST}, v4')
        a('  s_cmp_ge_u32 s24, 4')
        a(f'  s_cbranch_scc1 p1_skip1{sfx}')
        for k in range(NK):
            a(f'  ds_read_b32 v{t[k]}, v4 offset:{k*1024}')
        a('  v_mov_b32 v5, 0')
        a('  s_waitcnt lgkmcnt(0)')
        ra, rb = 5, 6
        for k in range(NK):
            a(f'  v_add_u32 v{rb}, v{ra}, v{t[k]}')
            a(f'  v_mov_b32 v{t[k]}, v{ra}')
            ra, rb = rb, ra
        assert ra == 5
        a('  v_add_u32 v6, 7, v5')
        a('  v_and_b32 v6, -8, v6')
        a('  v_mov_b32 v7, v6')
        for sh in (1, 2, 4, 8):
            a('  s_nop 1')
            a(f'  v_add_u32_dpp v7, v7, v7 row_shr:{sh} row_mask:0xf bank_mask:0xf bound_ctrl:0')
        a('  s_nop 1')
        a('  v_add_u32_dpp v7, v7, v7 row_bcast:15 row_mask:0xa bank_mask:0xf')
        a('  s_nop 1')
        a('  v_add_u32_dpp v7, v7, v7 row_bcast:31 row_mask:0xc bank_mask:0xf')
        a('  s_lshl_b32 s40, s24, 2')
        a(f'  s_add_u32 s40, s40, {TMP}')
        a('  v_mov_b32 v3, s40')
        a('  s_mov_b32 exec_lo, 0')
        a('  s_mov_b32 exec_hi, 0x80000000')
        a('  ds_write_b32 v3, v7')
        a('  s_mov_b64 exec, -1')
        a.label(f'p1_skip1{sfx}')
        a('  s_waitcnt lgkmcnt(0)')
        a('  s_barrier')
        a(f'  v_mov_b32 v1, {TMP}')
        a('  ds_read2_b32 v[2:3], v1 offset0:0 offset1:1')
        a('  s_waitcnt lgkmcnt(0)')
        a('  v_readfirstlane_b32 s66, v2')
        a('  v_readfirstlane_b32 s67, v3')
        a('  ds_read2_b32 v[2:3], v1 offset0:2 offset1:3')
        a('  s_waitcnt lgkmcnt(0)')
        a('  v_readfirstlane_b32 s68, v2')
        a('  v_readfirstlane_b32 s69, v3')
        a('  s_nop 3')
        a('  s_add_u32 s70, s66, s67')
        a('  s_add_u32 s71, s70, s68')
        a('  s_add_u32 s72, s71, s69')
        a('  s_cmp_ge_u32 s24, 4')
        a(f'  s_cbranch_scc1 p1_skip2{sfx}')
        a('  s_mov_b32 s73, 0')
        a('  s_cmp_eq_u32 s24, 1')
        a('  s_cselect_b32 s73, s66, s73')
        a('  s_cmp_eq_u32 s24, 2')
        a('  s_cselect_b32 s73, s70, s73')
        a('  s_cmp_eq_u32 s24, 3')
        a('  s_cselect_b32 s73, s71, s73')
        a('  v_sub_u32 v7, v7, v6')
        a('  v_add_u32 v7, s73, v7')
        for k in range(NK):
            a(f'  v_add_u32 v{t[k]}, v7, v{t[k]}')
            a(f'  ds_write_b32 v4, v{t[k]} offset:{k*1024}')
        a('  v_lshl_or_b32 v5, v7, 13, v5')
        a(f'  s_mul_i32 s40, s2, {S*4}')
        if h: a(f'  s_add_u32 s40, s40, {h*4}')
        a(f'  s_mov_b32 s41, {cfg.NTT*4}')
        a('  v_mul_lo_u32 v6, v0, s41')
        a('  buffer_store_dword v5, v6, s[20:23], s40 offen')
        a.label(f'p1_skip2{sfx}')
        a('  s_waitcnt lgkmcnt(0)')
        a('  s_barrier')
        st()
        a('  v_mov_b32 v2, 1')
        a(f'  v_mov_b32 v1, {HIST}')
        a('  s_mov_b64 exec, s[44:45]')
        r0 = h * cfg.RPS * 4
        nrec = cfg.RPS * 4
        batches = [(b, min(8, nrec - b)) for b in range(0, nrec, 8)]
        def rank_issue(bi):
            b, n = batches[bi]
            base = (bi & 1) * 8
            for x in range(n):
                rec = r0 + b + x
                j, hh = rec >> 1, rec & 1
                ad = 4 + (x & 3)
                a(f'  v_add_u32_sdwa v{ad}, v1, v{AUX+j} dst_sel:DWORD dst_unused:UNUSED_PAD src0_sel:DWORD src1_sel:WORD_{hh}')
                a(f'  ds_add_rtn_u32 v{t[base+x]}, v{ad}, v2')
        def rank_pack(bi):
            b, n = batches[bi]
            base = (bi & 1) * 8
            for x in range(0, n, 2):
                j = (r0 + b + x) >> 1
                a(f'  v_lshl_or_b32 v{AUX+j}, v{t[base+x+1]}, 16, v{t[base+x]}')
        rank_issue(0)
        for bi in range(len(batches)):
            if bi + 1 < len(batches):
                rank_issue(bi + 1)
                a(f'  s_waitcnt lgkmcnt({batches[bi+1][1]})')
            else:
                a('  s_waitcnt lgkmcnt(0)')
            rank_pack(bi)
        if opt.get('p1stamp'): st()
        a('  s_mov_b64 exec, -1')
        a(f'  s_mov_b32 s43, {cfg.SLICE}')
        a(f'  s_mov_b32 s41, {cfg.CBASE}')
        a('  s_mov_b32 s40, 0xaaab')
        a('  v_mul_u32_u24 v1, s40, v0')
        a('  v_lshrrev_b32 v1, 17, v1')
        a('  v_mul_u32_u24 v3, 3, v1')
        a('  v_sub_u32 v3, v0, v3')
        a(f'  v_lshlrev_b32 v{t[16]}, 5, v1')
        a(f'  v_lshl_add_u32 v{t[16]}, v3, 4, v{t[16]}')
        a(f'  v_lshlrev_b32 v{t[17]}, 4, v1')
        a(f'  v_add_u32 v{t[17]}, s41, v{t[17]}')
        a('  v_cmp_eq_u32 vcc, 2, v3')
        a(f'  v_mov_b32 v{t[19]}, {336*32}')
        a(f'  v_mov_b32 v1, {336*16}')
        a(f'  v_cndmask_b32 v{t[16]}, v{t[16]}, v{t[17]}, vcc')
        a(f'  v_cndmask_b32 v{t[17]}, v{t[19]}, v1, vcc')
        for s in range(cfg.NSL):
            a('  s_mov_b64 exec, s[44:45]')
            a(f'  s_mov_b32 s42, {s*cfg.SLICE}')
            for x in range(r0, r0 + nrec):
                j, hh = x >> 1, x & 1
                q = 4 + 2 * (x & 1); a0 = q + 1
                creg = W1 + 4 * (x >> 2) + 2 * ((x >> 1) & 1)
                a(f'  v_subrev_u32_sdwa v{q}, s42, v{AUX+j} dst_sel:DWORD dst_unused:UNUSED_PAD src0_sel:DWORD src1_sel:WORD_{hh}')
                a(f'  v_cmpx_gt_u32 vcc, s43, v{q}')
                a(f'  v_lshlrev_b32 v{a0}, 2, v{q}')
                a(f'  v_lshl_add_u32 v{q}, v{q}, 1, s41')
                a(f'  ds_write_b32 v{a0}, v{W0+x}')
                a(f'  ds_write_b16{"_d16_hi" if (x & 1) else ""} v{q}, v{creg}')
                a('  s_mov_b64 exec, s[44:45]')
            a('  s_mov_b64 exec, -1')
            a(f'  s_add_u32 s16, s28, {s*cfg.SLICE_BYTES}')
            a('  s_addc_u32 s17, s29, 0')
            a('  s_and_b32 s17, s17, 0xffff')
            last = (s == cfg.NSL - 1)
            if not last:
                a(f'  s_mov_b32 s18, {cfg.SLICE_BYTES}')
            else:
                a(f'  s_sub_u32 s18, s72, {s*cfg.SLICE}')
                a('  s_mul_i32 s18, s18, 6')
            a('  s_mov_b32 s19, 0x20000')
            a('  v_lshlrev_b32 v1, 4, v0')
            a(f'  v_mov_b32 v3, v{t[16]}')
            a('  s_waitcnt lgkmcnt(0)')
            if opt.get('p1stamp'): st()
            a('  s_barrier')
            for half in range(2):
                for u in range(4):
                    a(f'  ds_read_b128 {vr(t[4*u],4)}, v3')
                    a(f'  v_add_u32 v3, v3, v{t[17]}')
                for u in range(4):
                    a(f'  s_waitcnt lgkmcnt({3-u})')
                    rnd = half * 4 + u
                    so = '0' if rnd == 0 else f's{CO+rnd}'
                    a(f'  buffer_store_dwordx4 {vr(t[4*u],4)}, v1, s[16:19], {so} offen{STF}')
                a('  s_nop 1')
            if not last:
                a('  s_barrier')
                if opt.get('p1stamp'): st()
        st()
    if st.on:
        a('  s_waitcnt vmcnt(0)')
        st()
    st.flush('s24')
    a.label('p1_done')
    a('  s_endpgm')

class RegAlloc:
    def __init__(self, start):
        self.n = start
    def get(self, k=1, align=1):
        self.n = (self.n + align - 1) // align * align
        r = self.n; self.n += k
        return r

def gen_p2(a, opt, cfg):
    st = Stamps(a, bool(opt.get('stamp')), 'p2', 1); st.wave = opt.get('swave', 0); st.dbg = opt.get('stamp') == 2; st.dbgwg = opt.get('dwg', 0)
    b_lag = opt.get('lag', 1)
    R = b_lag + 1
    NG = 8
    RNT = {0: '', 1: ' nt', 2: ' sc1', 3: ' sc0 sc1', 4: ' sc0 sc1 nt', 5: ' sc1 nt'}[opt.get('nt_rec', 0)]
    OTF = {0: '', 1: ' nt', 2: ' sc1', 3: ' sc0 sc1', 4: ' sc0'}[opt.get('out_st', 2)]
    se = opt.get('sync', 2)
    NSEG = 16 * cfg.S
    JPC = 32 // NSEG
    ra = RegAlloc(1)
    J4 = ra.get(); J8 = ra.get(); P = ra.get(); P7 = ra.get(); J2H = ra.get()
    VN = ra.get(); VB = ra.get(); VOFF8 = ra.get(); EE = ra.get()
    SELA = ra.get(); SELB = ra.get(); VDUM = ra.get(); COL = ra.get()
    D = [ra.get(2, 2), ra.get(2, 2)]
    PT = [ra.get(), ra.get()]; LA = [ra.get(), ra.get()]; GAD = [ra.get(), ra.get()]
    YR = [ra.get(), ra.get()]; AB = [ra.get(), ra.get()]
    X = [ra.get() for _ in range(6)]
    VROW4 = ra.get(); VLANE = ra.get()
    WD = ra.get(4, 2); WU = ra.get(4, 2)
    MM = ra.get(10, 2)
    GG = ra.get(20, 2)
    HH = ra.get(10, 2)
    main0 = ra.n
    RW = [ra.get() for _ in range(R)]; RC = [ra.get() for _ in range(R)]
    VV = [ra.get() for _ in range(R)]
    CC = [ra.get() for _ in range(R)]
    ROW = [ra.get() for _ in range(R)]
    G = [ra.get(NG) for _ in range(R)]
    maxv = ra.n
    rp = RegAlloc(G[0])
    WSt = rp.get(2, 2); WRt = rp.get(2, 2); CEN = rp.get(2); DI = rp.get(5); RBp = rp.get(2, 2)
    assert rp.n <= G[0] + NG * R, (rp.n, G[0] + NG*R)
    HT = D[0]
    ra2 = RegAlloc(main0)
    Sg = ra2.get(8, 2); SF = ra2.get(4, 2); BT = ra2.get(4, 2); Y = ra2.get(4, 2); Z = ra2.get(4, 2)
    maxv = max(maxv, ra2.n)
    assert maxv <= 128, maxv
    a('.p2align 8')
    a('.type p2_kernel,@function')
    a.label('p2_kernel')
    a('  s_cmp_ge_u32 s2, 256')
    a('  s_cbranch_scc1 p2_done')
    a('  s_load_dwordx2 s[28:29], s[0:1], 104')
    a('  s_load_dwordx2 s[32:33], s[0:1], 0')
    a('  s_load_dwordx2 s[34:35], s[0:1], 24')
    a('  s_load_dwordx2 s[36:37], s[0:1], 40')
    a('  s_load_dwordx4 s[40:43], s[0:1], 56')
    a('  s_load_dwordx4 s[44:47], s[0:1], 72')
    a('  s_load_dwordx2 s[48:49], s[0:1], 88')
    a('  v_readfirstlane_b32 s24, v0')
    a(f'  v_and_b32 v{VLANE}, 63, v0')
    a(f'  v_and_b32 v{P}, 15, v0')
    a('  s_lshr_b32 s24, s24, 6')
    a(f'  v_lshrrev_b32 v{X[0]}, 1, v{VLANE}')
    a(f'  v_and_b32 v{X[1]}, {NSEG-1}, v{X[0]}')
    a(f'  s_mul_i32 s25, s2, {cfg.NTT}')
    a(f'  s_mul_i32 s26, s24, {NSEG}')
    a('  s_add_u32 s25, s25, s26')
    a('  s_lshl_b32 s25, s25, 2')
    a(f'  v_lshlrev_b32 v{X[2]}, 2, v{X[1]}')
    a(f'  v_lshrrev_b32 v{VROW4}, 4, v{VLANE}')
    a('  s_waitcnt lgkmcnt(0)')
    srd(a, 12, 28, cfg.TAB_BYTES)
    a(f'  buffer_load_dword v{VN}, v{X[2]}, s[12:15], s25 offen')
    st()
    srd(a, 4, 32, E * 32)
    srd(a, 20, 34, E * 2)
    npf = 0
    a(f'  v_lshlrev_b32 v{X[3]}, 1, v{P}')
    a(f'  v_lshl_add_u32 v{X[4]}, v{VROW4}, 7, v{X[3]}')
    WTMP = [YR[0], YR[1], AB[0], AB[1], PT[0], PT[1], LA[0], LA[1]]
    for q in range(4):
        a(f'  global_load_ushort v{WTMP[q]}, v{X[4]}, s[44:45] offset:{q*32}'); npf += 1
    for q in range(4):
        a(f'  global_load_ushort v{WTMP[4+q]}, v{X[4]}, s[46:47] offset:{q*32}'); npf += 1
    a(f'  v_lshl_add_u32 v{X[4]}, v{VROW4}, 5, v{X[3]}')
    WT2 = [GAD[0], GAD[1], COL, EE]
    for q in range(2):
        a(f'  global_load_ushort v{WT2[q]}, v{X[4]}, s[42:43] offset:{q*128}'); npf += 1
    for q in range(2):
        a(f'  global_load_ushort v{WT2[2+q]}, v{X[4]}, s[40:41] offset:{q*128}'); npf += 1
    a(f'  v_lshlrev_b32 v{X[4]}, 1, v{VROW4}')
    for q in range(2):
        a(f'  global_load_ushort v{CEN+q}, v{X[4]}, s[36:37] offset:{q*8}'); npf += 1
    a(f'  s_lshl_b32 s27, s2, 4')
    for u in range(5):
        a(f'  s_add_u32 s26, s24, {16*u}')
        a('  s_lshl_b32 s26, s26, 12')
        a('  s_add_u32 s26, s26, s27')
        a(f'  s_mov_b32 s{70+u}, s26')
        a(f'  v_add_u32 v{X[3]}, s26, v{P}')
        a(f'  v_lshlrev_b32 v{X[4]}, 1, v{X[3]}')
        a(f'  buffer_load_ushort v{DI+u}, v{X[4]}, s[20:23], 0 offen'); npf += 1
    for u in range(5):
        a(f'  v_add_u32 v{X[3]}, s{70+u}, v{P}')
        a(f'  v_lshlrev_b32 v{X[4]}, 5, v{X[3]}')
        a(f'  v_lshl_add_u32 v{X[4]}, v{VROW4}, 3, v{X[4]}')
        a(f'  buffer_load_dwordx2 {vr(MM+2*u,2)}, v{X[4]}, s[4:7], 0 offen'); npf += 1
    nm = 5
    if opt.get('warm', 0):
        a('  s_cmp_ge_u32 s24, 8')
        a('  s_cbranch_scc1 p2_nowarm')
        a('  s_lshr_b32 s26, s2, 3')
        a('  s_lshl_b32 s26, s26, 3')
        a('  s_add_u32 s26, s26, s24')
        a('  s_lshl_b32 s26, s26, 13')
        a(f'  v_lshlrev_b32 v{X[4]}, 7, v{VLANE}')
        a(f'  buffer_load_dword v{VDUM}, v{X[4]}, s[4:7], s26 offen')
        a.label('p2_nowarm')
    a(f'  s_add_u32 s8, s28, {cfg.REC_OFF}')
    a('  s_addc_u32 s9, s29, 0')
    a('  s_and_b32 s9, s9, 0xffff')
    a(f'  s_mov_b32 s10, {cfg.REC_BYTES}')
    a('  s_mov_b32 s11, 0x20000')
    srd(a, 16, 48, E * 32)
    a(f'  v_lshlrev_b32 v{X[3]}, 4, v0')
    for r in (D[0], D[0]+1, D[1], D[1]+1):
        a(f'  v_mov_b32 v{r}, 0')
    assert D[1] == D[0] + 2
    a(f'  v_add_u32 v{X[4]}, 0x10000, v{X[3]}')
    a(f'  v_add_u32 v{X[5]}, 0x20000, v{X[3]}')
    for i in range(4):
        a(f'  ds_write_b128 v{X[3]}, {vr(D[0],4)} offset:{i*16384}')
    for i in range(4):
        a(f'  ds_write_b128 v{X[4]}, {vr(D[0],4)} offset:{i*16384}')
    for i in range(2):
        a(f'  ds_write_b128 v{X[5]}, {vr(D[0],4)} offset:{i*16384}')
    a(f'  v_and_b32 v{P7}, 7, v0')
    a(f'  v_lshlrev_b32 v{J4}, 2, v{P7}')
    a(f'  v_lshlrev_b32 v{J8}, 3, v{P}')
    a(f'  v_lshlrev_b32 v{J2H}, 1, v{P7}')
    a(f'  v_cmp_gt_u32 vcc, 8, v{P}')
    a(f'  v_mov_b32 v{X[3]}, 0x03020c0c')
    a(f'  v_mov_b32 v{X[4]}, 0x05040c0c')
    a(f'  v_cndmask_b32 v{SELA}, v{X[3]}, v{X[4]}, vcc')
    a(f'  v_mov_b32 v{X[3]}, 0x07060c0c')
    a(f'  v_mov_b32 v{X[4]}, 0x01000c0c')
    a(f'  v_cndmask_b32 v{SELB}, v{X[3]}, v{X[4]}, vcc')
    a(f'  v_and_b32 v{VOFF8}, 1, v{VLANE}')
    a(f'  v_lshlrev_b32 v{VOFF8}, 3, v{VOFF8}')
    if opt.get('dense', 1):
        a(f'  v_lshrrev_b32 v{X[3]}, 5, v{VLANE}')
        a(f'  v_lshl_add_u32 v{VOFF8}, v{X[3]}, 16, v{VOFF8}')
    elif JPC > 1:
        a(f'  v_lshrrev_b32 v{X[3]}, {1 + int(math.log2(NSEG))}, v{VLANE}')
        a(f'  v_lshl_add_u32 v{VOFF8}, v{X[3]}, 4, v{VOFF8}')
    a(f'  s_mul_i32 s26, s24, {NSEG}')
    a(f'  v_add_u32 v{X[0]}, s26, v{X[1]}')
    a(f'  s_mov_b32 s27, {cfg.TILE_BYTES}')
    a(f'  v_mul_lo_u32 v{X[0]}, v{X[0]}, s27')
    a('  s_mov_b32 s52, 0xfffffff0')
    a('  s_mov_b32 s53, 0xffff0000')
    a('  s_mov_b32 s54, 0x3ff80')
    a('  s_mov_b32 s55, 0xffffe0')
    a(f'  s_waitcnt vmcnt({npf})')
    if opt.get('pstamp'): st()
    a(f'  v_lshrrev_b32 v{VB}, 16, v{VN}')
    a(f'  v_and_b32 v{VN}, 0xffff, v{VN}')
    a(f'  v_mad_u32_u24 v{VB}, v{VB}, 48, v{X[0]}')
    a(f'  v_mov_b32 v{X[0]}, v{VN}')
    for sh in (1, 2, 4, 8):
        a('  s_nop 1')
        a(f'  v_max_u32_dpp v{X[0]}, v{X[0]}, v{X[0]} row_ror:{sh} row_mask:0xf bank_mask:0xf')
    a('  s_nop 1')
    for i, ln in enumerate((0, 16, 32, 48)):
        a(f'  v_readlane_b32 s{56+i}, v{X[0]}, {ln}')
    a('  s_nop 3')
    a('  s_max_u32 s56, s56, s57')
    a('  s_max_u32 s58, s58, s59')
    a('  s_max_u32 s50, s56, s58')
    a('  s_mov_b32 s51, 0')
    a('  s_mov_b32 s56, 0')
    a('  s_mov_b32 s64, 0')
    if se:
        a(f'  s_mov_b32 s69, {opt.get("nsync", 38 // se)}')
    a(f'  s_waitcnt vmcnt({nm})')
    if opt.get('pstamp'): st()
    a(f'  v_lshl_or_b32 v{WD}, v{WTMP[1]}, 16, v{WTMP[0]}')
    a(f'  v_lshl_or_b32 v{WD+1}, v{WTMP[3]}, 16, v{WTMP[2]}')
    a(f'  v_lshl_or_b32 v{WU}, v{WTMP[5]}, 16, v{WTMP[4]}')
    a(f'  v_lshl_or_b32 v{WU+1}, v{WTMP[7]}, 16, v{WTMP[6]}')
    a(f'  v_lshl_or_b32 v{WSt}, v{WT2[1]}, 16, v{WT2[0]}')
    a(f'  v_lshl_or_b32 v{WRt}, v{WT2[3]}, 16, v{WT2[2]}')
    a(f'  v_mov_b32 v{WD+2}, v{WD}')
    a(f'  v_mov_b32 v{WD+3}, v{WD+1}')
    a(f'  v_mov_b32 v{WU+2}, v{WU}')
    a(f'  v_mov_b32 v{WU+3}, v{WU+1}')
    a(f'  v_mov_b32 v{WSt+1}, 0')
    a(f'  v_mov_b32 v{WRt+1}, 0')
    a(f'  v_mov_b32 v{RBp+1}, 0')
    a(f'  v_lshlrev_b32 v{CEN}, 16, v{CEN}')
    a(f'  v_lshlrev_b32 v{CEN+1}, 16, v{CEN+1}')
    a(f'  v_mov_b32 v{EE}, 0')
    a('  s_mov_b32 s57, 0')
    uid = [0]
    def stageA(b):
        u = uid[0]; uid[0] += 1
        a.label(f'p2_chk{u}')
        a('  s_cmp_lg_u32 s56, 0')
        a(f'  s_cbranch_scc1 p2_go{u}')
        if opt.get('dense', 1):
            a('  s_cmp_ge_u32 s51, s50')
            a(f'  s_cbranch_scc1 p2_exh{u}')
            a(f'  v_add_u32 v{X[0]}, s51, v{VOFF8}')
            a(f'  v_cmp_gt_u32 vcc, v{VN}, v{X[0]}')
            a(f'  v_sub_u32 v{X[1]}, v{VN}, v{X[0]}')
            a(f'  v_min_u32 v{X[1]}, 8, v{X[1]}')
            a(f'  v_mad_u32_u24 v{X[2]}, v{X[0]}, 6, v{VB}')
            a(f'  v_or_b32 v{X[2]}, v{X[2]}, v{X[1]}')
            a(f'  s_bcnt1_i32_b64 s67, vcc')
            a(f'  v_mbcnt_lo_u32_b32 v{X[3]}, vcc_lo, 0')
            a(f'  v_mbcnt_hi_u32_b32 v{X[3]}, vcc_hi, v{X[3]}')
            a(f'  v_sub_u32 v{X[4]}, v{VLANE}, v{X[3]}')
            a(f'  v_cmp_gt_u32 s[58:59], s57, v{X[4]}')
            a(f'  v_add_u32 v{X[5]}, s67, v{X[4]}')
            a(f'  v_add_u32 v{X[3]}, s57, v{X[3]}')
            a(f'  v_cndmask_b32 v{X[2]}, 0, v{X[2]}, vcc')
            a(f'  v_cndmask_b32 v{X[4]}, v{X[5]}, v{X[4]}, s[58:59]')
            a(f'  v_cndmask_b32 v{X[4]}, v{X[4]}, v{X[3]}, vcc')
            a(f'  v_and_b32 v{X[5]}, 6, v{X[4]}')
            a(f'  v_lshlrev_b32 v{X[5]}, 5, v{X[5]}')
            a(f'  v_and_or_b32 v{X[5]}, v{X[4]}, -8, v{X[5]}')
            a(f'  v_and_b32 v{X[4]}, 1, v{X[4]}')
            a(f'  v_lshl_or_b32 v{X[5]}, v{X[4]}, 2, v{X[5]}')
            a(f'  ds_permute_b32 v{X[1]}, v{X[5]}, v{X[2]}')
            a('  s_add_u32 s67, s67, s57')
            a('  s_lshr_b32 s56, s67, 3')
            a('  s_and_b32 s57, s67, 7')
            a('  s_add_u32 s64, s64, s56')
            a(f'  s_add_u32 s51, s51, 16')
            a('  s_waitcnt lgkmcnt(0)')
            a(f'  v_or_b32 v{EE}, v{EE}, v{X[1]}')
            a(f'  s_branch p2_chk{u}')
            a.label(f'p2_exh{u}')
            a('  s_mov_b32 s56, 1')
            a('  s_cmp_eq_u32 s57, 0')
            a(f'  s_cbranch_scc1 p2_go{u}')
            a('  s_mov_b32 s57, 0')
            a('  s_add_u32 s64, s64, 1')
        else:
            a('  s_cmp_ge_u32 s51, s50')
            a(f'  s_cbranch_scc1 p2_exh{u}')
            a(f'  v_add_u32 v{X[0]}, s51, v{VOFF8}')
            a(f'  v_cmp_gt_u32 vcc, v{VN}, v{X[0]}')
            a(f'  v_sub_u32 v{X[1]}, v{VN}, v{X[0]}')
            a(f'  v_min_u32 v{X[1]}, 8, v{X[1]}')
            a(f'  v_mad_u32_u24 v{X[2]}, v{X[0]}, 6, v{VB}')
            a(f'  v_or_b32 v{X[2]}, v{X[2]}, v{X[1]}')
            a(f'  s_bcnt1_i32_b64 s67, vcc')
            a(f'  v_mbcnt_lo_u32_b32 v{X[3]}, vcc_lo, 0')
            a(f'  v_mbcnt_hi_u32_b32 v{X[3]}, vcc_hi, v{X[3]}')
            a(f'  v_sub_u32 v{X[4]}, v{VLANE}, v{X[3]}')
            a(f'  v_add_u32 v{X[4]}, s67, v{X[4]}')
            a(f'  v_cndmask_b32 v{X[4]}, v{X[4]}, v{X[3]}, vcc')
            a(f'  v_cndmask_b32 v{X[2]}, 0, v{X[2]}, vcc')
            a(f'  v_and_b32 v{X[5]}, 6, v{X[4]}')
            a(f'  v_lshlrev_b32 v{X[5]}, 5, v{X[5]}')
            a(f'  v_and_or_b32 v{X[5]}, v{X[4]}, -8, v{X[5]}')
            a(f'  v_and_b32 v{X[4]}, 1, v{X[4]}')
            a(f'  v_lshl_or_b32 v{X[5]}, v{X[4]}, 2, v{X[5]}')
            a(f'  ds_permute_b32 v{EE}, v{X[5]}, v{X[2]}')
            a('  s_add_u32 s56, s67, 7')
            a('  s_lshr_b32 s56, s56, 3')
            a('  s_add_u32 s64, s64, s56')
            a(f'  s_add_u32 s51, s51, {16*JPC}')
            a('  s_waitcnt lgkmcnt(0)')
            a(f'  s_branch p2_go{u}')
            a.label(f'p2_exh{u}')
            a(f'  v_mov_b32 v{EE}, 0')
            a('  s_mov_b32 s56, 1')
            a('  s_nop 0')
        a.label(f'p2_go{u}')
        a('  s_sub_u32 s56, s56, 1')
        a(f'  v_mov_b32_dpp v{X[0]}, v{EE} row_newbcast:0 row_mask:0xf bank_mask:0x3')
        a(f'  v_mov_b32_dpp v{X[0]}, v{EE} row_newbcast:1 row_mask:0xf bank_mask:0xc')
        a(f'  v_mov_b32_dpp v{EE}, v{EE} row_shl:2 row_mask:0xf bank_mask:0xf bound_ctrl:0')
        a(f'  v_and_b32 v{X[1]}, s52, v{X[0]}')
        a(f'  v_and_b32 v{VV[b]}, 15, v{X[0]}')
        a(f'  v_add_u32 v{X[0]}, v{X[1]}, v{J4}')
        a(f'  v_add_u32 v{X[1]}, v{X[1]}, v{J2H}')
        F = {0: '', 1: ' nt', 2: ' sc1', 3: ' sc0'}
        a(f'  buffer_load_dword v{RW[b]}, v{X[0]}, s[8:11], 0 offen{F[opt.get("rw_f", 0)]}')
        a(f'  buffer_load_short_d16_hi v{RC[b]}, v{X[1]}, s[8:11], 0 offen offset:32{F[opt.get("rc_f", 0)]}')
    def decode(b):
        a(f'  v_cmp_gt_u32 vcc, v{VV[b]}, v{P7}')
        a(f'  v_lshlrev_b32 v{X[2]}, 5, v{RW[b]}')
        a(f'  v_lshrrev_b32 v{X[3]}, 12, v{RW[b]}')
        a(f'  v_and_b32 v{CC[b]}, s53, v{RC[b]}')
        a(f'  v_and_b32 v{X[2]}, s55, v{X[2]}')
        a(f'  v_and_b32 v{X[3]}, s54, v{X[3]}')
        a(f'  v_cndmask_b32 v{COL}, 0, v{X[2]}, vcc')
        if opt.get('colmask'):
            a(f'  v_and_b32 v{COL}, {opt["colmask"]}, v{COL}')
        a(f'  v_cndmask_b32 v{ROW[b]}, v{VDUM}, v{X[3]}, vcc')
        a('  s_nop 0')
    def gather(b, g):
        ad = GAD[g & 1]
        a(f'  v_add_u32_dpp v{ad}, v{COL}, v{J4} row_newbcast:{2*g} row_mask:0xf bank_mask:0x3')
        a(f'  v_add_u32_dpp v{ad}, v{COL}, v{J4} row_newbcast:{2*g+1} row_mask:0xf bank_mask:0xc')
        GF = {0: '', 1: ' sc0', 2: ' sc1', 3: ' nt'}[opt.get('gflag', 0)]
        a(f'  buffer_load_dword v{G[b]+g}, v{ad}, s[4:7], 0 offen{GF}')
    def consume(b, g):
        x = G[b] + g; y = YR[g & 1]
        a(f'  v_mov_b32_dpp v{y}, v{x} row_ror:8 row_mask:0xf bank_mask:0xf')
        a(f'  v_add_u32_dpp v{LA[0]}, v{ROW[b]}, v{J8} row_newbcast:{2*g} row_mask:0xf bank_mask:0xf')
        a(f'  v_add_u32_dpp v{LA[1]}, v{ROW[b]}, v{J8} row_newbcast:{2*g+1} row_mask:0xf bank_mask:0xf')
        a(f'  v_perm_b32 v{AB[0]}, v{x}, v{y}, v{SELA}')
        a(f'  v_perm_b32 v{AB[1]}, v{x}, v{y}, v{SELB}')
        a(f'  v_mul_f32_dpp v{PT[0]}, v{CC[b]}, v{AB[0]} row_newbcast:{2*g} row_mask:0xf bank_mask:0xf')
        a(f'  v_mul_f32_dpp v{PT[1]}, v{CC[b]}, v{AB[1]} row_newbcast:{2*g+1} row_mask:0xf bank_mask:0xf')
        a(f'  v_cvt_f64_f32 {vr(D[0],2)}, v{PT[0]}')
        a(f'  v_cvt_f64_f32 {vr(D[1],2)}, v{PT[1]}')
        if not opt.get('no_ds'):
            a(f'  ds_add_f64 v{LA[0]}, {vr(D[0],2)}')
            a(f'  ds_add_f64 v{LA[1]}, {vr(D[1],2)}')
    for t in range(-2*b_lag, -b_lag):
        stageA((t + 2*b_lag) % R)
    first = True
    for t in range(-b_lag, 0):
        stageA((t + 2*b_lag) % R)
        if first:
            first = False
            if opt.get('warm2'):
                nw = opt['warm2']
                a(f'  s_cmp_ge_u32 s24, {nw}')
                a('  s_cbranch_scc1 p2_nowarm2')
                a('  s_lshr_b32 s26, s2, 3')
                a(f'  s_mul_i32 s26, s26, {nw}')
                a('  s_add_u32 s26, s26, s24')
                a('  s_lshl_b32 s26, s26, 13')
                a(f'  v_lshlrev_b32 v{X[4]}, 7, v{VLANE}')
                a(f'  buffer_load_dword v{VDUM}, v{X[4]}, s[4:7], s26 offen')
                a.label('p2_nowarm2')
            a('  s_mov_b32 s76, 0xc1200000')
            a('  s_mov_b32 s77, 0x3fb8aa3b')
            for u in range(5):
                a(f'  v_lshlrev_b32 v{X[1]}, 16, v{DI+u}')
                a(f'  v_sub_f32 v{X[2]}, v{X[1]}, v{CEN}')
                a(f'  v_sub_f32 v{X[3]}, v{X[1]}, v{CEN+1}')
                def rnd2():
                    a(f'  v_cvt_pk_bf16_f32 v{X[4]}, v{X[2]}, v{X[3]}')
                    a(f'  v_lshlrev_b32 v{X[2]}, 16, v{X[4]}')
                    a(f'  v_and_b32 v{X[3]}, s53, v{X[4]}')
                rnd2()
                a(f'  v_mul_f32 v{X[2]}, v{X[2]}, v{X[2]}')
                a(f'  v_mul_f32 v{X[3]}, v{X[3]}, v{X[3]}')
                rnd2()
                a(f'  v_mul_f32 v{X[2]}, s76, v{X[2]}')
                a(f'  v_mul_f32 v{X[3]}, s76, v{X[3]}')
                rnd2()
                a(f'  v_mul_f32 v{X[2]}, s77, v{X[2]}')
                a(f'  v_mul_f32 v{X[3]}, s77, v{X[3]}')
                a(f'  v_exp_f32 v{X[2]}, v{X[2]}')
                a(f'  v_exp_f32 v{X[3]}, v{X[3]}')
                a('  s_nop 0')
                a(f'  v_cvt_pk_bf16_f32 v{RBp}, v{X[2]}, v{X[3]}')
                a('  s_nop 1')
                a(f'  v_mfma_f32_16x16x16_bf16 {vr(GG+4*u,4)}, {vr(WSt,2)}, {vr(RBp,2)}, 0')
                a(f'  v_mfma_f32_16x16x16_bf16 {vr(HT,4)}, {vr(WRt,2)}, {vr(RBp,2)}, 0')
                a('  s_nop 7')
                a('  s_nop 1')
                a(f'  v_cvt_pk_bf16_f32 v{HH+2*u}, v{HT}, v{HT+1}')
                a(f'  v_cvt_pk_bf16_f32 v{HH+2*u+1}, v{HT+2}, v{HT+3}')
        if opt.get('pstamp') and t == -b_lag: st()
        a(f'  s_waitcnt vmcnt({2*b_lag + NG*(t + b_lag)})')
        if opt.get('pstamp') and t == -b_lag: st()
        if t == -b_lag:
            if opt.get('warm2'):
                a('  s_waitcnt vmcnt(0)')
            a(f'  v_mov_b32 v{VDUM}, {DUMMY_ROW*128}')
        decode((t + b_lag) % R)
        for g in range(NG):
            gather((t + b_lag) % R, g)
    a('  s_waitcnt lgkmcnt(0)')
    a('  s_barrier')
    st()
    if opt.get('prio'):
        pr = opt['prio']
        if pr == 1:
            a('  s_cmp_lt_u32 s24, 8')
            a('  s_cbranch_scc1 p2_noprio')
            a('  s_setprio 1')
            a.label('p2_noprio')
        if pr == 2:
            a('  s_cmp_lt_u32 s24, 4')
            a('  s_cbranch_scc1 p2_noprio')
            a('  s_setprio 1')
            a('  s_cmp_lt_u32 s24, 8')
            a('  s_cbranch_scc1 p2_noprio')
            a('  s_setprio 2')
            a('  s_cmp_lt_u32 s24, 12')
            a('  s_cbranch_scc1 p2_noprio')
            a('  s_setprio 3')
            a.label('p2_noprio')
    a('  s_cmp_eq_u32 s64, 0')
    a('  s_cbranch_scc1 p2_loop_exit')
    a.label('p2_loop')
    U = R
    if se and se > R and se % R == 0:
        U = se
    for t in range(U):
        tb = t % R
        stageA((tb + 2*b_lag) % R)
        a(f'  s_waitcnt vmcnt({(NG+2)*b_lag})')
        decode((tb + b_lag) % R)
        for g in range(NG):
            gather((tb + b_lag) % R, g)
            a(f'  s_waitcnt vmcnt({(NG+2)*b_lag})')
            consume(tb, g)
        if se and (t % se) == se - 1:
            a('  s_cmp_eq_u32 s69, 0')
            a(f'  s_cbranch_scc1 p2_nosync{t}')
            a('  s_barrier')
            a('  s_sub_u32 s69, s69, 1')
            a.label(f'p2_nosync{t}')
        a('  s_sub_u32 s64, s64, 1')
        a('  s_cmp_eq_u32 s64, 0')
        if t < U - 1:
            a('  s_cbranch_scc1 p2_loop_exit')
        else:
            a('  s_cbranch_scc0 p2_loop')
    a.label('p2_loop_exit')
    if se:
        a.label('p2_owed')
        a('  s_cmp_eq_u32 s69, 0')
        a('  s_cbranch_scc1 p2_owed_done')
        a('  s_barrier')
        a('  s_sub_u32 s69, s69, 1')
        a('  s_branch p2_owed')
        a.label('p2_owed_done')
    st()
    a('  s_waitcnt vmcnt(0) lgkmcnt(0)')
    a('  s_barrier')
    st()
    def split4(src):
        a(f'  v_cvt_pk_bf16_f32 v{BT}, v{src}, v{src+1}')
        a(f'  v_cvt_pk_bf16_f32 v{BT+1}, v{src+2}, v{src+3}')
        a(f'  v_lshlrev_b32 v{X[0]}, 16, v{BT}')
        a(f'  v_and_b32 v{X[1]}, s53, v{BT}')
        a(f'  v_lshlrev_b32 v{X[2]}, 16, v{BT+1}')
        a(f'  v_and_b32 v{X[3]}, s53, v{BT+1}')
        for q in range(4):
            a(f'  v_sub_f32 v{X[q]}, v{src+q}, v{X[q]}')
        a(f'  v_cvt_pk_bf16_f32 v{BT+2}, v{X[0]}, v{X[1]}')
        a(f'  v_cvt_pk_bf16_f32 v{BT+3}, v{X[2]}, v{X[3]}')
        a('  s_nop 1')
    for u in range(5):
        a(f'  s_cmp_ge_u32 s{70+u}, {E}')
        a(f'  s_cbranch_scc1 p2_epi_skip{u}')
        a(f'  s_add_u32 s26, s24, {16*u}')
        a('  s_lshl_b32 s26, s26, 11')
        a(f'  v_lshlrev_b32 v{X[0]}, 7, v{P}')
        a(f'  v_lshl_add_u32 v{X[0]}, v{VROW4}, 4, v{X[0]}')
        a(f'  v_add_u32 v{X[0]}, s26, v{X[0]}')
        a(f'  ds_read_b128 {vr(Sg,4)}, v{X[0]}')
        a(f'  ds_read_b128 {vr(Sg+4,4)}, v{X[0]} offset:64')
        a('  s_waitcnt lgkmcnt(0)')
        order = [0, 2, 1, 3]
        for i in range(4):
            a(f'  v_cvt_f32_f64 v{SF+order[i]}, {vr(Sg+2*i,2)}')
        split4(SF)
        a(f'  v_mfma_f32_16x16x32_bf16 {vr(Y,4)}, {vr(WD,4)}, {vr(BT,4)}, 0')
        a('  s_nop 7')
        a('  s_nop 1')
        for q in range(4):
            a(f'  v_mul_f32 v{Y+q}, v{Y+q}, v{GG+4*u+q}')
        split4(Y)
        a(f'  v_mfma_f32_16x16x32_bf16 {vr(Z,4)}, {vr(WU,4)}, {vr(BT,4)}, 0')
        a(f'  v_lshlrev_b32 v{SF}, 16, v{HH+2*u}')
        a(f'  v_and_b32 v{SF+1}, s53, v{HH+2*u}')
        a(f'  v_lshlrev_b32 v{SF+2}, 16, v{HH+2*u+1}')
        a(f'  v_and_b32 v{SF+3}, s53, v{HH+2*u+1}')
        a(f'  v_lshlrev_b32 v{Y}, 16, v{MM+2*u}')
        a(f'  v_and_b32 v{Y+1}, s53, v{MM+2*u}')
        a(f'  v_lshlrev_b32 v{Y+2}, 16, v{MM+2*u+1}')
        a(f'  v_and_b32 v{Y+3}, s53, v{MM+2*u+1}')
        a('  s_nop 1')
        a(f'  v_cvt_pk_bf16_f32 v{X[0]}, v{Z}, v{Z+1}')
        a(f'  v_cvt_pk_bf16_f32 v{X[1]}, v{Z+2}, v{Z+3}')
        a(f'  v_lshlrev_b32 v{Z}, 16, v{X[0]}')
        a(f'  v_and_b32 v{Z+1}, s53, v{X[0]}')
        a(f'  v_lshlrev_b32 v{Z+2}, 16, v{X[1]}')
        a(f'  v_and_b32 v{Z+3}, s53, v{X[1]}')
        for q in range(4):
            a(f'  v_mul_f32 v{Z+q}, v{Z+q}, v{SF+q}')
        a(f'  v_cvt_pk_bf16_f32 v{X[0]}, v{Z}, v{Z+1}')
        a(f'  v_cvt_pk_bf16_f32 v{X[1]}, v{Z+2}, v{Z+3}')
        a(f'  v_lshlrev_b32 v{Z}, 16, v{X[0]}')
        a(f'  v_and_b32 v{Z+1}, s53, v{X[0]}')
        a(f'  v_lshlrev_b32 v{Z+2}, 16, v{X[1]}')
        a(f'  v_and_b32 v{Z+3}, s53, v{X[1]}')
        for q in range(4):
            a(f'  v_add_f32 v{Z+q}, v{Z+q}, v{Y+q}')
        a(f'  v_cvt_pk_bf16_f32 v{Z}, v{Z}, v{Z+1}')
        a(f'  v_cvt_pk_bf16_f32 v{Z+1}, v{Z+2}, v{Z+3}')
        a(f'  v_add_u32 v{X[3]}, s{70+u}, v{P}')
        a(f'  v_lshlrev_b32 v{X[4]}, 5, v{X[3]}')
        a(f'  v_lshl_add_u32 v{X[4]}, v{VROW4}, 3, v{X[4]}')
        a(f'  buffer_store_dwordx2 {vr(Z,2)}, v{X[4]}, s[16:19], 0 offen{OTF}')
        a.label(f'p2_epi_skip{u}')
    if st.on:
        a('  s_waitcnt vmcnt(0)')
        st()
    st.flush('s24')
    a.label('p2_done')
    a('  s_endpgm')
    return maxv

def descriptor(a, name, vgpr, sgpr):
    a(f'.amdhsa_kernel {name}')
    a(f'  .amdhsa_next_free_vgpr {vgpr}')
    a(f'  .amdhsa_next_free_sgpr {sgpr}')
    a(f'  .amdhsa_accum_offset {(vgpr + 3) // 4 * 4}')
    a('  .amdhsa_group_segment_fixed_size 0')
    a('  .amdhsa_kernarg_size 112')
    a('  .amdhsa_user_sgpr_count 2')
    a('  .amdhsa_user_sgpr_kernarg_segment_ptr 1')
    a('  .amdhsa_system_sgpr_workgroup_id_x 1')
    a('  .amdhsa_float_denorm_mode_32 3')
    a('.end_amdhsa_kernel')

HEADER = '''; Kernarg layout (112 bytes, ptrs only, base s[0:1]):
; Two launches: p1 partitions the triplets by output-row bucket (each segment ordered by input column block),
; @launch kernel=p1_kernel grid=(256,1,1) block=(1024,1,1) lds=163840
; @launch kernel=p2_kernel grid=(256,1,1) block=(1024,1,1) lds=163840
.amdgcn_target "amdgcn-amd-amdhsa--gfx950"
.text
.globl p1_kernel
.globl p2_kernel
'''

def build(opt):
    cfg = Cfg(opt)
    a = Asm()
    a(HEADER.rstrip('\n'))
    gen_p1(a, opt, cfg)
    v2 = gen_p2(a, opt, cfg)
    a('.section .rodata,"a"')
    a('.p2align 6')
    ns = 102 if opt.get('stamp') else 80
    descriptor(a, 'p1_kernel', 128, ns)
    a('.p2align 6')
    descriptor(a, 'p2_kernel', v2, ns)
    return a.text()

if __name__ == '__main__':
    out = sys.argv[1] if len(sys.argv) > 1 else 'standalone__molecular_angular_gemnet__graph.s'
    opt = {}
    for kv in sys.argv[2:]:
        k, v = kv.split('=')
        opt[k] = int(v) if v.lstrip('-').isdigit() else v
    open(out, 'w').write(build(opt))
    print('wrote', out)
```
